```python
import torch

def _softmax(x, axis=-1):
    return torch.softmax(x, dim=axis)
def _gelu(x):
    return torch.nn.functional.gelu(x, approximate="tanh")
def _silu(x):
    return torch.nn.functional.silu(x)
def _sigmoid(x):
    return torch.sigmoid(x)
def _layernorm(x, axis=-1, eps=1e-5):
    m = x.mean(dim=axis, keepdim=True)
    v = x.var(dim=axis, keepdim=True, unbiased=False)
    return (x - m) / torch.sqrt(v + eps)
def _scatter_add(tgt, idx, src, axis=0):
    return tgt.clone().index_add_(axis, idx, src)
def _segment_sum(src, seg, n):
    out = torch.zeros((n,) + src.shape[1:], dtype=src.dtype)
    return out.index_add_(0, seg, src)
def _pad(x, pw):
    flat = tuple(v for pair in reversed(pw) for v in pair)
    return torch.nn.functional.pad(x, flat)

kernel_name = 'concat_heads__gqa_block_cached__gqa_block_cached__near_ridge'

def setup_inputs():

    _w = (lambda a: (lambda t: t.to(torch.bfloat16) if t.is_floating_point() else t)(torch.as_tensor(a)))
    def _A_setup():
        B, Sq, D = 16, 32, 512
        Hq, Hkv, Sk, Dh = 32, 8, 1024, 128
        assert Hq % Hkv == 0, (Hq, Hkv)
        return {
            "x": _w((lambda *s: torch.randn(*s, dtype=torch.bfloat16) * 0.8)(B, Sq, D)),
            "k_cache": _w((lambda *s: torch.randn(*s, dtype=torch.bfloat16) * 0.8)(B, Hkv, Sk, Dh)),
            "v_cache": _w((lambda *s: torch.randn(*s, dtype=torch.bfloat16) * 0.05)(B, Hkv, Sk, Dh)),
            "wq": _w((lambda *s: torch.randn(*s, dtype=torch.bfloat16) * 0.8)(D, Hq * Dh) * (D ** -0.5)),
            "wo": _w((lambda *s: torch.randn(*s, dtype=torch.bfloat16) * 0.05)(Hq * Dh, D) * ((Hq * Dh) ** -0.5)),
        }
    _A_in = _A_setup()

    def _B_setup():
        B, Sq, D = 16, 32, 512
        Hq, Hkv, Sk, Dh = 32, 8, 1024, 128
        assert Hq % Hkv == 0, (Hq, Hkv)
        return {
            "x": _w((lambda *s: torch.randn(*s, dtype=torch.bfloat16) * 0.8)(B, Sq, D)),
            "k_cache": _w((lambda *s: torch.randn(*s, dtype=torch.bfloat16) * 0.8)(B, Hkv, Sk, Dh)),
            "v_cache": _w((lambda *s: torch.randn(*s, dtype=torch.bfloat16) * 0.05)(B, Hkv, Sk, Dh)),
            "wq": _w((lambda *s: torch.randn(*s, dtype=torch.bfloat16) * 0.8)(D, Hq * Dh) * (D ** -0.5)),
            "wo": _w((lambda *s: torch.randn(*s, dtype=torch.bfloat16) * 0.05)(Hq * Dh, D) * ((Hq * Dh) ** -0.5)),
        }
    _B_in = _B_setup()

    return {
        "A_x": _A_in["x"],
        "A_k_cache": _A_in["k_cache"],
        "A_v_cache": _A_in["v_cache"],
        "A_wq": _A_in["wq"],
        "A_wo": _A_in["wo"],
        "B_x": _B_in["x"],
        "B_k_cache": _B_in["k_cache"],
        "B_v_cache": _B_in["v_cache"],
        "B_wq": _B_in["wq"],
        "B_wo": _B_in["wo"],
    }

def reference(A_x, A_k_cache, A_v_cache, A_wq, A_wo, B_x, B_k_cache, B_v_cache, B_wq, B_wo):
    def _A_ref(x, k_cache, v_cache, wq, wo):
        B, Sq, D = x.shape
        Hq, Dh = 32, 128
        Hkv = k_cache.shape[1]
        rep = Hq // Hkv
        q = (lambda x, *d: x.permute(*d))((x @ wq).reshape(B, Sq, Hq, Dh), 0, 2, 1, 3)
        k = (lambda x, n, axis: torch.repeat_interleave(x, n, dim=axis))(k_cache, rep, axis=1)
        v = (lambda x, n, axis: torch.repeat_interleave(x, n, dim=axis))(v_cache, rep, axis=1)
        scores = torch.einsum("bhqd,bhkd->bhqk", q, k) * (Dh ** -0.5)
        p = _softmax(scores, axis=-1)
        o = torch.einsum("bhqk,bhkd->bhqd", p, v)
        return (lambda x, *d: x.permute(*d))(o, 0, 2, 1, 3).reshape(B, Sq, Hq * Dh) @ wo

    def _B_ref(x, k_cache, v_cache, wq, wo):
        B, Sq, D = x.shape
        Hq, Dh = 32, 128
        Hkv = k_cache.shape[1]
        rep = Hq // Hkv
        q = (lambda x, *d: x.permute(*d))((x @ wq).reshape(B, Sq, Hq, Dh), 0, 2, 1, 3)
        k = (lambda x, n, axis: torch.repeat_interleave(x, n, dim=axis))(k_cache, rep, axis=1)
        v = (lambda x, n, axis: torch.repeat_interleave(x, n, dim=axis))(v_cache, rep, axis=1)
        scores = torch.einsum("bhqd,bhkd->bhqk", q, k) * (Dh ** -0.5)
        p = _softmax(scores, axis=-1)
        o = torch.einsum("bhqk,bhkd->bhqd", p, v)
        return (lambda x, *d: x.permute(*d))(o, 0, 2, 1, 3).reshape(B, Sq, Hq * Dh) @ wo

    a = _A_ref(A_x, A_k_cache, A_v_cache, A_wq, A_wo)
    b = _B_ref(B_x, B_k_cache, B_v_cache, B_wq, B_wo)
    return torch.concatenate([a, b], axis=-1)
```

```python
NAME = 'concat_heads__gqa_block_cached__gqa_block_cached__near_ridge'

class Asm:
    def __init__(self):
        self.lines = []
        self.nlab = 0
    def __call__(self, s):
        for l in s.strip('\n').split('\n'):
            l = l.strip()
            if not l:
                continue
            if l.endswith(':'):
                self.lines.append(l)
            else:
                self.lines.append('    ' + l)
    def label(self, base='L'):
        self.nlab += 1
        return f'{base}_{self.nlab}'
    def text(self):
        return '\n'.join(self.lines) + '\n'

def header(launch_lines):
    ref = open('cdna_kernels/' + NAME + '.s.ref').read().split('\n')
    hdr = [l for l in ref if l.startswith(';') and '@launch' not in l and 'Override launch' not in l and 'grid=ceil' not in l]
    return '\n'.join(hdr + launch_lines) + '\n.amdgcn_target "amdgcn-amd-amdhsa--gfx950"\n.text\n'

def kernel_open(name):
    return f'.globl {name}\n.p2align 8\n.type {name},@function\n{name}:\n'

def descriptor(name, vgpr=256, sgpr=102, accum=None):
    if accum is None:
        accum = min(256, (vgpr + 3) // 4 * 4)
    return f'''.section .rodata,"a"
.p2align 6
.amdhsa_kernel {name}
  .amdhsa_next_free_vgpr {vgpr}
  .amdhsa_next_free_sgpr {sgpr}
  .amdhsa_accum_offset {accum}
  .amdhsa_group_segment_fixed_size 0
  .amdhsa_kernarg_size 104
  .amdhsa_user_sgpr_count 2
  .amdhsa_user_sgpr_kernarg_segment_ptr 1
  .amdhsa_system_sgpr_workgroup_id_x 1
.end_amdhsa_kernel
'''
```

```python
import re, sys

TRANS = ('v_exp_f32', 'v_log_f32', 'v_rcp_f32', 'v_rsq_f32', 'v_sqrt_f32', 'v_sin_f32', 'v_cos_f32')

def regs(tok):
    tok = tok.strip()
    neg = tok.lstrip('-')
    m = re.fullmatch(r'abs\((.*)\)', neg)
    if m: neg = m.group(1)
    neg = neg.strip('|')
    m = re.fullmatch(r'([vsa])(\d+)', neg)
    if m: return {(m.group(1), int(m.group(2)))}
    m = re.fullmatch(r'([vsa])\[(\d+):(\d+)\]', neg)
    if m: return {(m.group(1), i) for i in range(int(m.group(2)), int(m.group(3)) + 1)}
    if neg in ('vcc', 'vcc_lo'): return {('s', 'vcc')}
    if neg == 'exec': return {('s', 'exec')}
    if neg == 'm0': return {('s', 'm0')}
    return set()

class I:
    def __init__(s, text, ln):
        s.text = text; s.ln = ln
        t = text.split(';')[0].strip()
        p = t.split(None, 1)
        s.op = p[0]
        rest = p[1] if len(p) > 1 else ''
        s.ops = [x.strip() for x in rest.split(',')] if rest else []
        if s.ops:
            last = s.ops[-1].split()
            s.mods = last[1:]
            s.ops[-1] = last[0] if last else ''
        else:
            s.mods = []
        op = s.op
        s.mfma = op.startswith('v_mfma')
        s.valu = op.startswith('v_') and not s.mfma
        s.salu = op.startswith('s_')
        s.ds = op.startswith('ds_')
        s.vmem = op.startswith('buffer_') or op.startswith('global_')
        s.lds_dma = s.vmem and ('lds' in s.mods or 'lds' in op)
        s.w = set(); s.r = set(); s.c = set(); s.ab = set(); s.sdata = set()
        R = [regs(x) for x in s.ops]
        if s.mfma:
            s.w = R[0]; s.ab = R[1] | R[2]; s.c = R[3]; s.r = s.ab | s.c
            s.passes = 8 if '32x32' in op else 4
        elif s.valu:
            if op.startswith('v_cmp'):
                s.w = R[0]; s.r = set().union(*R[1:])
            elif op.startswith('v_permlane') and 'swap' in op:
                s.w = R[0] | R[1]; s.r = R[0] | R[1]
            elif op.startswith('v_nop'):
                pass
            else:
                s.w = R[0]; s.r = set().union(*R[1:]) if len(R) > 1 else set()
                if op.startswith('v_fmac') or op.startswith('v_writelane'): s.r |= R[0]
                if '_co_' in op: s.w |= R[1]
                if op.startswith('v_cndmask') and len(s.ops) == 3: s.r |= {('s', 'vcc')}
        elif s.ds:
            if 'read' in op or 'permute' in op or 'swizzle' in op:
                s.w = R[0]; s.r = set().union(*R[1:])
            else:
                s.r = set().union(*R)
        elif s.vmem:
            if s.lds_dma:
                s.r = set().union(*R) | {('s', 'm0')}
            elif 'load' in op:
                s.w = R[0]; s.r = set().union(*R[1:])
            elif op in ('buffer_inv', 'buffer_wbl2'):
                pass
            else:
                s.r = set().union(*R)
                if 'x4' in op or 'x3' in op:
                    s.sdata = R[0] if op.startswith('buffer') else R[1]
        elif s.salu and s.ops and not op.startswith(('s_cmp', 's_cbranch', 's_branch', 's_waitcnt', 's_nop', 's_sleep', 's_setprio', 's_barrier', 's_bitcmp')):
            s.w = R[0]; s.r = set().union(*R[1:]) if len(R) > 1 else set()
            if 'saveexec' in op: s.w |= {('s', 'exec')}
        s.states = 1
        if op == 's_nop': s.states = int(s.ops[0], 0) + 1

def need(p, c):
    n = 0
    V = lambda S: {x for x in S if x[0] in 'va'}
    SG = lambda S: {x for x in S if x[0] == 's'}
    if p.valu:
        if c.mfma and V(p.w) & c.r: n = max(n, 2)
        if c.op.startswith('v_permlane') and V(p.w) & c.r: n = max(n, 2)
        if c.op.startswith(('v_readlane', 'v_readfirstlane')) and V(p.w) & c.r: n = max(n, 1)
        if 'dpp' in c.text and c.valu and V(p.w) & c.r: n = max(n, 2)
        if p.op.startswith(TRANS) and c.valu and not c.op.startswith(TRANS) and p.w & c.r: n = max(n, 1)
        if p.op.startswith(TRANS) and c.mfma and p.w & c.r: n = max(n, 2)
        if SG(p.w) & c.r:
            if c.valu: n = max(n, 2)
            if c.vmem: n = max(n, 5)
            if c.op.startswith(('v_readlane', 'v_writelane')): n = max(n, 4)
    if p.mfma:
        t = {8: 12, 4: 8}[p.passes]
        if c.mfma:
            if p.w & c.ab: n = max(n, t)
            if p.w & c.c and not (p.w == c.c and p.passes == c.passes): n = max(n, t - 2)
            if p.w & c.w and not (p.w == c.c and p.passes == c.passes) and not (p.w & c.c): n = max(n, t - 2)
        else:
            if (c.valu or c.ds or c.vmem) and p.w & (c.r | c.w): n = max(n, t)
            if c.valu and p.c & c.w: n = max(n, {8: 7, 4: 3}[p.passes])
    if p.salu and ('s', 'm0') in p.w and c.lds_dma: n = max(n, 1)
    if p.sdata and p.sdata & c.w: n = max(n, 2 if c.valu else 1)
    return n

def check(text, verbose=True):
    ins = []; labels = {}
    for ln, l in enumerate(text.split('\n'), 1):
        t = l.split(';')[0].strip()
        if not t or t.startswith('.'): continue
        if t.endswith(':'):
            labels[t[:-1]] = len(ins); continue
        ins.append(I(t, ln))
    errs = set()
    def succ(i):
        x = ins[i]
        if x.op == 's_endpgm': return []
        if x.op == 's_branch': return [labels[x.ops[0]]]
        if x.op.startswith('s_cbranch'): return [i + 1, labels[x.ops[0]]]
        return [i + 1]
    for i, p in enumerate(ins):
        if not (p.valu or p.mfma or p.sdata or (p.salu and ('s', 'm0') in p.w)): continue
        stack = [(j, 0) for j in succ(i)]
        seen = {}
        while stack:
            j, d = stack.pop()
            if j >= len(ins) or d >= 13: continue
            if seen.get(j, 99) <= d: continue
            seen[j] = d
            c = ins[j]
            n = need(p, c)
            if n > d:
                errs.add((p.ln, c.ln, n, d, p.text, c.text))
            for k in succ(j): stack.append((k, d + c.states))
    for e in sorted(errs):
        if verbose: print('HAZARD line %d -> %d need %d have %d:\n    %s\n    %s' % e)
    return len(errs)

if __name__ == '__main__':
    n = check(open(sys.argv[1]).read())
    print('hazards:', n)
```

```python
import sys, struct
from asmlib import *
import hazard

def f32(x):
    return struct.unpack('<I', struct.pack('<f', x))[0]

SLOT = 16384
FLAG_OFF = 16 * 1024 * 1024
STAMP_OFF = 128 * 1024 * 1024

def slot_of(j):
    return j if j < 10 else (j - 10) % 6

class Cfg:
    stamps = False
    wq_pol = ''
    wo_pol = ''
    x_pol = ''
    kv_pol = ' nt'
    w_at = (7, 8, 9, 10)
    head_fly = 2
    T = 8.0

def gen(cfg):
    a = Asm()
    kn = NAME + '_kernel'
    sWAVE, sHKV, sBR, sB, sG, sROT = 's30', 's31', 's32', 's33', 's34', 's35'
    K_, V_, X_, WQ_, WO_, WS_, OUT_, DBG_ = ['s[%d:%d]' % (36 + 4 * i, 39 + 4 * i) for i in range(8)]
    sT0, sT1, sT2, sCNT, sBASE, sLIM, sC, sCHK, sHW = 's68', 's69', 's70', 's71', 's72', 's73', 's74', 's75', 's76'
    sSPIN = 's77'
    vSTAMP = 'v31'
    nst = [0]
    def stamp(i, dyn=None):
        if not cfg.stamps: return
        a('s_memrealtime s[100:101]')
        a('s_waitcnt lgkmcnt(0)')
        if dyn is None:
            a(f'v_writelane_b32 {vSTAMP}, s100, {i}')
        else:
            a(f's_add_u32 m0, {dyn}, {i}')
            a(f'v_writelane_b32 {vSTAMP}, s100, m0')

    a(f'''
    s_cmp_ge_u32 s2, 256
    s_cbranch_scc1 L_end
    s_load_dwordx16 s[4:19], s[0:1], 0
    s_load_dwordx8 s[20:27], s[0:1], 64
    s_load_dwordx2 s[28:29], s[0:1], 96
    v_lshrrev_b32 v1, 6, v0
    v_and_b32 v0, 63, v0
    v_readfirstlane_b32 {sWAVE}, v1
    s_and_b32 {sHKV}, s2, 7
    s_bfe_u32 {sBR}, s2, 0x10003
    s_lshr_b32 {sB}, s2, 4
    s_lshl_b32 {sG}, {sBR}, 4
    s_add_u32 {sG}, {sG}, {sB}
    s_lshl_b32 {sROT}, {sB}, 1
    ''')
    if cfg.stamps:
        a(f'v_mov_b32 {vSTAMP}, 0')
    a(f'''
    v_lshrrev_b32 v1, 4, v0
    v_and_b32 v2, 15, v0
    v_lshrrev_b32 v3, 5, v0
    v_lshlrev_b32 v4, 4, v0
    s_lshl_b32 {sT0}, {sB}, 3
    s_add_u32 {sT0}, {sT0}, {sHKV}
    s_lshl_b32 {sT0}, {sT0}, 18
    s_lshl_b32 {sT1}, {sB}, 15
    s_lshl_b32 {sT2}, {sHKV}, 10
    s_mov_b32 s38, 262144
    s_mov_b32 s39, 0x20000
    s_mov_b32 s42, 262144
    s_mov_b32 s43, 0x20000
    s_mov_b32 s46, 32768
    s_mov_b32 s47, 0x20000
    s_sub_u32 s50, 0x400000, {sT2}
    s_mov_b32 s51, 0x20000
    s_mov_b32 s54, 524288
    s_mov_b32 s55, 0x20000
    s_mov_b32 s58, {FLAG_OFF + 32768}
    s_mov_b32 s59, 0x20000
    s_mov_b32 s63, 0x20000
    s_mov_b32 s66, 256
    s_mov_b32 s67, 0x20000
    s_waitcnt lgkmcnt(0)
    ''')
    stamp(0)
    a(f'''
    s_cmp_eq_u32 {sBR}, 0
    s_cselect_b32 s36, s6, s16
    s_cselect_b32 s37, s7, s17
    s_cselect_b32 s40, s8, s18
    s_cselect_b32 s41, s9, s19
    s_cselect_b32 s44, s4, s14
    s_cselect_b32 s45, s5, s15
    s_cselect_b32 s48, s10, s20
    s_cselect_b32 s49, s11, s21
    s_cselect_b32 s52, s12, s22
    s_cselect_b32 s53, s13, s23
    s_add_u32 s36, s36, {sT0}
    s_addc_u32 s37, s37, 0
    s_add_u32 s40, s40, {sT0}
    s_addc_u32 s41, s41, 0
    s_add_u32 s44, s44, {sT1}
    s_addc_u32 s45, s45, 0
    s_add_u32 s48, s48, {sT2}
    s_addc_u32 s49, s49, 0
    s_lshl_b32 {sT0}, {sHKV}, 19
    s_add_u32 s52, s52, {sT0}
    s_addc_u32 s53, s53, 0
    s_mov_b32 s56, s28
    s_mov_b32 s57, s29
    s_lshl_b32 {sT0}, {sBR}, 10
    s_lshl_b32 {sT1}, {sHKV}, 7
    s_add_u32 {sT0}, {sT0}, {sT1}
    s_sub_u32 s62, 65536, {sT0}
    s_lshl_b32 {sT1}, {sB}, 16
    s_add_u32 {sT0}, {sT0}, {sT1}
    s_add_u32 s60, s24, {sT0}
    s_addc_u32 s61, s25, 0
    s_mov_b32 s64, s26
    s_mov_b32 s65, s27
    s_cmp_ge_u32 {sWAVE}, 4
    s_cbranch_scc1 L_helper
    ''')

    vWQ = ['v5', 'v6', 'v7', 'v8']
    a(f'''
    v_lshlrev_b32 v9, 2, v1
    v_xor_b32 v9, v9, v2
    v_lshlrev_b32 v9, 4, v9
    v_lshl_add_u32 v9, v1, 13, v9
    s_lshl_b32 {sT0}, {sWAVE}, 8
    v_add_u32 v5, {sT0}, v9
    v_add_u32 v6, {31744}, v5
    v_add_u32 v7, {2*31744}, v5
    v_add_u32 v8, {3*31744}, v5
    s_add_u32 {sBASE}, {sWAVE}, 6
    s_lshl_b32 {sBASE}, {sBASE}, 14
    ''')
    def wq_issue(i):
        a(f's_add_u32 {sT0}, {sROT}, {i}')
        a(f's_and_b32 {sT0}, {sT0}, 31')
        a(f's_add_u32 m0, {sBASE}, {(i % 4) * 4096}')
        a(f's_lshl_b32 {sT0}, {sT0}, 17')
        for j in range(4):
            a(f'buffer_load_dwordx4 {vWQ[j]}, {WQ_}, {sT0} offen offset:{1024*j}{cfg.wq_pol} lds')
    for i in range(4):
        wq_issue(i)
    a(f'''
    s_cmp_eq_u32 {sWAVE}, 0
    s_cbranch_scc0 L_noclear
    s_lshl_b32 {sT0}, {sG}, 3
    s_add_u32 {sT0}, {sT0}, {sHKV}
    s_lshl_b32 {sT0}, {sT0}, 7
    s_add_u32 {sT0}, {sT0}, {FLAG_OFF}
    v_mov_b32 v10, 0
    v_lshlrev_b32 v11, 2, v0
    s_mov_b64 exec, 0xff
    buffer_store_dword v10, v11, {WS_}, {sT0} offen sc1
    s_mov_b64 exec, -1
    L_noclear:
    ''')
    a(f'''
    v_bfe_u32 v13, v0, 2, 2          ; r
    v_and_b32 v14, 1, v0
    v_bfe_u32 v15, v0, 1, 1
    v_lshlrev_b32 v14, 4, v14
    v_lshl_add_u32 v14, v15, 3, v14  ; pi*8
    v_and_b32 v15, 1, v1             ; g
    v_lshl_add_u32 v14, v15, 5, v14  ; g*32 + pi*8
    v_lshlrev_b32 v12, 11, v3        ; 8*h2*256
    v_mul_u32_u24 v15, 320, v13      ; r*256 + r*64
    v_add3_u32 v12, v12, v15, v14    ; vT0
    v_add_u32 v16, {sBASE}, v12
    v_xor_b32 v17, 64, v16
    v_xor_b32 v18, 128, v16
    v_xor_b32 v19, 192, v16
    v_and_b32 v20, 31, v0            ; q
    v_xor_b32 v21, v3, v2            ; h2 ^ (q&15)
    v_lshlrev_b32 v21, 4, v21
    v_lshl_add_u32 v21, v20, 10, v21
    v_add_u32 v21, {4*SLOT}, v21     ; vX0
    ''')
    vTQ = ['v16', 'v17', 'v18', 'v19']
    XF = lambda i: 128 + 4 * i
    QA = lambda blk: 64 + 16 * blk
    BUF = lambda i, blk: 32 + 16 * (i & 1) + 4 * blk
    for m in range(1, 8):
        a(f'v_xor_b32 v{21+m}, {32*m}, v21')
    a('s_barrier   ; Bx')
    stamp(1)
    for i in range(32):
        a(f'ds_read_b128 v[{XF(i)}:{XF(i)+3}], v{21 + (i & 7)} offset:{256*(i >> 3)}')
        if i == 14: a('s_waitcnt lgkmcnt(7)')
        if i == 22: a('s_waitcnt lgkmcnt(7)')
        if i == 30: a('s_waitcnt lgkmcnt(7)')
    a('s_waitcnt lgkmcnt(0)')
    a('s_barrier   ; Bx2')
    stamp(2)
    def q_mfma(i):
        for blk in range(4):
            c = '0' if i == 0 else f'v[{QA(blk)}:{QA(blk)+15}]'
            a(f'v_mfma_f32_32x32x16_bf16 v[{QA(blk)}:{QA(blk)+15}], v[{BUF(i,blk)}:{BUF(i,blk)+3}], v[{XF(i)}:{XF(i)+3}], {c}')
    OA = lambda blk: 128 + 16 * blk
    for i in range(32):
        younger = min(31, i + 3) - i
        a(f's_waitcnt vmcnt({4*younger})')
        if i == 0: stamp(3)
        for blk in range(4):
            for u in range(2):
                r = BUF(i, blk) + 2 * u
                a(f'ds_read_b64_tr_b16 v[{r}:{r+1}], {vTQ[blk]} offset:{(i % 4)*4096 + 1024*u}')
        if i > 0:
            q_mfma(i - 1)
        if 18 <= i < 26:
            for z in range(8):
                a(f'v_mov_b32 v{128 + 8*(i-18) + z}, 0')
        a('s_waitcnt lgkmcnt(0)')
        if i + 4 < 32:
            wq_issue(i + 4)
    q_mfma(31)
    stamp(4)
    a(f'''
    s_mov_b32 {sCHK}, 99
    s_lshl_b32 {sT0}, {sG}, 3
    v_mov_b32 v30, {sT0}
    s_cmp_eq_u32 {sWAVE}, 0
    s_cbranch_scc0 L_noann
    v_mov_b32 v10, 1
    s_add_u32 {sCHK}, {sHKV}, 6
    s_mov_b64 exec, 1
    buffer_atomic_add v10, v30, {DBG_}, 0 offen sc1
    s_mov_b64 exec, -1
    L_noann:
    ''')
    vK0, vV0, vM, vTH, vL0, vL1 = 'v5', 'v6', 'v7', 'v8', 'v9', 'v11'
    vKL = 'v29'
    a(f'''
    v_bfe_u32 v16, v0, 2, 1
    v_bfe_u32 v17, v0, 3, 1
    v_and_b32 v18, 0x13, v0
    v_lshl_add_u32 v18, v16, 3, v18
    v_lshl_add_u32 v18, v17, 2, v18
    v_and_b32 v19, 15, v18
    v_xor_b32 v19, v19, v3
    v_lshlrev_b32 v19, 4, v19
    v_lshl_add_u32 {vKL}, v18, 8, v19
    v_mov_b32 {vM}, {hex(f32(-1e30))}
    v_mov_b32 {vTH}, {hex(f32(-1e30))}
    v_mov_b32 {vL0}, 0
    v_mov_b32 {vL1}, 0
    s_mov_b32 {sC}, {hex(f32(1.4426950408889634 / 128 ** 0.5))}
    s_mov_b32 {sCNT}, 0
    s_mov_b32 {sBASE}, 0
    s_mov_b32 {sLIM}, {10*SLOT}
    ''')
    QF = lambda ks: 32 + 4 * ks
    for ks in range(8):
        src = QA(ks >> 1) + 8 * (ks & 1)
        for d in range(4):
            a(f'v_cvt_pk_bf16_f32 v{QF(ks)+d}, v{src+2*d}, v{src+2*d+1}')
    S = lambda kb: 64 + 16 * kb
    P = lambda kk: 96 + 4 * kk
    KF = lambda ks: 192 + 4 * ks
    VF = lambda kk, blk: 224 + 16 * (kk & 1) + 4 * blk
    vKA = ['v%d' % (16 + i) for i in range(8)]
    vVA = ['v24', 'v25', 'v26', 'v27']
    a('L_loop:')
    a(f'v_add_u32 {vKA[0]}, {sBASE}, {vKL}')
    a(f's_add_u32 {sT0}, {sBASE}, {SLOT}')
    a(f'v_add_u32 {vVA[0]}, {sT0}, v12')
    for ks in range(1, 8):
        a(f'v_xor_b32 {vKA[ks]}, {32*ks}, {vKA[0]}')
    for blk in range(1, 4):
        a(f'v_xor_b32 {vVA[blk]}, {64*blk}, {vVA[0]}')
    a('s_barrier   ; b_K')
    stamp(8, sCNT)
    for ks in range(8):
        a(f'ds_read_b128 v[{KF(ks)}:{KF(ks)+3}], {vKA[ks]}')
    a(f'''
    s_cmp_eq_u32 {sCNT}, {sCHK}
    s_cbranch_scc0 L_nochk
    buffer_load_dword v10, v30, {DBG_}, 0 offen sc1
    L_nochk:
    ''')
    for ks in range(8):
        a(f's_waitcnt lgkmcnt(7)')
        c = '0' if ks == 0 else f'v[{S(0)}:{S(0)+15}]'
        a(f'v_mfma_f32_32x32x16_bf16 v[{S(0)}:{S(0)+15}], v[{KF(ks)}:{KF(ks)+3}], v[{QF(ks)}:{QF(ks)+3}], {c}')
        a(f'ds_read_b128 v[{KF(ks)}:{KF(ks)+3}], {vKA[ks]} offset:8192')
    mx = []
    mx.append(f'v_max3_f32 v14, v{S(0)}, v{S(0)+1}, v{S(0)+2}')
    for z in range(6):
        mx.append(f'v_max3_f32 v14, v14, v{S(0)+3+2*z}, v{S(0)+4+2*z}')
    for ks in range(8):
        a(f's_waitcnt lgkmcnt({7-ks})')
        c = '0' if ks == 0 else f'v[{S(1)}:{S(1)+15}]'
        a(f'v_mfma_f32_32x32x16_bf16 v[{S(1)}:{S(1)+15}], v[{KF(ks)}:{KF(ks)+3}], v[{QF(ks)}:{QF(ks)+3}], {c}')
        if ks == 5:
            a(mx.pop(0)); a(mx.pop(0)); a(mx.pop(0))
        if ks == 6:
            a(mx.pop(0)); a(mx.pop(0)); a(mx.pop(0))
    a(mx.pop(0))
    a(f'v_max_f32 v14, v14, v{S(0)+15}')
    a('s_nop 9')
    a(f'v_max3_f32 v15, v{S(1)}, v{S(1)+1}, v{S(1)+2}')
    a(f'v_max3_f32 v14, v14, v{S(1)+3}, v{S(1)+4}')
    for z in range(1, 6):
        t = 'v15' if z % 2 else 'v14'
        a(f'v_max3_f32 {t}, {t}, v{S(1)+3+2*z}, v{S(1)+4+2*z}')
    a(f'v_max3_f32 v14, v14, v15, v{S(1)+15}')
    a(f'''
    v_mul_f32 v14, {sC}, v14
    v_cmp_gt_f32 vcc, v14, {vTH}
    s_cbranch_vccnz L_slow
    L_back:
    ''')
    for kk in range(4):
        base = S(kk >> 1) + 8 * (kk & 1)
        for e in range(8):
            a(f'v_fma_f32 v{base+e}, v{base+e}, {sC}, -{vM}')
        for e in range(8):
            a(f'v_exp_f32 v{base+e}, v{base+e}')
        for e in range(0, 8, 2):
            a(f'v_add_f32 {vL0}, {vL0}, v{base+e}')
            a(f'v_add_f32 {vL1}, {vL1}, v{base+e+1}')
            a(f'v_cvt_pk_bf16_f32 v{P(kk)+e//2}, v{base+e}, v{base+e+1}')
    a('s_barrier   ; b_V')
    stamp(24, sCNT)
    def v_reads(kk):
        for blk in range(4):
            for u in range(2):
                r = VF(kk, blk) + 2 * u
                a(f'ds_read_b64_tr_b16 v[{r}:{r+1}], {vVA[blk]} offset:{kk*4096 + 1024*u}')
    v_reads(0)
    for kk in range(4):
        for blk in range(4):
            if kk < 3:
                for u in range(2):
                    r = VF(kk + 1, blk) + 2 * u
                    a(f'ds_read_b64_tr_b16 v[{r}:{r+1}], {vVA[blk]} offset:{(kk+1)*4096 + 1024*u}')
                a('s_waitcnt lgkmcnt(8)')
            else:
                a(f's_waitcnt lgkmcnt({6 - 2*blk})')
            a(f'v_mfma_f32_32x32x16_bf16 v[{OA(blk)}:{OA(blk)+15}], v[{VF(kk,blk)}:{VF(kk,blk)+3}], v[{P(kk)}:{P(kk)+3}], v[{OA(blk)}:{OA(blk)+15}]')
    a(f'''
    s_add_u32 {sBASE}, {sBASE}, {2*SLOT}
    s_cmp_eq_u32 {sBASE}, {sLIM}
    s_cselect_b32 {sBASE}, 0, {sBASE}
    s_cselect_b32 {sLIM}, {6*SLOT}, {sLIM}
    s_add_u32 {sCNT}, {sCNT}, 1
    s_cmp_lt_u32 {sCNT}, 16
    s_cbranch_scc1 L_loop
    ''')
    stamp(5)
    a(f'''
    v_add_f32 {vL0}, {vL0}, {vL1}
    v_mov_b32 v15, {vL0}
    s_nop 1
    v_permlane32_swap_b32 {vL0}, v15
    v_add_f32 {vL0}, {vL0}, v15
    v_rcp_f32 {vL0}, {vL0}
    s_lshl_b32 {sT1}, {sWAVE}, 3
    s_sub_u32 {sT1}, {sT1}, {sROT}
    s_nop 3
    ''')
    OBASE = 1 * SLOT
    for f in range(8):
        src = OA(f >> 1) + 8 * (f & 1)
        dst = 64 + 4 * f
        a(f's_add_u32 {sT0}, {sT1}, {f}')
        a(f's_and_b32 {sT0}, {sT0}, 31')
        a(f's_lshl_b32 {sT0}, {sT0}, 10')
        for e in range(8):
            a(f'v_mul_f32 v{src+e}, v{src+e}, {vL0}')
        a(f'v_add_u32 v{16+f}, {sT0}, v4')
        for d in range(4):
            a(f'v_cvt_pk_bf16_f32 v{dst+d}, v{src+2*d}, v{src+2*d+1}')
        a(f'ds_write_b128 v{16+f}, v[{dst}:{dst+3}] offset:{OBASE}')
    a(f'''
    s_cmp_eq_u32 {sWAVE}, 0
    s_cbranch_scc0 L_join
    s_mov_b32 {sSPIN}, 0
    L_chk:
    s_waitcnt vmcnt(0)
    v_cmp_gt_u32 vcc, 8, v10
    s_cbranch_vccz L_join
    s_add_u32 {sSPIN}, {sSPIN}, 1
    s_cmp_gt_u32 {sSPIN}, 0x40000
    s_cbranch_scc1 L_join
    s_sleep 4
    buffer_load_dword v10, v30, {DBG_}, 0 offen sc1
    s_branch L_chk
    ''')
    a(f'''
    L_slow:
    v_mov_b32 v15, v14
    s_nop 1
    v_permlane32_swap_b32 v14, v15
    v_max3_f32 v14, v14, v15, {vM}
    v_sub_f32 v15, {vM}, v14
    v_exp_f32 v15, v15
    v_mov_b32 {vM}, v14
    v_add_f32 {vTH}, {hex(f32(cfg.T))}, v14
    v_mul_f32 {vL0}, {vL0}, v15
    v_mul_f32 {vL1}, {vL1}, v15
    ''')
    for r in range(64):
        a(f'v_mul_f32 v{128+r}, v{128+r}, v15')
    a('s_branch L_back')

    a('L_helper:')
    vKD = ['v5', 'v6', 'v7', 'v8']; vVD = 'v9'
    a(f'''
    s_sub_u32 {sHW}, {sWAVE}, 4
    s_lshl_b32 {sT1}, {sROT}, 1
    s_lshl_b32 {sT2}, {sHW}, 3
    ''')
    for jq in range(8):
        a(f'''
        s_add_u32 {sT0}, {sT2}, {jq}
        s_and_b32 {sCNT}, {sT0}, 15
        v_xor_b32 v{16+jq}, {sCNT}, v0
        v_add_u32 v{16+jq}, {sT1}, v{16+jq}
        s_lshl_b32 {sT0}, {sT0}, 10
        v_and_b32 v{16+jq}, 63, v{16+jq}
        s_add_u32 m0, {sT0}, {4*SLOT}
        v_lshlrev_b32 v{16+jq}, 4, v{16+jq}
        buffer_load_dwordx4 v{16+jq}, {X_}, {sT0} offen{cfg.x_pol} lds
        ''')
    a(f'''
    v_xor_b32 v10, v2, v1
    v_lshlrev_b32 v10, 4, v10
    v_lshl_add_u32 v5, v1, 8, v10
    v_xor_b32 v6, 64, v5
    v_xor_b32 v7, 128, v5
    v_xor_b32 v8, 192, v5
    v_lshlrev_b32 v10, 2, v1
    v_xor_b32 v10, v10, v2
    v_lshlrev_b32 v10, 4, v10
    v_lshl_add_u32 v9, v1, 8, v10
    s_lshl_b32 {sBASE}, {sHW}, 12
    ''')
    issued = []
    def kv_issue(j):
        a(f's_add_u32 m0, {sBASE}, {slot_of(j)*SLOT}')
        a(f's_add_u32 {sT0}, {sBASE}, {(j//2)*SLOT}')
        for jj in range(4):
            if j % 2 == 0:
                a(f'buffer_load_dwordx4 {vKD[jj]}, {K_}, {sT0} offen offset:{1024*jj}{cfg.kv_pol} lds')
            else:
                a(f'buffer_load_dwordx4 {vVD}, {V_}, {sT0} offen offset:{1024*jj}{cfg.kv_pol} lds')
        issued.append(('kv', j))
    WSLOT = [6, 7, 8, 9, 4, 5, 0, 3]
    vWD = ['v28', 'v29']
    def wo_lane_regs():
        a(f'''
        v_lshrrev_b32 v28, 3, v0
        v_and_b32 v29, 7, v0
        v_bfe_u32 v27, v0, 4, 1
        v_lshlrev_b32 v27, 2, v27
        v_xor_b32 v29, v29, v27
        v_lshlrev_b32 v29, 4, v29
        v_lshl_add_u32 v28, v28, 10, v29
        v_add_u32 v29, 7168, v28
        ''')
    def w_issue_helper(i):
        a(f's_add_u32 {sT0}, {sROT}, {i}')
        a(f's_and_b32 {sT0}, {sT0}, 31')
        a(f's_lshl_b32 {sT0}, {sT0}, 14')
        a(f's_lshl_b32 {sT1}, {sHW}, 8')
        a(f's_add_u32 {sT0}, {sT0}, {sT1}')
        for ww in range(2):
            a(f's_add_u32 m0, {sBASE}, {WSLOT[i]*SLOT + ww*2048}')
            if ww: a(f's_add_u32 {sT0}, {sT0}, 128')
            else: a('s_nop 0')
            for hf in range(2):
                a(f'buffer_load_dwordx4 {vWD[hf]}, {WO_}, {sT0} offen offset:{1024*hf}{cfg.wo_pol} lds')
        issued.append(('w', i))
    def wait_for(item):
        k = issued.index(item)
        a(f's_waitcnt vmcnt({4*(len(issued)-1-k)})')
    for j in range(cfg.head_fly):
        kv_issue(j)
    wo_lane_regs()
    a(f's_waitcnt vmcnt({4*cfg.head_fly})')
    a('s_barrier   ; Bx')
    stamp(1)
    a('s_barrier   ; Bx2')
    for j in range(cfg.head_fly, 6):
        wait_for(('kv', j - cfg.head_fly))
        kv_issue(j)
    stamp(2)
    nxt = 6
    for i in range(32):
        wait_for(('kv', i))
        a(f's_barrier   ; b_{i}')
        if cfg.stamps: stamp(8 + i)
        while nxt < 32:
            j = nxt
            free_at = 0 if j < 10 else (j - 9 if j < 16 else j - 5)
            if free_at > i or (i == 0 and j > 8): break
            kv_issue(j); nxt += 1
        for wi, at in enumerate(tuple(cfg.w_at) + (27, 28, 29)):
            if at == i: w_issue_helper(wi)
    a('s_waitcnt vmcnt(0)')

    a('L_join:')
    a('s_waitcnt lgkmcnt(0)')
    a('s_barrier   ; Bo')
    stamp(6)
    wo_lane_regs()
    a(f'''
    s_lshl_b32 {sBASE}, {sWAVE}, 11
    s_lshl_b32 {sLIM}, {sWAVE}, 7
    ''')
    def w_issue_own(i):
        a(f's_add_u32 {sT0}, {sROT}, {i}')
        a(f's_and_b32 {sT0}, {sT0}, 31')
        a(f's_lshl_b32 {sT0}, {sT0}, 14')
        a(f's_add_u32 m0, {sBASE}, {WSLOT[i % 8]*SLOT}')
        a(f's_add_u32 {sT0}, {sT0}, {sLIM}')
        for hf in range(2):
            a(f'buffer_load_dwordx4 {vWD[hf]}, {WO_}, {sT0} offen offset:{1024*hf}{cfg.wo_pol} lds')
    w_issue_own(7)
    a(f'''
    v_bfe_u32 v13, v0, 2, 2          ; r
    v_and_b32 v14, 1, v0
    v_bfe_u32 v15, v0, 1, 1
    v_lshlrev_b32 v14, 4, v14
    v_lshl_add_u32 v14, v15, 3, v14  ; pi*8
    v_and_b32 v15, 1, v1             ; g
    v_lshl_add_u32 v14, v15, 5, v14
    v_lshl_add_u32 v14, v3, 10, v14
    v_lshl_add_u32 v14, v13, 7, v14
    v_bfe_u32 v15, v0, 3, 1          ; r>>1
    v_lshl_add_u32 v14, v15, 6, v14
    v_add_u32 v16, {sBASE}, v14
    v_xor_b32 v17, 64, v16
    v_add_u32 v18, {4*SLOT}, v16
    v_add_u32 v19, {4*SLOT}, v17
    v_add_u32 v20, {8*SLOT}, v16
    v_add_u32 v21, {8*SLOT}, v17
    ''')
    AF = lambda i, nb: 32 + 8 * (i & 1) + 4 * nb
    BF = lambda i: 48 + 4 * (i & 1)
    PA = lambda nb: 64 + 16 * nb
    def o_mfma(i):
        for nb in range(2):
            c = '0' if i == 0 else f'v[{PA(nb)}:{PA(nb)+15}]'
            a(f'v_mfma_f32_32x32x16_bf16 v[{PA(nb)}:{PA(nb)+15}], v[{AF(i,nb)}:{AF(i,nb)+3}], v[{BF(i)}:{BF(i)+3}], {c}')
    for i in range(32):
        if i >= 7:
            a(f's_waitcnt vmcnt({2*(min(31, i+7) - i)})')
        sl = WSLOT[i % 8]
        a(f'ds_read_b128 v[{BF(i)}:{BF(i)+3}], v4 offset:{OBASE + 1024*i}')
        for nb in range(2):
            for u in range(2):
                r = AF(i, nb) + 2 * u
                a(f'ds_read_b64_tr_b16 v[{r}:{r+1}], v{16 + 2*(sl//4) + nb} offset:{(sl % 4)*SLOT + 512*u}')
        if i > 0: o_mfma(i - 1)
        a('s_waitcnt lgkmcnt(0)')
        if i + 8 < 32: w_issue_own(i + 8)
    o_mfma(31)
    stamp(7)
    a(f'''
    s_lshl_b32 {sT0}, {sG}, 3
    s_add_u32 {sT1}, {sT0}, {sWAVE}
    s_lshl_b32 {sT2}, {sT1}, 3
    s_add_u32 {sT2}, {sT2}, {sHKV}
    s_lshl_b32 {sT2}, {sT2}, 13
    s_add_u32 {sCNT}, {sT2}, 4096
    s_lshl_b32 {sT1}, {sT1}, 7
    s_add_u32 {sT1}, {sT1}, {FLAG_OFF}
    s_lshl_b32 {sC}, {sHKV}, 2
    s_add_u32 {sT1}, {sT1}, {sC}
    s_add_u32 {sT0}, {sT0}, {sHKV}        ; g*8 + own
    v_mov_b32 v10, 1
    v_mov_b32 v11, 0
    v_lshlrev_b32 v12, 2, v0
    ''')
    for pc in range(8):
        so = sT2 if pc < 4 else sCNT
        a(f'buffer_store_dwordx4 v[{64+4*pc}:{67+4*pc}], v4, {WS_}, {so} offen offset:{1024*(pc % 4)} sc1')
    a(f'''
    s_lshl_b32 {sCHK}, {sT0}, 7
    s_add_u32 {sCHK}, {sCHK}, {FLAG_OFF}
    s_lshl_b32 {sT0}, {sT0}, 16
    s_lshl_b32 {sC}, {sWAVE}, 10
    s_add_u32 {sT0}, {sT0}, {sC}
    s_waitcnt vmcnt(0)
    s_mov_b64 exec, 1
    buffer_store_dword v10, v11, {WS_}, {sT1} offen sc1
    s_mov_b64 exec, 0xff
    s_mov_b32 {sSPIN}, 0
    ''')
    stamp(56)
    a(f'''
    L_poll:
    buffer_load_dword v13, v12, {WS_}, {sCHK} offen sc1
    s_add_u32 {sSPIN}, {sSPIN}, 1
    s_cmp_gt_u32 {sSPIN}, 0x40000
    s_cbranch_scc1 L_polled
    s_waitcnt vmcnt(0)
    v_cmp_ne_u32 vcc, 1, v13
    s_cbranch_vccnz L_poll
    L_polled:
    s_mov_b64 exec, -1
    ''')
    stamp(57)
    for p in range(8):
        a(f'buffer_load_dwordx4 v[{96+4*p}:{99+4*p}], v4, {WS_}, {sT0} offen sc1')
        if p < 7: a(f's_add_u32 {sT0}, {sT0}, 8192')
    a(f'''
    v_and_b32 v20, 31, v0
    v_lshlrev_b32 v20, 11, v20
    v_lshl_add_u32 v20, v3, 4, v20
    s_lshr_b32 {sT1}, {sWAVE}, 1
    s_lshl_b32 {sT1}, {sT1}, 5
    s_and_b32 {sT2}, {sWAVE}, 1
    s_lshl_b32 {sT2}, {sT2}, 3
    s_add_u32 {sT1}, {sT1}, {sT2}
    ''')
    for p in range(1, 8):
        a(f's_waitcnt vmcnt({7-p})')
        for d in range(4):
            a(f'v_add_f32 v{96+d}, v{96+d}, v{96+4*p+d}')
    a(f'''
    v_cvt_pk_bf16_f32 v96, v96, v97
    v_cvt_pk_bf16_f32 v97, v98, v99
    buffer_store_dwordx2 v[96:97], v20, {OUT_}, {sT1} offen
    ''')
    if cfg.stamps:
        stamp(58)
        a('s_waitcnt vmcnt(0)')
        stamp(59)
        a(f'''
        s_add_u32 s28, s28, {STAMP_OFF}
        s_addc_u32 s29, s29, 0
        s_lshl_b32 {sT0}, s2, 3
        s_add_u32 {sT0}, {sT0}, {sWAVE}
        s_lshl_b32 {sT0}, {sT0}, 8
        v_lshl_add_u32 v13, v0, 2, {sT0}
        global_store_dword v13, {vSTAMP}, s[28:29]
        ''')
    a('L_end:')
    a('s_endpgm')
    return header([f'; @launch grid=(256,1,1) block=(512,1,1) lds={10*SLOT}']) + kernel_open(kn) + a.text() + descriptor(kn, 256, 102)

if __name__ == '__main__':
    out = sys.argv[1]
    cfg = Cfg()
    for kv in sys.argv[2:]:
        k, v = kv.split('=', 1)
        setattr(cfg, k, eval(v))
    t = gen(cfg)
    n = hazard.check(t)
    open(out, 'w').write(t)
    print(out, 'hazards:', n, 'lines:', t.count('\n'))
```

```python
import sys, struct
from asmlib import *
import hazard

def f32(x):
    return struct.unpack('<I', struct.pack('<f', x))[0]

SLOT = 16384
FLAG_OFF = 16 * 1024 * 1024
STAMP_OFF = 128 * 1024 * 1024

def slot_of(j):
    return j if j < 10 else (j - 10) % 6

class Cfg:
    stamps = False
    wq_pol = ' nt'
    wo_pol = ''
    x_pol = ' nt'
    kv_pol = ' nt'
    w_at = (13, 15, 17, 19)
    head_pre = 1
    head_fly = 3
    warm = True
    newmap = True
    head_only = False
    nokv = False
    wq_first = 2
    rot = True
    stagger = 1
    g2_fly = 4
    T = 8.0

def gen(cfg):
    a = Asm()
    kn = NAME + '_kernel'
    sWAVE, sHKV, sBR, sB, sG, sROT = 's30', 's31', 's32', 's33', 's34', 's35'
    K_, V_, X_, WQ_, WO_, WS_, OUT_, DBG_ = ['s[%d:%d]' % (36 + 4 * i, 39 + 4 * i) for i in range(8)]
    sT0, sT1, sT2, sCNT, sBASE, sLIM, sC, sCHK, sHW = 's68', 's69', 's70', 's71', 's72', 's73', 's74', 's75', 's76'
    sSPIN = 's77'
    sGRP = 's79'
    vSTAMP = 'v31'
    nst = [0]
    def stamp(i, dyn=None):
        if not cfg.stamps: return
        a('s_memrealtime s[100:101]')
        a('s_waitcnt lgkmcnt(0)')
        if dyn is None:
            a(f'v_writelane_b32 {vSTAMP}, s100, {i}')
        else:
            a(f's_add_u32 m0, {dyn}, {i}')
            a(f'v_writelane_b32 {vSTAMP}, s100, m0')

    if cfg.newmap:
        MAP = f'''s_and_b32 {sHKV}, s2, 3
        s_lshl_b32 {sHKV}, {sHKV}, 1
        s_bfe_u32 {sBR}, s2, 0x10003
        s_add_u32 {sHKV}, {sHKV}, {sBR}
        s_bfe_u32 {sBR}, s2, 0x10002'''
    else:
        MAP = f'''s_and_b32 {sHKV}, s2, 7
        s_bfe_u32 {sBR}, s2, 0x10003'''
    a(f'''
    L_start:
    s_cmp_ge_u32 s2, 256
    s_cbranch_scc1 L_end
    s_load_dwordx16 s[4:19], s[0:1], 0
    s_load_dwordx8 s[20:27], s[0:1], 64
    s_load_dwordx2 s[28:29], s[0:1], 96
    v_lshrrev_b32 v1, 6, v0
    v_and_b32 v0, 63, v0
    v_readfirstlane_b32 {sWAVE}, v1
    {MAP}
    s_lshr_b32 {sB}, s2, 4
    s_lshl_b32 {sG}, {sBR}, 4
    s_add_u32 {sG}, {sG}, {sB}
    s_lshl_b32 {sROT}, {sB}, {1 if cfg.rot else 5}
    ''')
    a({0: f's_mov_b32 {sGRP}, 0', 1: f's_and_b32 {sGRP}, {sHKV}, 1', 2: f's_mov_b32 {sGRP}, 1'}[cfg.stagger])
    if cfg.stamps:
        a(f'v_mov_b32 {vSTAMP}, 0')
    a(f'''
    v_lshrrev_b32 v1, 4, v0
    v_and_b32 v2, 15, v0
    v_lshrrev_b32 v3, 5, v0
    v_lshlrev_b32 v4, 4, v0
    s_lshl_b32 {sT0}, {sB}, 3
    s_add_u32 {sT0}, {sT0}, {sHKV}
    s_lshl_b32 {sT0}, {sT0}, 18
    s_lshl_b32 {sT1}, {sB}, 15
    s_lshl_b32 {sT2}, {sHKV}, 10
    s_mov_b32 s38, 262144
    s_mov_b32 s39, 0x20000
    s_mov_b32 s42, 262144
    s_mov_b32 s43, 0x20000
    s_mov_b32 s46, 32768
    s_mov_b32 s47, 0x20000
    s_sub_u32 s50, 0x400000, {sT2}
    s_mov_b32 s51, 0x20000
    s_mov_b32 s54, 524288
    s_mov_b32 s55, 0x20000
    s_mov_b32 s58, {FLAG_OFF + 32768}
    s_mov_b32 s59, 0x20000
    s_mov_b32 s63, 0x20000
    s_mov_b32 s66, 256
    s_mov_b32 s67, 0x20000
    s_waitcnt lgkmcnt(0)
    ''')
    stamp(0)
    if cfg.stamps:
        a('s_memtime s[100:101]')
        a('s_waitcnt lgkmcnt(0)')
        a(f'v_writelane_b32 {vSTAMP}, s100, 60')
    a(f'''
    s_cmp_eq_u32 {sBR}, 0
    s_cselect_b32 s36, s6, s16
    s_cselect_b32 s37, s7, s17
    s_cselect_b32 s40, s8, s18
    s_cselect_b32 s41, s9, s19
    s_cselect_b32 s44, s4, s14
    s_cselect_b32 s45, s5, s15
    s_cselect_b32 s48, s10, s20
    s_cselect_b32 s49, s11, s21
    s_cselect_b32 s52, s12, s22
    s_cselect_b32 s53, s13, s23
    s_add_u32 s36, s36, {sT0}
    s_addc_u32 s37, s37, 0
    s_add_u32 s40, s40, {sT0}
    s_addc_u32 s41, s41, 0
    s_add_u32 s44, s44, {sT1}
    s_addc_u32 s45, s45, 0
    s_add_u32 s48, s48, {sT2}
    s_addc_u32 s49, s49, 0
    s_lshl_b32 {sT0}, {sHKV}, 19
    s_add_u32 s52, s52, {sT0}
    s_addc_u32 s53, s53, 0
    s_mov_b32 s56, s28
    s_mov_b32 s57, s29
    s_lshl_b32 {sT0}, {sBR}, 10
    s_lshl_b32 {sT1}, {sHKV}, 7
    s_add_u32 {sT0}, {sT0}, {sT1}
    s_sub_u32 s62, 65536, {sT0}
    s_lshl_b32 {sT1}, {sB}, 16
    s_add_u32 {sT0}, {sT0}, {sT1}
    s_add_u32 s60, s24, {sT0}
    s_addc_u32 s61, s25, 0
    s_mov_b32 s64, s26
    s_mov_b32 s65, s27
    s_cmp_ge_u32 {sWAVE}, 4
    s_cbranch_scc1 L_helper
    ''')

    vWQ = ['v5', 'v6', 'v7', 'v8']
    a(f'''
    v_lshlrev_b32 v9, 2, v1
    v_xor_b32 v9, v9, v2
    v_lshlrev_b32 v9, 4, v9
    v_lshl_add_u32 v9, v1, 13, v9
    s_lshl_b32 {sT0}, {sWAVE}, 8
    v_add_u32 v5, {sT0}, v9
    v_add_u32 v6, {31744}, v5
    v_add_u32 v7, {2*31744}, v5
    v_add_u32 v8, {3*31744}, v5
    s_add_u32 {sBASE}, {sWAVE}, 6
    s_lshl_b32 {sBASE}, {sBASE}, 14
    ''')
    def wq_pre(i):
        return [f's_add_u32 {sT0}, {sROT}, {i}', f's_and_b32 {sT0}, {sT0}, 31',
                f's_add_u32 m0, {sBASE}, {(i % 4) * 4096}', f's_lshl_b32 {sT0}, {sT0}, 17']
    def wq_dma(j):
        return f'buffer_load_dwordx4 {vWQ[j]}, {WQ_}, {sT0} offen offset:{1024*j}{cfg.wq_pol} lds'
    def wq_issue(i):
        for x in wq_pre(i): a(x)
        for j in range(4): a(wq_dma(j))
    a(f'''
    s_cmp_eq_u32 {sGRP}, 0
    s_cbranch_scc0 L_nowq0
    ''')
    for i in range(cfg.wq_first):
        wq_issue(i)
    a('L_nowq0:')
    a(f'''
    s_cmp_eq_u32 {sWAVE}, 0
    s_cbranch_scc0 L_noclear
    s_lshl_b32 {sT0}, {sG}, 3
    s_add_u32 {sT0}, {sT0}, {sHKV}
    s_lshl_b32 {sT0}, {sT0}, 7
    s_add_u32 {sT0}, {sT0}, {FLAG_OFF}
    v_mov_b32 v10, 0
    v_lshlrev_b32 v11, 2, v0
    s_mov_b64 exec, 0xff
    buffer_store_dword v10, v11, {WS_}, {sT0} offen sc1
    s_mov_b64 exec, -1
    L_noclear:
    ''')
    a(f'''
    v_bfe_u32 v13, v0, 2, 2          ; r
    v_and_b32 v14, 1, v0
    v_bfe_u32 v15, v0, 1, 1
    v_lshlrev_b32 v14, 4, v14
    v_lshl_add_u32 v14, v15, 3, v14  ; pi*8
    v_and_b32 v15, 1, v1             ; g
    v_lshl_add_u32 v14, v15, 5, v14  ; g*32 + pi*8
    v_lshlrev_b32 v12, 11, v3        ; 8*h2*256
    v_mul_u32_u24 v15, 320, v13      ; r*256 + r*64
    v_add3_u32 v12, v12, v15, v14    ; vT0
    v_add_u32 v16, {sBASE}, v12
    v_xor_b32 v17, 64, v16
    v_xor_b32 v18, 128, v16
    v_xor_b32 v19, 192, v16
    v_and_b32 v20, 31, v0            ; q
    v_xor_b32 v21, v3, v2            ; h2 ^ (q&15)
    v_lshlrev_b32 v21, 4, v21
    v_lshl_add_u32 v21, v20, 10, v21
    v_add_u32 v21, {4*SLOT}, v21     ; vX0
    ''')
    vTQ = ['v16', 'v17', 'v18', 'v19']
    XF = lambda i: 128 + 4 * i
    QA = lambda blk: 64 + 16 * blk
    BUF = lambda i, blk: 32 + 16 * (i & 1) + 4 * blk
    for m in range(1, 8):
        a(f'v_xor_b32 v{21+m}, {32*m}, v21')
    a('s_barrier   ; Bx')
    stamp(1)
    for i in range(32):
        a(f'ds_read_b128 v[{XF(i)}:{XF(i)+3}], v{21 + (i & 7)} offset:{256*(i >> 3)}')
        if i == 14: a('s_waitcnt lgkmcnt(7)')
        if i == 22: a('s_waitcnt lgkmcnt(7)')
        if i == 30: a('s_waitcnt lgkmcnt(7)')
    a('s_waitcnt lgkmcnt(0)')
    a('s_barrier   ; Bx2')
    a('s_barrier   ; Bw')
    stamp(2)
    a(f"""
    s_cmp_eq_u32 {sGRP}, 0
    s_cbranch_scc1 L_wq1
    """)
    for i in range(cfg.wq_first):
        wq_issue(i)
    a('L_wq1:')
    for i in range(cfg.wq_first, 3):
        wq_issue(i)
    def q_mfma1(i, blk):
        c = '0' if i == 0 else f'v[{QA(blk)}:{QA(blk)+15}]'
        return f'v_mfma_f32_32x32x16_bf16 v[{QA(blk)}:{QA(blk)+15}], v[{BUF(i,blk)}:{BUF(i,blk)+3}], v[{XF(i)}:{XF(i)+3}], {c}'
    def q_mfma(i):
        for blk in range(4): a(q_mfma1(i, blk))
    OA = lambda blk: 128 + 16 * blk
    for i in range(32):
        younger = min(31, i + 2) - i
        a(f's_waitcnt vmcnt({4*younger})')
        if i == 0: stamp(3)
        if i in (4, 8, 16, 24): stamp(40 + i // 4)
        for blk in range(4):
            for u in range(2):
                r = BUF(i, blk) + 2 * u
                a(f'ds_read_b64_tr_b16 v[{r}:{r+1}], {vTQ[blk]} offset:{(i % 4)*4096 + 1024*u}')
        dma = i + 3 < 32
        if dma:
            for x in wq_pre(i + 3): a(x)
        for blk in range(4):
            if i > 0: a(q_mfma1(i - 1, blk))
            if dma: a(wq_dma(blk))
            if 18 <= i < 26:
                for z in range(2):
                    a(f'v_mov_b32 v{128 + 8*(i-18) + 2*blk + z}, 0')
        if i + 3 == 31: a('s_barrier   ; Bk')
        a('s_waitcnt lgkmcnt(0)')
    q_mfma(31)
    stamp(4)
    if cfg.head_only: a('s_branch L_fin')
    a(f'''
    s_mov_b32 {sCHK}, 99
    s_lshl_b32 {sT0}, {sG}, 3
    v_mov_b32 v30, {sT0}
    s_cmp_eq_u32 {sWAVE}, 0
    s_cbranch_scc0 L_noann
    v_mov_b32 v10, 1
    s_add_u32 {sCHK}, {sHKV}, 6
    s_mov_b64 exec, 1
    buffer_atomic_add v10, v30, {DBG_}, 0 offen sc1
    s_mov_b64 exec, -1
    L_noann:
    ''')
    vK0, vV0, vM, vTH, vL0, vL1 = 'v5', 'v6', 'v7', 'v8', 'v9', 'v11'
    vKL = 'v29'
    a(f'''
    v_bfe_u32 v16, v0, 2, 1
    v_bfe_u32 v17, v0, 3, 1
    v_and_b32 v18, 0x13, v0
    v_lshl_add_u32 v18, v16, 3, v18
    v_lshl_add_u32 v18, v17, 2, v18
    v_and_b32 v19, 15, v18
    v_xor_b32 v19, v19, v3
    v_lshlrev_b32 v19, 4, v19
    v_lshl_add_u32 {vKL}, v18, 8, v19
    v_mov_b32 {vL0}, 0
    v_mov_b32 {vL1}, 0
    s_mov_b32 {sC}, {hex(f32(1.4426950408889634 / 128 ** 0.5))}
    s_mov_b32 {sCNT}, 0
    s_mov_b32 {sBASE}, 0
    s_mov_b32 {sLIM}, {10*SLOT}
    ''')
    QF = lambda ks: 32 + 4 * ks
    for ks in range(8):
        src = QA(ks >> 1) + 8 * (ks & 1)
        for d in range(4):
            a(f'v_cvt_pk_bf16_f32 v{QF(ks)+d}, v{src+2*d}, v{src+2*d+1}')
    S = lambda kb: 64 + 16 * kb
    P = lambda kk: 96 + 4 * kk
    KF = lambda ks: 192 + 4 * ks
    VF = lambda kk, blk: 224 + 16 * (kk & 1) + 4 * blk
    vKA = ['v%d' % (16 + i) for i in range(8)]
    vVA = ['v24', 'v25', 'v26', 'v27']
    sVB = 's78'
    def qk(sb, ks):
        c = '0' if ks == 0 else f'v[{S(sb)}:{S(sb)+15}]'
        return f'v_mfma_f32_32x32x16_bf16 v[{S(sb)}:{S(sb)+15}], v[{KF(ks)}:{KF(ks)+3}], v[{QF(ks)}:{QF(ks)+3}], {c}'
    def pv(kk, blk, pk):
        return f'v_mfma_f32_32x32x16_bf16 v[{OA(blk)}:{OA(blk)+15}], v[{VF(kk,blk)}:{VF(kk,blk)+3}], v[{P(pk)}:{P(pk)+3}], v[{OA(blk)}:{OA(blk)+15}]'
    kread = lambda ks, kb: f'ds_read_b128 v[{KF(ks)}:{KF(ks)+3}], {vKA[ks]} offset:{8192*kb}'
    def vread(kkg, blk):
        return [f'ds_read_b64_tr_b16 v[{VF(kkg,blk)+2*u}:{VF(kkg,blk)+2*u+1}], {vVA[blk]} offset:{kkg*4096 + 1024*u}' for u in range(2)]
    fma = lambda r: f'v_fma_f32 v{r}, v{r}, {sC}, -{vM}'
    exp = lambda r: f'v_exp_f32 v{r}, v{r}'
    add = lambda r: f'v_add_f32 {vL0 if r % 2 == 0 else vL1}, {vL0 if r % 2 == 0 else vL1}, v{r}'
    cvt = lambda pk, d, r: f'v_cvt_pk_bf16_f32 v{P(pk)+d}, v{r}, v{r+1}'
    def maxchain(sb):
        b = S(sb)
        l = [f'v_max3_f32 v14, v{b}, v{b+1}, v{b+2}', f'v_max3_f32 v15, v{b+3}, v{b+4}, v{b+5}']
        for z in range(4):
            t = 'v14' if z % 2 == 0 else 'v15'
            l.append(f'v_max3_f32 {t}, {t}, v{b+6+2*z}, v{b+7+2*z}')
        l.append(f'v_max3_f32 v14, v14, v{b+14}, v{b+15}')
        l.append(f'v_max_f32 v14, v14, v15')
        return l
    k_addr = [f'v_add_u32 {vKA[0]}, {sBASE}, {vKL}'] + [f'v_xor_b32 {vKA[ks]}, {32*ks}, {vKA[0]}' for ks in range(1, 8)]
    v_addr = [f'v_add_u32 {vVA[0]}, {sVB}, v12'] + [f'v_xor_b32 {vVA[blk]}, {64*blk}, {vVA[0]}' for blk in range(1, 4)]
    def emit(l):
        for x in l:
            a(x)
    def check(tag):
        a(f'v_mul_f32 v14, {sC}, v14')
        a(f'v_cmp_gt_f32 vcc, v14, {vTH}')
        a(f's_cbranch_vccnz L_slow{tag}')
        a(f'L_back{tag}:')
    def phase1(cur, extra):
        nx = cur ^ 1; b = S(cur); k0 = 2 * cur; k1 = k0 + 1
        g = [vread(k0, 0) + [fma(b + e) for e in range(4)],
             vread(k0, 1) + [fma(b + e) for e in range(4, 8)],
             vread(k0, 2) + [exp(b), exp(b + 1), exp(b + 2)],
             vread(k0, 3) + [exp(b + 3), exp(b + 4), exp(b + 5)],
             vread(k1, 0) + [exp(b + 6), exp(b + 7), cvt(0, 0, b), cvt(0, 1, b + 2)],
             vread(k1, 1) + [cvt(0, 2, b + 4), cvt(0, 3, b + 6)] + [fma(b + 8 + e) for e in range(3)],
             vread(k1, 2) + [fma(b + 8 + e) for e in range(3, 8)],
             [add(b + e) for e in range(4)] + extra]
        for ks in range(8):
            a(qk(nx, ks)); emit(g[ks])
    def phase2(cur, kb_next, pre_k, tail):
        nx = cur ^ 1; b = S(cur); k0 = 2 * cur; k1 = k0 + 1
        mx = maxchain(nx)
        a('s_waitcnt lgkmcnt(6)')
        a(pv(k0, 0, 0)); emit(vread(k1, 3) + [exp(b + 8), exp(b + 9), exp(b + 10)])
        a(pv(k0, 1, 0)); emit(pre_k + [kread(0, kb_next), kread(1, kb_next), exp(b + 11), exp(b + 12), exp(b + 13)])
        a(pv(k0, 2, 0)); emit([kread(2, kb_next), kread(3, kb_next), exp(b + 14), exp(b + 15), cvt(1, 0, b + 8), cvt(1, 1, b + 10)])
        a(pv(k0, 3, 0)); emit([kread(4, kb_next), kread(5, kb_next), cvt(1, 2, b + 12), cvt(1, 3, b + 14), add(b + 4), 's_waitcnt lgkmcnt(6)'])
        a(pv(k1, 0, 1)); emit([kread(6, kb_next), kread(7, kb_next)] + [add(b + e) for e in range(5, 9)])
        a(pv(k1, 1, 1)); emit([add(b + e) for e in range(9, 15)])
        a(pv(k1, 2, 1)); emit([add(b + 15)] + mx[:5])
        a(pv(k1, 3, 1)); emit(mx[5:] + tail)
    emit(k_addr)
    a('s_barrier   ; b_0')
    stamp(8)
    for ks in range(8):
        a(kread(ks, 0))
    a(f's_mov_b32 {sVB}, {SLOT}')
    a(f's_mov_b32 {sBASE}, {2*SLOT}')
    emit(v_addr)
    for ks in range(8):
        a('s_waitcnt lgkmcnt(7)')
        a(qk(0, ks))
        a(kread(ks, 1))
    a('s_nop 10')
    emit(maxchain(0))
    a(f"""
    v_mul_f32 v14, {sC}, v14
    v_mov_b32 v15, v14
    s_waitcnt lgkmcnt(0)
    s_nop 0
    v_permlane32_swap_b32 v14, v15
    v_max_f32 {vM}, v14, v15
    v_add_f32 {vTH}, {hex(f32(cfg.T))}, {vM}
    """)
    a('L_loop:')
    a('s_barrier   ; b_V')
    stamp(24, sCNT)
    a(f"""
    s_cmp_eq_u32 {sCNT}, {sCHK}
    s_cbranch_scc0 L_nochk
    buffer_load_dword v10, v30, {DBG_}, 0 offen sc1
    L_nochk:
    """)
    phase1(0, k_addr[:4])
    bk = k_addr[4:] + ['s_barrier   ; b_K']
    phase2(0, 0, bk, ['s_waitcnt lgkmcnt(0)'])
    check('A')
    phase1(1, [f's_add_u32 {sVB}, {sBASE}, {SLOT}',
               f's_add_u32 {sBASE}, {sBASE}, {2*SLOT}',
               f's_cmp_eq_u32 {sBASE}, {sLIM}',
               f's_cselect_b32 {sBASE}, 0, {sBASE}',
               f's_cselect_b32 {sLIM}, {6*SLOT}, {sLIM}',
               f's_add_u32 {sCNT}, {sCNT}, 1'])
    phase2(1, 1, [], v_addr + ['s_waitcnt lgkmcnt(0)'])
    check('B')
    a(f"""
    s_cmp_lt_u32 {sCNT}, 15
    s_cbranch_scc1 L_loop
    """)
    a('L_tail:')
    for ks in range(8):
        a(qk(1, ks))
    a('s_nop 11')
    emit(maxchain(1))
    check('C')
    for kk in range(4):
        base = S(kk >> 1) + 8 * (kk & 1)
        emit([fma(base + e) for e in range(8)])
        emit([exp(base + e) for e in range(8)])
        for e in range(0, 8, 2):
            emit([add(base + e), add(base + e + 1), cvt(kk, e // 2, base + e)])
    a('s_barrier   ; b_31')
    stamp(39)
    for blk in range(4):
        emit(vread(0, blk))
    for kk in range(4):
        for blk in range(4):
            if kk < 3:
                emit(vread(kk + 1, blk))
                a('s_waitcnt lgkmcnt(8)')
            else:
                a(f's_waitcnt lgkmcnt({6 - 2*blk})')
            a(pv(kk, blk, kk))
    stamp(5)
    a(f'''
    v_add_f32 {vL0}, {vL0}, {vL1}
    v_mov_b32 v15, {vL0}
    s_nop 1
    v_permlane32_swap_b32 {vL0}, v15
    v_add_f32 {vL0}, {vL0}, v15
    v_rcp_f32 {vL0}, {vL0}
    s_lshl_b32 {sT1}, {sWAVE}, 3
    s_sub_u32 {sT1}, {sT1}, {sROT}
    s_nop 3
    ''')
    OBASE = 1 * SLOT
    for f in range(8):
        src = OA(f >> 1) + 8 * (f & 1)
        dst = 64 + 4 * f
        a(f's_add_u32 {sT0}, {sT1}, {f}')
        a(f's_and_b32 {sT0}, {sT0}, 31')
        a(f's_lshl_b32 {sT0}, {sT0}, 10')
        for e in range(8):
            a(f'v_mul_f32 v{src+e}, v{src+e}, {vL0}')
        a(f'v_add_u32 v{16+f}, {sT0}, v4')
        for d in range(4):
            a(f'v_cvt_pk_bf16_f32 v{dst+d}, v{src+2*d}, v{src+2*d+1}')
        a(f'ds_write_b128 v{16+f}, v[{dst}:{dst+3}] offset:{OBASE}')
    a(f'''
    s_cmp_eq_u32 {sWAVE}, 0
    s_cbranch_scc0 L_join
    s_mov_b32 {sSPIN}, 0
    L_chk:
    s_waitcnt vmcnt(0)
    v_cmp_gt_u32 vcc, 8, v10
    s_cbranch_vccz L_join
    s_add_u32 {sSPIN}, {sSPIN}, 1
    s_cmp_gt_u32 {sSPIN}, 0x40000
    s_cbranch_scc1 L_join
    s_sleep 4
    buffer_load_dword v10, v30, {DBG_}, 0 offen sc1
    s_branch L_chk
    ''')
    for tag in 'ABC':
        a(f"""
        L_slow{tag}:
        v_mov_b32 v15, v14
        s_nop 1
        v_permlane32_swap_b32 v14, v15
        v_max3_f32 v14, v14, v15, {vM}
        v_sub_f32 v15, {vM}, v14
        v_exp_f32 v15, v15
        v_mov_b32 {vM}, v14
        v_add_f32 {vTH}, {hex(f32(cfg.T))}, v14
        v_mul_f32 {vL0}, {vL0}, v15
        v_mul_f32 {vL1}, {vL1}, v15
        """)
        for r in range(64):
            a(f'v_mul_f32 v{128+r}, v{128+r}, v15')
        a('s_nop 0')
        a(f's_branch L_back{tag}')

    a('L_helper:')
    a('s_setprio 1')
    vKD = ['v5', 'v6', 'v7', 'v8']; vVD = 'v9'
    a(f'''
    s_sub_u32 {sHW}, {sWAVE}, 4
    s_lshl_b32 {sT1}, {sROT}, 1
    s_lshl_b32 {sT2}, {sHW}, 3
    ''')
    for jq in range(8):
        a(f'''
        s_add_u32 {sT0}, {sT2}, {jq}
        s_and_b32 {sCNT}, {sT0}, 15
        v_xor_b32 v{16+jq}, {sCNT}, v0
        v_add_u32 v{16+jq}, {sT1}, v{16+jq}
        s_lshl_b32 {sT0}, {sT0}, 10
        v_and_b32 v{16+jq}, 63, v{16+jq}
        s_add_u32 m0, {sT0}, {4*SLOT}
        v_lshlrev_b32 v{16+jq}, 4, v{16+jq}
        buffer_load_dwordx4 v{16+jq}, {X_}, {sT0} offen{cfg.x_pol} lds
        ''')
    a(f'''
    v_xor_b32 v10, v2, v1
    v_lshlrev_b32 v10, 4, v10
    v_lshl_add_u32 v5, v1, 8, v10
    v_xor_b32 v6, 64, v5
    v_xor_b32 v7, 128, v5
    v_xor_b32 v8, 192, v5
    v_lshlrev_b32 v10, 2, v1
    v_xor_b32 v10, v10, v2
    v_lshlrev_b32 v10, 4, v10
    v_lshl_add_u32 v9, v1, 8, v10
    s_lshl_b32 {sBASE}, {sHW}, 12
    ''')
    issued = []
    RB = lambda j, jj: 64 + 16 * (j - 6) + 4 * jj
    def kv_issue(j, grp=0):
        if cfg.nokv:
            issued.append((('kv', j), 0)); return
        inreg = grp == 1 and 6 <= j < 10
        if not inreg: a(f's_add_u32 m0, {sBASE}, {slot_of(j)*SLOT}')
        a(f's_add_u32 {sT0}, {sBASE}, {(j//2)*SLOT}')
        for jj in range(4):
            va, srd = (vKD[jj], K_) if j % 2 == 0 else (vVD, V_)
            if inreg:
                a(f'buffer_load_dwordx4 v[{RB(j,jj)}:{RB(j,jj)+3}], {va}, {srd}, {sT0} offen offset:{1024*jj}{cfg.kv_pol}')
            else:
                a(f'buffer_load_dwordx4 {va}, {srd}, {sT0} offen offset:{1024*jj}{cfg.kv_pol} lds')
        issued.append((('kv', j), 4))
    def warm(lab0, lab1, tagn):
        if not cfg.warm: return
        lab = a.label('L_pc')
        a(f"""
        s_getpc_b64 s[80:81]
        {lab}:
        s_lshl_b32 {sT0}, {sB}, 2
        s_add_u32 {sT0}, {sT0}, {sHW}
        s_mul_i32 {sT0}, {sT0}, ((({lab1} - {lab0}) / 64 + 63) / 64) * 64
        v_lshl_add_u32 v32, v0, 6, {sT0}
        v_min_u32 v32, {lab1} - {lab0} - 4, v32
        s_add_u32 s80, s80, {lab0} - {lab}
        s_addc_u32 s81, s81, -1
        v_mov_b32 v33, s81
        v_add_co_u32 v32, vcc, s80, v32
        s_nop 1
        v_addc_co_u32 v33, vcc, 0, v33, vcc
        v_cmp_gt_u32 vcc, (({lab1} - {lab0}) / 64 + 63) / 64, v0
        s_and_saveexec_b64 s[82:83], vcc
        global_load_dword v34, v[32:33], off
        s_mov_b64 exec, s[82:83]
        """)
        issued.append((('warm', tagn), 1))
    WSLOT = [6, 7, 8, 9, 4, 5, 0, 3]
    vWD = ['v28', 'v29']
    def wo_lane_regs():
        a(f'''
        v_lshrrev_b32 v28, 3, v0
        v_and_b32 v29, 7, v0
        v_bfe_u32 v27, v0, 4, 1
        v_lshlrev_b32 v27, 2, v27
        v_xor_b32 v29, v29, v27
        v_lshlrev_b32 v29, 4, v29
        v_lshl_add_u32 v28, v28, 10, v29
        v_add_u32 v29, 7168, v28
        ''')
    def w_issue_helper(i):
        a(f's_add_u32 {sT0}, {sROT}, {i}')
        a(f's_and_b32 {sT0}, {sT0}, 31')
        a(f's_lshl_b32 {sT0}, {sT0}, 14')
        a(f's_lshl_b32 {sT1}, {sHW}, 8')
        a(f's_add_u32 {sT0}, {sT0}, {sT1}')
        for ww in range(2):
            a(f's_add_u32 m0, {sBASE}, {WSLOT[i]*SLOT + ww*2048}')
            if ww: a(f's_add_u32 {sT0}, {sT0}, 128')
            else: a('s_nop 0')
            for hf in range(2):
                a(f'buffer_load_dwordx4 {vWD[hf]}, {WO_}, {sT0} offen offset:{1024*hf}{cfg.wo_pol} lds')
        issued.append((('w', i), 4))
    def wait_for(item):
        k = [x[0] for x in issued].index(item)
        a(f's_waitcnt vmcnt({sum(x[1] for x in issued[k+1:])})')
    warm('L_start', 'L_end', 0)
    wo_lane_regs()
    a(f'v_add_u32 v11, {sBASE}, v4')
    a(f'v_add_u32 v11, {6*SLOT}, v11')
    free_at = lambda it: it + 1 if it % 2 == 0 else it + 2
    slot_free = lambda j: 0 if j < 10 else free_at(j - 10 if j < 16 else j - 6)
    MERGE = 12
    base_issued = list(issued)
    a(f"""
    s_cmp_eq_u32 {sGRP}, 0
    s_cbranch_scc0 L_hkv
    """)
    def barrier_step(i, grp, st):
        wait_for(('kv', i))
        if grp == 1 and 6 <= i < 10:
            for jj in range(4):
                a(f'ds_write_b128 v11, v[{RB(i,jj)}:{RB(i,jj)+3}] offset:{(i-6)*SLOT + 1024*jj}')
            a('s_waitcnt lgkmcnt(0)')
        a(f's_barrier   ; b_{i}')
        if cfg.stamps: stamp(8 + i)
        while st['nxt'] < 32:
            j = st['nxt']
            at = slot_free(j)
            if grp == 0 and j < 16: at = max(at, j - cfg.g2_fly)
            if at > i: break
            kv_issue(j, grp); st['nxt'] += 1
        for wi, at in enumerate(tuple(cfg.w_at) + (27, 29, 29)):
            if at == i: w_issue_helper(wi)
        if i == 21: warm('L_tail', 'L_end', 1)
    states = []
    for grp in (0, 1):
        issued[:] = base_issued
        st = {}
        if grp == 0:
            a(f's_waitcnt vmcnt({sum(x[1] for x in issued)})')
            a('s_barrier   ; Bx')
            stamp(1)
            a('s_barrier   ; Bx2')
            a('s_barrier   ; Bw')
            a('s_barrier   ; Bk')
            for j in range(cfg.g2_fly): kv_issue(j, 0)
            st['nxt'] = cfg.g2_fly
            stamp(2)
        else:
            a('L_hkv:')
            for j in range(2): kv_issue(j, 1)
            a(f's_waitcnt vmcnt({sum(x[1] for x in issued)})')
            a('s_barrier   ; Bx')
            stamp(1)
            for j in range(2, 4): kv_issue(j, 1)
            a('s_barrier   ; Bx2')
            for j in range(4, 10): kv_issue(j, 1)
            stamp(2)
            a('s_barrier   ; Bw')
            a('s_barrier   ; Bk')
            st['nxt'] = 10
        if cfg.head_only:
            a('s_waitcnt vmcnt(0)')
            stamp(3)
            a('s_branch L_fin')
        for i in range(MERGE):
            barrier_step(i, grp, st)
        k = [x[0] for x in issued].index(('kv', MERGE))
        states.append((st['nxt'], issued[k:]))
        if grp == 0: a('s_branch L_hmerge')
    assert states[0] == states[1], states
    a('L_hmerge:')
    for i in range(MERGE, 32):
        barrier_step(i, 1, st)
    a('s_waitcnt vmcnt(0)')
    a('s_setprio 0')

    a('L_join:')
    a('s_waitcnt lgkmcnt(0)')
    a('s_barrier   ; Bo')
    stamp(6)
    wo_lane_regs()
    a(f'''
    s_lshl_b32 {sBASE}, {sWAVE}, 11
    s_lshl_b32 {sLIM}, {sWAVE}, 7
    ''')
    def w_pre(i):
        return [f's_add_u32 {sT0}, {sROT}, {i}', f's_and_b32 {sT0}, {sT0}, 31', f's_lshl_b32 {sT0}, {sT0}, 14',
                f's_add_u32 m0, {sBASE}, {WSLOT[i % 8]*SLOT}', f's_add_u32 {sT0}, {sT0}, {sLIM}']
    def w_dma(hf):
        return f'buffer_load_dwordx4 {vWD[hf]}, {WO_}, {sT0} offen offset:{1024*hf}{cfg.wo_pol} lds'
    a(f'''
    v_bfe_u32 v13, v0, 2, 2          ; r
    v_and_b32 v14, 1, v0
    v_bfe_u32 v15, v0, 1, 1
    v_lshlrev_b32 v14, 4, v14
    v_lshl_add_u32 v14, v15, 3, v14  ; pi*8
    v_and_b32 v15, 1, v1             ; g
    v_lshl_add_u32 v14, v15, 5, v14
    v_lshl_add_u32 v14, v3, 10, v14
    v_lshl_add_u32 v14, v13, 7, v14
    v_bfe_u32 v15, v0, 3, 1          ; r>>1
    v_lshl_add_u32 v14, v15, 6, v14
    v_add_u32 v16, {sBASE}, v14
    v_xor_b32 v17, 64, v16
    v_add_u32 v18, {4*SLOT}, v16
    v_add_u32 v19, {4*SLOT}, v17
    v_add_u32 v20, {8*SLOT}, v16
    v_add_u32 v21, {8*SLOT}, v17
    ''')
    AF = lambda i, nb: 32 + 8 * (i & 1) + 4 * nb
    BF = lambda i: 48 + 4 * (i & 1)
    PA = lambda nb: 64 + 16 * nb
    def o_mfma1(i, nb):
        c = '0' if i == 0 else f'v[{PA(nb)}:{PA(nb)+15}]'
        return f'v_mfma_f32_32x32x16_bf16 v[{PA(nb)}:{PA(nb)+15}], v[{AF(i,nb)}:{AF(i,nb)+3}], v[{BF(i)}:{BF(i)+3}], {c}'
    def o_mfma(i):
        for nb in range(2): a(o_mfma1(i, nb))
    for i in range(32):
        if i >= 7:
            a(f's_waitcnt vmcnt({2*(min(31, i+6) - i)})')
        sl = WSLOT[i % 8]
        a(f'ds_read_b128 v[{BF(i)}:{BF(i)+3}], v4 offset:{OBASE + 1024*i}')
        for nb in range(2):
            for u in range(2):
                r = AF(i, nb) + 2 * u
                a(f'ds_read_b64_tr_b16 v[{r}:{r+1}], v{16 + 2*(sl//4) + nb} offset:{(sl % 4)*SLOT + 512*u}')
        dma = i + 7 < 32
        if dma:
            for x in w_pre(i + 7): a(x)
        for nb in range(2):
            if i > 0: a(o_mfma1(i - 1, nb))
            if dma: a(w_dma(nb))
        a('s_waitcnt lgkmcnt(0)')
    o_mfma(31)
    stamp(7)
    a(f'''
    s_lshl_b32 {sT0}, {sG}, 3
    s_add_u32 {sT1}, {sT0}, {sWAVE}
    s_lshl_b32 {sT2}, {sT1}, 3
    s_add_u32 {sT2}, {sT2}, {sHKV}
    s_lshl_b32 {sT2}, {sT2}, 13
    s_add_u32 {sCNT}, {sT2}, 4096
    s_lshl_b32 {sT1}, {sT1}, 7
    s_add_u32 {sT1}, {sT1}, {FLAG_OFF}
    s_lshl_b32 {sC}, {sHKV}, 2
    s_add_u32 {sT1}, {sT1}, {sC}
    s_add_u32 {sT0}, {sT0}, {sHKV}        ; g*8 + own
    v_mov_b32 v10, 1
    v_mov_b32 v11, 0
    v_lshlrev_b32 v12, 2, v0
    ''')
    for pc in range(8):
        so = sT2 if pc < 4 else sCNT
        a(f'buffer_store_dwordx4 v[{64+4*pc}:{67+4*pc}], v4, {WS_}, {so} offen offset:{1024*(pc % 4)} sc1')
    a(f'''
    s_lshl_b32 {sCHK}, {sT0}, 7
    s_add_u32 {sCHK}, {sCHK}, {FLAG_OFF}
    s_lshl_b32 {sT0}, {sT0}, 16
    s_lshl_b32 {sC}, {sWAVE}, 10
    s_add_u32 {sT0}, {sT0}, {sC}
    s_waitcnt vmcnt(0)
    s_mov_b64 exec, 1
    buffer_store_dword v10, v11, {WS_}, {sT1} offen sc1
    s_mov_b64 exec, 0xff
    s_mov_b32 {sSPIN}, 0
    ''')
    stamp(56)
    a(f'''
    L_poll:
    buffer_load_dword v13, v12, {WS_}, {sCHK} offen sc1
    s_add_u32 {sSPIN}, {sSPIN}, 1
    s_cmp_gt_u32 {sSPIN}, 0x40000
    s_cbranch_scc1 L_polled
    s_waitcnt vmcnt(0)
    v_cmp_ne_u32 vcc, 1, v13
    s_cbranch_vccnz L_poll
    L_polled:
    s_mov_b64 exec, -1
    ''')
    stamp(57)
    for p in range(8):
        a(f'buffer_load_dwordx4 v[{96+4*p}:{99+4*p}], v4, {WS_}, {sT0} offen sc1')
        if p < 7: a(f's_add_u32 {sT0}, {sT0}, 8192')
    a(f'''
    v_and_b32 v20, 31, v0
    v_lshlrev_b32 v20, 11, v20
    v_lshl_add_u32 v20, v3, 4, v20
    s_lshr_b32 {sT1}, {sWAVE}, 1
    s_lshl_b32 {sT1}, {sT1}, 5
    s_and_b32 {sT2}, {sWAVE}, 1
    s_lshl_b32 {sT2}, {sT2}, 3
    s_add_u32 {sT1}, {sT1}, {sT2}
    ''')
    for p in range(1, 8):
        a(f's_waitcnt vmcnt({7-p})')
        for d in range(4):
            a(f'v_add_f32 v{96+d}, v{96+d}, v{96+4*p+d}')
    a(f'''
    v_cvt_pk_bf16_f32 v96, v96, v97
    v_cvt_pk_bf16_f32 v97, v98, v99
    buffer_store_dwordx2 v[96:97], v20, {OUT_}, {sT1} offen
    ''')
    a('L_fin:')
    if cfg.stamps:
        stamp(58)
        a('s_waitcnt vmcnt(0)')
        stamp(59)
        a('s_memtime s[100:101]')
        a('s_waitcnt lgkmcnt(0)')
        a(f'v_writelane_b32 {vSTAMP}, s100, 61')
        a(f'''
        s_add_u32 s28, s28, {STAMP_OFF}
        s_addc_u32 s29, s29, 0
        s_lshl_b32 {sT0}, s2, 3
        s_add_u32 {sT0}, {sT0}, {sWAVE}
        s_lshl_b32 {sT0}, {sT0}, 8
        v_lshl_add_u32 v13, v0, 2, {sT0}
        global_store_dword v13, {vSTAMP}, s[28:29]
        ''')
    a('L_end:')
    a('s_endpgm')
    return header([f'; @launch grid=(256,1,1) block=(512,1,1) lds={10*SLOT}']) + kernel_open(kn) + a.text() + descriptor(kn, 256, 102)

if __name__ == '__main__':
    out = sys.argv[1]
    cfg = Cfg()
    for kv in sys.argv[2:]:
        k, v = kv.split('=', 1)
        setattr(cfg, k, eval(v))
    t = gen(cfg)
    n = hazard.check(t)
    open(out, 'w').write(t)
    print(out, 'hazards:', n, 'lines:', t.count('\n'))
```

```python
import sys, struct
from asmlib import *
import hazard

def f32(x):
    return struct.unpack('<I', struct.pack('<f', x))[0]

SLOT = 16384
FLAG_OFF = 16 * 1024 * 1024
STAMP_OFF = 128 * 1024 * 1024
OBASE = 3 * SLOT
WSLOT = [8, 9, 6, 7, 0, 1, 2, 5]

def slot_of(j):
    return j if j < 10 else (j - 10) % 8

class Cfg:
    stamps = 0
    wq_pol = ''
    wo_pol = ''
    x_pol = ' nt'
    kv_pol = ' nt'
    w_at = (13, 14, 14, 15, 16, 16, 16)
    warm = True
    wq_first = 2
    stagger = 1
    g0_fly = 4
    g0_fly2 = 1
    g0_sw = 5
    g0_pre = 0
    g1_pre = 10
    hprio = 1
    park = 8
    park0 = 5
    T = 8.0
    h_ahead = 4
    h_start = 5
    wq_both = False
    g1_first = 2
    g1_fly = 9
    bf16p = True

def gen(cfg):
    a = Asm()
    kn = NAME + '_kernel'
    def emit(l):
        for x in l: a(x)
    sWAVE, sHKV, sBR, sB, sG, sROT = 's30', 's31', 's32', 's33', 's34', 's35'
    K_, V_, X_, WQ_, WO_, WS_, OUT_, DBG_ = ['s[%d:%d]' % (36 + 4 * i, 39 + 4 * i) for i in range(8)]
    sT0, sT1, sT2, sCNT, sBASE, sLIM, sC, sCHK, sHW = 's68', 's69', 's70', 's71', 's72', 's73', 's74', 's75', 's76'
    sSPIN, sVB, sGRP, sWL, sWG = 's77', 's78', 's79', 's84', 's85'
    vSTAMP = 'v31'
    NP = 2 * cfg.park
    def stamp(i):
        if not cfg.stamps or (cfg.stamps == 2 and i not in (0, 59)) or (cfg.stamps == 3 and i not in (0, 8, 24, 6, 7, 56, 57, 58, 59)): return
        a('s_memrealtime s[100:101]')
        a('s_waitcnt lgkmcnt(0)')
        a(f'v_writelane_b32 {vSTAMP}, s100, {i}')
    def cstamp(i):
        if cfg.stamps != 1: return
        a('s_memtime s[100:101]')
        a('s_waitcnt lgkmcnt(0)')
        a(f'v_writelane_b32 {vSTAMP}, s100, {i}')

    a(f'''
    L_start:
    s_cmp_ge_u32 s2, 256
    s_cbranch_scc1 L_end
    s_load_dwordx16 s[4:19], s[0:1], 0
    s_load_dwordx8 s[20:27], s[0:1], 64
    s_load_dwordx2 s[28:29], s[0:1], 96
    v_lshrrev_b32 v1, 6, v0
    v_and_b32 v0, 63, v0
    v_readfirstlane_b32 {sWAVE}, v1
    s_and_b32 {sHKV}, s2, 3
    s_lshl_b32 {sHKV}, {sHKV}, 1
    s_bfe_u32 {sBR}, s2, 0x10003
    s_add_u32 {sHKV}, {sHKV}, {sBR}
    s_bfe_u32 {sBR}, s2, 0x10002
    s_lshr_b32 {sB}, s2, 4
    s_lshl_b32 {sG}, {sBR}, 4
    s_add_u32 {sG}, {sG}, {sB}
    s_lshl_b32 {sROT}, {sB}, 1
    ''')
    a({0: f's_mov_b32 {sGRP}, 0', 1: f's_and_b32 {sGRP}, {sHKV}, 1', 2: f's_mov_b32 {sGRP}, 1'}[cfg.stagger])
    if cfg.stamps:
        a(f'v_mov_b32 {vSTAMP}, 0')
    a(f'''
    v_lshrrev_b32 v1, 4, v0          ; lane>>4
    v_and_b32 v2, 15, v0             ; lane&15
    v_lshrrev_b32 v3, 5, v0          ; h2
    v_lshlrev_b32 v4, 4, v0          ; lane*16
    s_lshl_b32 {sT0}, {sB}, 3
    s_add_u32 {sT0}, {sT0}, {sHKV}
    s_lshl_b32 {sT0}, {sT0}, 18
    s_lshl_b32 {sT1}, {sB}, 15
    s_lshl_b32 {sT2}, {sHKV}, 10
    s_mov_b32 s38, 262144
    s_mov_b32 s39, 0x20000
    s_mov_b32 s42, 262144
    s_mov_b32 s43, 0x20000
    s_mov_b32 s46, 32768
    s_mov_b32 s47, 0x20000
    s_sub_u32 s50, 0x400000, {sT2}
    s_mov_b32 s51, 0x20000
    s_mov_b32 s54, 524288
    s_mov_b32 s55, 0x20000
    s_mov_b32 s58, {FLAG_OFF + 32768}
    s_mov_b32 s59, 0x20000
    s_mov_b32 s63, 0x20000
    s_mov_b32 s66, 256
    s_mov_b32 s67, 0x20000
    s_lshl_b32 {sWL}, {sWAVE}, 11
    s_lshl_b32 {sWG}, {sWAVE}, 7
    s_waitcnt lgkmcnt(0)
    ''')
    stamp(0); cstamp(60)
    a(f'''
    s_cmp_eq_u32 {sBR}, 0
    s_cselect_b32 s36, s6, s16
    s_cselect_b32 s37, s7, s17
    s_cselect_b32 s40, s8, s18
    s_cselect_b32 s41, s9, s19
    s_cselect_b32 s44, s4, s14
    s_cselect_b32 s45, s5, s15
    s_cselect_b32 s48, s10, s20
    s_cselect_b32 s49, s11, s21
    s_cselect_b32 s52, s12, s22
    s_cselect_b32 s53, s13, s23
    s_add_u32 s36, s36, {sT0}
    s_addc_u32 s37, s37, 0
    s_add_u32 s40, s40, {sT0}
    s_addc_u32 s41, s41, 0
    s_add_u32 s44, s44, {sT1}
    s_addc_u32 s45, s45, 0
    s_add_u32 s48, s48, {sT2}
    s_addc_u32 s49, s49, 0
    s_lshl_b32 {sT0}, {sHKV}, 19
    s_add_u32 s52, s52, {sT0}
    s_addc_u32 s53, s53, 0
    s_mov_b32 s56, s28
    s_mov_b32 s57, s29
    s_lshl_b32 {sT0}, {sBR}, 10
    s_lshl_b32 {sT1}, {sHKV}, 7
    s_add_u32 {sT0}, {sT0}, {sT1}
    s_sub_u32 s62, 65536, {sT0}
    s_lshl_b32 {sT1}, {sB}, 16
    s_add_u32 {sT0}, {sT0}, {sT1}
    s_add_u32 s60, s24, {sT0}
    s_addc_u32 s61, s25, 0
    s_mov_b32 s64, s26
    s_mov_b32 s65, s27
    s_cmp_ge_u32 {sWAVE}, 4
    s_cbranch_scc1 L_helper
    ''')

    vWD = ['v112', 'v113']
    vWA = lambda region, nb: f'v{114 + 2 * region + nb}'
    vOA, vPA0 = 'v120', 121
    oproj_addr = f'''
    v_lshrrev_b32 v112, 3, v0
    v_and_b32 v113, 7, v0
    v_bfe_u32 v114, v0, 4, 1
    v_lshlrev_b32 v114, 2, v114
    v_xor_b32 v113, v113, v114
    v_lshlrev_b32 v113, 4, v113
    v_lshl_add_u32 v112, v112, 10, v113
    v_add_u32 v113, 7168, v112
    v_and_b32 v114, 1, v0
    v_bfe_u32 v115, v0, 1, 1
    v_lshlrev_b32 v114, 4, v114
    v_lshl_add_u32 v114, v115, 3, v114  ; pi*8
    v_and_b32 v115, 1, v1
    v_lshl_add_u32 v114, v115, 5, v114  ; + g*32
    v_lshl_add_u32 v114, v3, 10, v114   ; + h2*1024
    v_bfe_u32 v115, v0, 2, 2
    v_lshl_add_u32 v114, v115, 7, v114  ; + r*128
    v_bfe_u32 v115, v0, 3, 1
    v_lshl_add_u32 v121, v115, 6, v114  ; + (r>>1)*64
    v_add_u32 v114, {sWL}, v121
    v_xor_b32 v115, 64, v114
    v_add_u32 v116, {4*SLOT}, v114
    v_add_u32 v117, {4*SLOT}, v115
    v_add_u32 v118, {8*SLOT}, v114
    v_add_u32 v119, {8*SLOT}, v115
    v_add_u32 v120, {OBASE}, v4
    '''.strip().split('\n')

    vWQ = ['v5', 'v6', 'v7', 'v8']
    a(f'''
    v_lshlrev_b32 v9, 2, v1
    v_xor_b32 v9, v9, v2
    v_lshlrev_b32 v9, 4, v9
    v_lshl_add_u32 v9, v1, 13, v9
    s_lshl_b32 {sT0}, {sWAVE}, 8
    v_add_u32 v5, {sT0}, v9
    v_add_u32 v6, {31744}, v5
    v_add_u32 v7, {2*31744}, v5
    v_add_u32 v8, {3*31744}, v5
    s_add_u32 {sBASE}, {sWAVE}, 6
    s_lshl_b32 {sBASE}, {sBASE}, 14
    ''')
    def wq_pre(i):
        return [f's_add_u32 {sT0}, {sROT}, {i}', f's_and_b32 {sT0}, {sT0}, 31',
                f's_add_u32 m0, {sBASE}, {(i % 4) * 4096}', f's_lshl_b32 {sT0}, {sT0}, 17']
    def wq_dma(j):
        return f'buffer_load_dwordx4 {vWQ[j]}, {WQ_}, {sT0} offen offset:{1024*j}{cfg.wq_pol} lds'
    def wq_issue(i):
        emit(wq_pre(i)); emit([wq_dma(j) for j in range(4)])
    if not cfg.wq_both: a(f's_cmp_eq_u32 {sGRP}, 0\ns_cbranch_scc0 L_nowq0')
    for i in range(cfg.wq_first): wq_issue(i)
    a('L_nowq0:')
    a(f'''
    v_bfe_u32 v13, v0, 2, 2          ; r
    v_and_b32 v14, 1, v0
    v_bfe_u32 v15, v0, 1, 1
    v_lshlrev_b32 v14, 4, v14
    v_lshl_add_u32 v14, v15, 3, v14  ; pi*8
    v_and_b32 v15, 1, v1             ; g
    v_lshl_add_u32 v14, v15, 5, v14  ; g*32 + pi*8
    v_lshlrev_b32 v12, 11, v3        ; 8*h2*256
    v_mul_u32_u24 v15, 320, v13      ; r*256 + r*64
    v_add3_u32 v12, v12, v15, v14
    v_add_u32 v16, {sBASE}, v12
    v_xor_b32 v17, 64, v16
    v_xor_b32 v18, 128, v16
    v_xor_b32 v19, 192, v16
    v_and_b32 v20, 31, v0            ; q
    v_xor_b32 v21, v3, v2            ; h2 ^ (q&15)
    v_lshlrev_b32 v21, 4, v21
    v_lshl_add_u32 v21, v20, 10, v21
    v_add_u32 v21, {4*SLOT}, v21
    ''')
    vTQ = ['v16', 'v17', 'v18', 'v19']
    XF = lambda i: 128 + 4 * i
    QA = lambda blk: 64 + 16 * blk
    BUF = lambda i, blk: 32 + 16 * (i & 1) + 4 * blk
    OA = lambda blk: 128 + 16 * blk
    for m in range(1, 8):
        a(f'v_xor_b32 v{21+m}, {32*m}, v21')
    vKL = 'v29'
    a(f'''
    v_bfe_u32 v13, v0, 2, 1
    v_bfe_u32 v14, v0, 3, 1
    v_and_b32 v15, 0x13, v0
    v_lshl_add_u32 v15, v13, 3, v15
    v_lshl_add_u32 v15, v14, 2, v15
    v_and_b32 v13, 15, v15
    v_xor_b32 v13, v13, v3
    v_lshlrev_b32 v13, 4, v13
    v_lshl_add_u32 {vKL}, v15, 8, v13
    v_and_b32 v13, 3, v0              ; row-sum operand: ones where row%4 == 0 and bit 2 of the row == bit 0 of the k group
    v_bfe_u32 v14, v0, 2, 1
    v_bfe_u32 v15, v0, 4, 1
    v_xor_b32 v14, v14, v15
    v_or_b32 v13, v13, v14
    v_cmp_eq_u32 vcc, 0, v13
    v_mov_b32 v14, 0x3f803f80
    v_mov_b32 v30, {hex(f32(1.4426950408889634 / 128 ** 0.5))}
    v_cndmask_b32 v10, 0, v14, vcc
    s_mov_b32 {sC}, {hex(f32(cfg.T))}
    s_barrier   ; Bx
    ''')
    stamp(1)
    for i in range(32):
        a(f'ds_read_b128 v[{XF(i)}:{XF(i)+3}], v{21 + (i & 7)} offset:{256*(i >> 3)}')
        if i in (14, 22, 30): a('s_waitcnt lgkmcnt(7)')
    a('s_waitcnt lgkmcnt(0)')
    a('s_barrier   ; Bx2')
    a('s_barrier   ; Bw')
    stamp(2)
    if not cfg.wq_both:
        a(f's_cmp_eq_u32 {sGRP}, 0\ns_cbranch_scc1 L_wq1')
        for i in range(cfg.wq_first): wq_issue(i)
        a('L_wq1:')
    for i in range(cfg.wq_first, 3): wq_issue(i)
    def q_mfma(i, blk):
        c = '0' if i == 0 else f'v[{QA(blk)}:{QA(blk)+15}]'
        return f'v_mfma_f32_32x32x16_bf16 v[{QA(blk)}:{QA(blk)+15}], v[{BUF(i,blk)}:{BUF(i,blk)+3}], v[{XF(i)}:{XF(i)+3}], {c}'
    for i in range(32):
        a(f's_waitcnt vmcnt({4*(min(31, i + 2) - i)})')
        if i == 0: stamp(3)
        if i in (4, 8, 16, 24): stamp(40 + i // 4)
        for blk in range(4):
            for u in range(2):
                r = BUF(i, blk) + 2 * u
                a(f'ds_read_b64_tr_b16 v[{r}:{r+1}], {vTQ[blk]} offset:{(i % 4)*4096 + 1024*u}')
        dma = i + 3 < 32
        if dma: emit(wq_pre(i + 3))
        for blk in range(4):
            if i > 0: a(q_mfma(i - 1, blk))
            if dma: a(wq_dma(blk))
            if 18 <= i < 26:
                for z in range(2):
                    a(f'v_mov_b32 v{128 + 8*(i-18) + 2*blk + z}, 0')
        if i + 3 == 31: a('s_barrier   ; Bk')
        a('s_waitcnt lgkmcnt(0)')
    a('s_barrier   ; Bq')
    for blk in range(4): a(q_mfma(31, blk))
    stamp(4)
    a(f"""
    s_mov_b32 {sCNT}, 13
    s_mov_b32 {sBASE}, 0
    s_mov_b32 {sLIM}, {10*SLOT}
    """)
    QF = lambda ks: 32 + 4 * ks
    S = lambda kb: 64 + 16 * kb
    P = lambda kk: 96 + 4 * kk if kk < 2 else 192 + 4 * (kk - 2)
    CB = 112
    LA, ON = 104, 108
    KF = lambda ks: 192 + 4 * ks
    VF = lambda kk, blk: 224 + 16 * (kk & 1) + 4 * blk
    vKA = ['v%d' % (16 + i) for i in range(8)]
    vVA = ['v24', 'v25', 'v26', 'v27']
    def qk(sb, ks, first=False):
        c = ('0' if first else f'v[{CB}:{CB+15}]') if ks == 0 else f'v[{S(sb)}:{S(sb)+15}]'
        return f'v_mfma_f32_32x32x16_bf16 v[{S(sb)}:{S(sb)+15}], v[{KF(ks)}:{KF(ks)+3}], v[{QF(ks)}:{QF(ks)+3}], {c}'
    def pv(kk, blk, pk):
        return f'v_mfma_f32_32x32x16_bf16 v[{OA(blk)}:{OA(blk)+15}], v[{VF(kk,blk)}:{VF(kk,blk)+3}], v[{P(pk)}:{P(pk)+3}], v[{OA(blk)}:{OA(blk)+15}]'
    rsum = lambda pk: f'v_mfma_f32_16x16x32_bf16 v[{LA}:{LA+3}], v[{ON}:{ON+3}], v[{P(pk)}:{P(pk)+3}], v[{LA}:{LA+3}]'
    kread = lambda ks, kb: f'ds_read_b128 v[{KF(ks)}:{KF(ks)+3}], {vKA[ks]} offset:{8192*kb}'
    def vread(kkg, blk):
        return [f'ds_read_b64_tr_b16 v[{VF(kkg,blk)+2*u}:{VF(kkg,blk)+2*u+1}], {vVA[blk]} offset:{kkg*4096 + 1024*u}' for u in range(2)]
    exp = lambda r: f'v_exp_f32 v{r}, v{r}'
    cvt = lambda pk, d, r: f'v_cvt_pk_bf16_f32 v{P(pk)+d}, v{r}, v{r+1}'
    def maxchain(sb):
        b = S(sb)
        l = [f'v_max3_f32 v14, v{b}, v{b+1}, v{b+2}', f'v_max3_f32 v15, v{b+3}, v{b+4}, v{b+5}']
        for z in range(4):
            t = 'v14' if z % 2 == 0 else 'v15'
            l.append(f'v_max3_f32 {t}, {t}, v{b+6+2*z}, v{b+7+2*z}')
        l.append(f'v_max3_f32 v14, v14, v{b+14}, v{b+15}')
        l.append(f'v_max_f32 v14, v14, v15')
        return l
    k_addr = [f'v_add_u32 {vKA[0]}, {sBASE}, {vKL}'] + [f'v_xor_b32 {vKA[ks]}, {32*ks}, {vKA[0]}' for ks in range(1, 8)]
    v_addr = [f'v_add_u32 {vVA[0]}, {sVB}, v12'] + [f'v_xor_b32 {vVA[blk]}, {64*blk}, {vVA[0]}' for blk in range(1, 4)]
    cmp_ = f'v_cmp_lt_f32 vcc, {sC}, v14'
    def branch(tag):
        a(f's_cbranch_vccnz L_slow{tag}')
        a(f'L_back{tag}:')
    def mini(cur, kb_read, x, barrier=False, vnext=True):
        nx = cur ^ 1; b = S(cur); k0 = 2 * cur; k1 = k0 + 1; kn_ = (k1 + 1) & 3
        R1 = sum([vread(k1, blk) for blk in range(4)], [])
        R0 = sum([vread(kn_, blk) for blk in range(4)], []) if vnext else [None] * 8
        D = [kread(ks, kb_read) for ks in range(8)]
        E = [exp(b + e) for e in range(16)]
        C = [cvt(d >> 2, d & 3, b + 2 * d) for d in range(8)]
        X = maxchain(nx)
        w4 = ['s_waitcnt lgkmcnt(4)']
        g = {0: [E[0], D[0], E[1]], 1: [E[2], D[1], E[3]], 2: [E[4], D[2], E[5]], 3: [E[6], D[3], E[7]],
             4: [D[4], C[0], C[1], C[2]] + w4, 5: [E[8], D[5], C[3], R1[0]], 6: [E[9], D[6], R1[1]], 7: [E[10], D[7], R1[2]],
             8: [R1[3], E[11], R1[4]], 9: [R1[5], E[12], R1[6]], 10: [E[13], R1[7], E[14]], 11: [E[15], C[4], C[5], C[6]],
             's0': [C[7], X[0], 's_waitcnt lgkmcnt(0)'],
             12: (['s_barrier   ; k(t+2): V(t+1), K(t+2) landed'] if barrier else []) + [R0[0], X[1], R0[1], X[2], X[3]],
             13: [R0[2], X[4], R0[3], X[5]], 14: [R0[4], X[6], R0[5], X[7]], 15: [R0[6], cmp_, R0[7]], 's1': []}
        def G(k): emit([y for y in g[k] if y] + x.get(k, []))
        for ks in range(8):
            a(qk(nx, ks)); G(ks)
        for blk in range(4):
            a(pv(k0, blk, 0)); G(8 + blk)
        a(rsum(0)); G('s0')
        for blk in range(4):
            a(pv(k1, blk, 1)); G(12 + blk)
        a(rsum(1)); G('s1')
    KA, VA = k_addr, v_addr
    def step(tags, last):
        if last:
            mini(0, 0, {4: [KA[5]], 5: [KA[6]], 6: [KA[7]], 7: [f's_add_u32 {sVB}, {sBASE}, {SLOT}']})
        else:
            mini(0, 0, {4: [KA[5]], 5: [KA[6]], 6: [KA[7]], 7: [f's_add_u32 {sVB}, {sBASE}, {SLOT}'],
                        8: [f's_add_u32 {sBASE}, {sBASE}, {2*SLOT}'], 9: [f's_cmp_eq_u32 {sBASE}, {sLIM}'],
                        13: [f's_cselect_b32 {sBASE}, 0, {sBASE}'], 14: [f's_cselect_b32 {sLIM}, {8*SLOT}, {sLIM}'],
                        15: [f's_sub_u32 {sCNT}, {sCNT}, 1']})
        branch(tags[0])
        if last:
            mini(1, 1, {7: [VA[0]], 9: [VA[1]], 13: [VA[2]], 14: [VA[3]]}, False, False)
        else:
            mini(1, 1, {6: [KA[0]], 7: [VA[0]], 8: [KA[1]], 9: [VA[1]], 13: [VA[2]], 14: [VA[3]], 15: [KA[2], KA[3]], 's1': [KA[4]]}, True)
        branch(tags[1])
    emit(k_addr)
    for ks in range(8):
        src = QA(ks >> 1) + 8 * (ks & 1)
        for d in range(4):
            a(f'v_pk_mul_f32 v[{src+2*d}:{src+2*d+1}], v[{src+2*d}:{src+2*d+1}], v[30:31] op_sel_hi:[1,0]')
        for d in range(4):
            a(f'v_cvt_pk_bf16_f32 v{QF(ks)+d}, v{src+2*d}, v{src+2*d+1}')
    a('s_barrier   ; k0')
    stamp(8)
    for ks in range(8):
        a(kread(ks, 0))
    a(f's_mov_b32 {sVB}, {SLOT}')
    a(f's_mov_b32 {sBASE}, {2*SLOT}')
    emit(v_addr)
    emit([f'v_mov_b32 v{LA+i}, 0' for i in range(4)])
    emit([f'v_mov_b32 v{ON+i}, v10' for i in range(4)])
    for ks in range(8):
        a('s_waitcnt lgkmcnt(7)')
        a(qk(0, ks, True))
        a(kread(ks, 1))
    emit(KA[:5])
    a('s_nop 5')
    emit(maxchain(0))
    a(f"""
    v_mov_b32 v15, v14
    s_waitcnt lgkmcnt(0)
    s_barrier   ; k1
    """)
    for blk in range(4): emit(vread(0, blk))
    a(f"""
    v_permlane32_swap_b32 v14, v15
    v_max_f32 v14, v14, v15
    """)
    emit([f'v_sub_f32 v{CB+i}, 0, v14' for i in range(16)])
    emit([f'v_sub_f32 v{S(0)+i}, v{S(0)+i}, v14' for i in range(16)])
    a('L_loop:')
    step('AB', False)
    a('s_cbranch_scc0 L_loop')
    a('L_last:')
    step('DE', True)
    a('L_tail:')
    b0, b1 = S(0), S(1)
    for ks in range(8):
        a(qk(1, ks)); emit([exp(b0 + 2 * ks), exp(b0 + 2 * ks + 1)])
    a(f's_lshl_b32 {sT1}, {sWAVE}, 3')
    a(f's_sub_u32 {sT1}, {sT1}, {sROT}')
    fill = list(oproj_addr)
    a('s_nop 7')
    emit(maxchain(1))
    a(cmp_)
    branch('C')
    emit([cvt(0, d, b0 + 2 * d) for d in range(4)])
    a('s_barrier   ; k16: V15 landed')
    stamp(39)
    for blk in range(4): emit(vread(0, blk))
    for blk in range(3): emit(vread(1, blk))
    emit([cvt(1, d, b0 + 8 + 2 * d) for d in range(4)])
    emit([exp(b1 + e) for e in range(4)])
    def oaddr(f):
        return [f's_add_u32 {sT0}, {sT1}, {f}', f's_and_b32 {sT0}, {sT0}, 31', f's_lshl_b32 {sT0}, {sT0}, 10',
                f'v_add_u32 v{16+f}, {sT0}, {vOA}']
    def take(n):
        l = fill[:n]; del fill[:n]; return l
    a('s_waitcnt lgkmcnt(6)')
    a(pv(0, 0, 0)); emit(vread(1, 3) + [exp(b1 + 4), exp(b1 + 5)])
    a(pv(0, 1, 0)); emit(vread(2, 0) + [exp(b1 + 6), exp(b1 + 7)])
    a(pv(0, 2, 0)); emit(vread(2, 1) + [exp(b1 + 8), exp(b1 + 9)])
    a(pv(0, 3, 0)); emit(vread(2, 2) + [cvt(2, d, b1 + 2 * d) for d in range(4)])
    a(rsum(0)); a('s_waitcnt lgkmcnt(6)')
    a(pv(1, 0, 1)); emit(vread(2, 3) + [exp(b1 + 10), exp(b1 + 11)])
    a(pv(1, 1, 1)); emit(vread(3, 0) + [exp(b1 + 12), exp(b1 + 13)])
    a(pv(1, 2, 1)); emit(vread(3, 1) + [exp(b1 + 14), exp(b1 + 15)])
    a(pv(1, 3, 1)); emit(vread(3, 2) + take(3))
    a(rsum(1)); a('s_waitcnt lgkmcnt(6)')
    a(pv(2, 0, 2)); emit(vread(3, 3) + [cvt(3, d, b1 + 8 + 2 * d) for d in range(4)])
    a(rsum(2)); emit(take(2))
    a(rsum(3)); emit(take(2))
    a(pv(2, 1, 2)); emit(take(5))
    a(pv(2, 2, 2)); emit(take(5))
    a(pv(2, 3, 2)); emit(take(4) + [f'v_rcp_f32 v14, v{LA}', 's_waitcnt lgkmcnt(0)'])
    a(pv(3, 0, 3)); emit(take(5))
    a(pv(3, 1, 3)); emit(take(5) + oaddr(0))
    a(pv(3, 2, 3)); emit(oaddr(1))
    a(pv(3, 3, 3)); emit(oaddr(2))
    assert not fill
    stamp(5)
    for f in range(8):
        src = OA(f >> 1) + 8 * (f & 1)
        dst = 64 + 4 * f
        if f < 5: emit(oaddr(f + 3))
        for e in range(0, 8, 2):
            a(f'v_pk_mul_f32 v[{src+e}:{src+e+1}], v[{src+e}:{src+e+1}], v[14:15] op_sel_hi:[1,0]')
        for d in range(4):
            a(f'v_cvt_pk_bf16_f32 v{dst+d}, v{src+2*d}, v{src+2*d+1}')
        a(f'ds_write_b128 v{16+f}, v[{dst}:{dst+3}]')
    a('s_waitcnt lgkmcnt(0)')
    a('s_barrier   ; Bo')
    stamp(6)
    AF = lambda i, nb: (32, 40, 96)[i % 3] + 4 * nb
    BF = lambda i: 48 + 4 * (i & 3)
    PA = lambda nb: 64 + 16 * nb
    PK = lambda idx, nb: 128 + 8 * idx + 4 * nb
    sWO = sCNT
    def w_first(idx):
        return [f's_add_u32 {sWO}, {sROT}, {idx - 1}', f's_lshl_b32 {sWO}, {sWO}, 14', f's_add_u32 {sWO}, {sWO}, {sWG}']
    def w_pre(m):
        return [f's_add_u32 {sWO}, {sWO}, 16384', f's_add_u32 m0, {sWL}, {WSLOT[m % 8]*SLOT}', f's_and_b32 {sWO}, {sWO}, 0x7ffff']
    def w_dma(hf, so=sT0):
        return f'buffer_load_dwordx4 {vWD[hf]}, {WO_}, {so} offen offset:{1024*hf}{cfg.wo_pol} lds'
    def o_mfma(idx, nb, areg, first=False):
        c = '0' if first else f'v[{PA(nb)}:{PA(nb)+15}]'
        return f'v_mfma_f32_32x32x16_bf16 v[{PA(nb)}:{PA(nb)+15}], v[{areg}:{areg+3}], v[{BF(idx)}:{BF(idx)+3}], {c}'
    bread = lambda idx: f'ds_read_b128 v[{BF(idx)}:{BF(idx)+3}], {vOA} offset:{1024*idx}'
    def areads(idx, m):
        sl = WSLOT[m % 8]
        return [f'ds_read_b64_tr_b16 v[{AF(idx,nb)+2*u}:{AF(idx,nb)+2*u+1}], {vWA(sl // 4, nb)} offset:{(sl % 4)*SLOT + 512*u}'
                for nb in range(2) for u in range(2)]
    emit(w_first(7)); emit(w_pre(7))
    emit([bread(0)] + areads(0, 0))
    emit([w_dma(0, sWO), w_dma(1, sWO)])
    emit([bread(1)] + areads(1, 1))
    for m in range(32):
        if m in (4, 8, 12, 16, 20, 24, 28): stamp(47 + m // 4)
        if m + 2 < 32:
            if m + 2 >= 7: a(f's_waitcnt vmcnt({2*(min(31, m + 7) - (m + 2))})')
            emit([bread(m + 2)] + areads(m + 2, m + 2))
        dma = m + 8 < 32
        if dma: emit(w_pre(m + 8))
        a(f's_waitcnt lgkmcnt({5 * min(2, 31 - m)})')
        a(o_mfma(m, 0, AF(m, 0), m == 0))
        if dma: a(w_dma(0, sWO))
        a(o_mfma(m, 1, AF(m, 1), m == 0))
        if dma: a(w_dma(1, sWO))
    a('s_branch L_pub')

    a('L_helper:')
    a('s_setprio 1')
    vKD = ['v5', 'v6', 'v7', 'v8']; vVD = 'v9'
    a(f'''
    s_sub_u32 {sHW}, {sWAVE}, 4
    s_lshl_b32 {sT1}, {sROT}, 1
    s_lshl_b32 {sT2}, {sHW}, 3
    ''')
    for jq in range(8):
        a(f'''
        s_add_u32 {sT0}, {sT2}, {jq}
        s_and_b32 {sCNT}, {sT0}, 15
        v_xor_b32 v{16+jq}, {sCNT}, v0
        v_add_u32 v{16+jq}, {sT1}, v{16+jq}
        s_lshl_b32 {sT0}, {sT0}, 10
        v_and_b32 v{16+jq}, 63, v{16+jq}
        s_add_u32 m0, {sT0}, {4*SLOT}
        v_lshlrev_b32 v{16+jq}, 4, v{16+jq}
        buffer_load_dwordx4 v{16+jq}, {X_}, {sT0} offen{cfg.x_pol} lds
        ''')
    a(f'''
    v_xor_b32 v10, v2, v1
    v_lshlrev_b32 v10, 4, v10
    v_lshl_add_u32 v5, v1, 8, v10
    v_xor_b32 v6, 64, v5
    v_xor_b32 v7, 128, v5
    v_xor_b32 v8, 192, v5
    v_lshlrev_b32 v10, 2, v1
    v_xor_b32 v10, v10, v2
    v_lshlrev_b32 v10, 4, v10
    v_lshl_add_u32 v9, v1, 8, v10
    s_lshl_b32 {sBASE}, {sHW}, 12
    ''')
    issued = []
    RB = lambda j, jj: 128 + 16 * (j - 6) + 4 * jj
    def kv_issue(j, inreg=False):
        if not inreg: a(f's_add_u32 m0, {sBASE}, {slot_of(j)*SLOT}')
        a(f's_add_u32 {sT0}, {sBASE}, {(j//2)*SLOT}')
        for jj in range(4):
            va, srd = (vKD[jj], K_) if j % 2 == 0 else (vVD, V_)
            if inreg:
                a(f'buffer_load_dwordx4 v[{RB(j,jj)}:{RB(j,jj)+3}], {va}, {srd}, {sT0} offen offset:{1024*jj}{cfg.kv_pol}')
            else:
                a(f'buffer_load_dwordx4 {va}, {srd}, {sT0} offen offset:{1024*jj}{cfg.kv_pol} lds')
        issued.append((('kv', j), 4))
    def rb_write(j):
        for jj in range(4):
            a(f'ds_write_b128 v11, v[{RB(j,jj)}:{RB(j,jj)+3}] offset:{(j-6)*SLOT + 1024*jj}')
    def warm(lab0, lab1, tagn):
        if not cfg.warm: return
        lab = a.label('L_pc')
        a(f'''
        s_getpc_b64 s[80:81]
        {lab}:
        s_lshl_b32 {sT0}, {sB}, 2
        s_add_u32 {sT0}, {sT0}, {sHW}
        s_mul_i32 {sT0}, {sT0}, ((({lab1} - {lab0}) / 64 + 63) / 64) * 64
        v_lshl_add_u32 v32, v0, 6, {sT0}
        v_min_u32 v32, {lab1} - {lab0} - 4, v32
        s_add_u32 s80, s80, {lab0} - {lab}
        s_addc_u32 s81, s81, -1
        v_mov_b32 v33, s81
        v_add_co_u32 v32, vcc, s80, v32
        s_nop 1
        v_addc_co_u32 v33, vcc, 0, v33, vcc
        v_cmp_gt_u32 vcc, (({lab1} - {lab0}) / 64 + 63) / 64, v0
        s_and_saveexec_b64 s[82:83], vcc
        global_load_dword v34, v[32:33], off
        s_mov_b64 exec, s[82:83]
        ''')
        issued.append((('warm', tagn), 1))
    def w_resident(i):
        for own in range(2):
            a(f's_add_u32 {sT0}, {sROT}, {i + NP * own}')
            a(f's_and_b32 {sT0}, {sT0}, 31')
            a(f's_lshl_b32 {sT0}, {sT0}, 14')
            a(f's_add_u32 m0, {sWL}, {WSLOT[i]*SLOT - (0 if own else 4 * 2048)}')
            a(f's_add_u32 {sT0}, {sT0}, {sWG}')
            if not own: a(f's_sub_u32 {sT0}, {sT0}, 512')
            emit([w_dma(0), w_dma(1)])
        issued.append((('w', i), 4))
    def pw_issue(g):
        for j in range(2):
            a(f's_add_u32 {sT0}, {sROT}, {2*g + j}')
            a(f's_and_b32 {sT0}, {sT0}, 31')
            a(f's_lshl_b32 {sT0}, {sT0}, 14')
            a(f's_add_u32 m0, {sBASE}, {(8 + (g & 1))*SLOT + 2048*j}')
            a(f's_add_u32 {sT0}, {sT0}, {sWG}')
            emit([w_dma(0), w_dma(1)])
        issued.append((('pw', g), 4))
    def pw_read(g):
        for j in range(2):
            for nb in range(2):
                for u in range(2):
                    r = PK(2 * g + j, nb) + 2 * u
                    a(f'ds_read_b64_tr_b16 v[{r}:{r+1}], v{122 + nb} offset:{(g & 1)*SLOT + 2048*j + 512*u}')
    def wait_for(*items):
        names = [x[0] for x in issued]
        k = max(names.index(it) for it in items)
        a(f's_waitcnt vmcnt({sum(x[1] for x in issued[k+1:])})')
    warm('L_start', 'L_end', 0)
    a(f'''
    s_mov_b32 {sC}, 99
    s_mov_b32 {sCHK}, 99
    s_lshl_b32 {sT0}, {sG}, 3
    v_mov_b32 v30, {sT0}
    v_mov_b32 v29, 8
    s_cmp_eq_u32 {sWAVE}, 4
    s_cbranch_scc0 L_noclear
    s_add_u32 {sT0}, {sT0}, {sHKV}
    s_lshl_b32 {sT0}, {sT0}, 7
    s_add_u32 {sT0}, {sT0}, {FLAG_OFF}
    s_and_b32 {sC}, {sB}, 3
    s_add_u32 {sC}, {sC}, 1
    s_add_u32 {sCHK}, {sC}, 9
    v_mov_b32 v27, 0
    v_mov_b32 v28, 1
    v_lshlrev_b32 v26, 2, v0
    s_mov_b64 exec, 0xff
    buffer_store_dword v27, v26, {WS_}, {sT0} offen sc1
    s_mov_b64 exec, -1
    L_noclear:
    ''')
    if cfg.hprio != 1: a(f's_setprio {cfg.hprio}')
    need = lambda k: 0 if k == 0 else min(31, 2 * k)
    free_at = lambda it: it // 2 + 1 if it % 2 == 0 else it // 2 + 2
    slot_free = lambda j: 0 if j < 10 else free_at(j - 10 if j < 18 else j - 8)
    MERGE = 17
    base_issued = list(issued)
    late_addr = oproj_addr + [f'v_add_u32 v11, {sBASE}, v4', f'v_add_u32 v11, {6*SLOT}, v11',
                              f'v_add_u32 v122, {sBASE}, v121', f'v_add_u32 v122, {8*SLOT}, v122', 'v_xor_b32 v123, 64, v122']
    a(f's_cmp_eq_u32 {sGRP}, 0\ns_cbranch_scc0 L_hkv')
    def barrier_step(k, grp, st):
        gp = k - 2 - cfg.park0
        if 0 <= gp < cfg.park:
            wait_for(('kv', need(k)), ('pw', gp))
            pw_read(gp)
            a('s_waitcnt lgkmcnt(0)')
        else:
            wait_for(('kv', need(k)))
        if grp == 1 and k == 1 and cfg.g1_pre > 6: a('s_waitcnt lgkmcnt(0)')
        a(f's_barrier   ; k{k}')
        stamp(8 + k)
        if 2 <= k <= 15: cstamp(23 + k)
        if grp == 1 and k == 0 and cfg.g1_pre > 8:
            a('s_setprio 0')
            for j in range(8, cfg.g1_pre): rb_write(j)
            a(f's_setprio {cfg.hprio}')
        if 0 <= k - cfg.park0 < cfg.park: pw_issue(k - cfg.park0)
        while st['nxt'] < 32:
            j = st['nxt']
            if slot_free(j) > k or j > need(k + 1) + (cfg.g1_fly if grp else cfg.g0_fly if k < cfg.g0_sw else cfg.g0_fly2): break
            kv_issue(j); st['nxt'] += 1
        for wi, at in enumerate(cfg.w_at):
            if at == k: w_resident(wi)
        if k == 11: warm('L_last', 'L_end', 1)
        if 1 <= k <= 4:
            lab = a.label('L_na')
            a(f's_cmp_eq_u32 {sC}, {k}\ns_cbranch_scc0 {lab}\ns_mov_b64 exec, 1')
            a(f'buffer_atomic_add v28, v30, {DBG_}, 0 offen sc1\ns_mov_b64 exec, -1\n{lab}:')
        if 10 <= k <= 13:
            lab = a.label('L_nc')
            a(f's_cmp_eq_u32 {sCHK}, {k}\ns_cbranch_scc0 {lab}')
            a(f'buffer_load_dword v29, v30, {DBG_}, 0 offen sc1\n{lab}:')
    states = []
    for grp in (0, 1):
        issued[:] = base_issued
        st = {}
        if grp == 0:
            for j in range(cfg.g0_pre): kv_issue(j)
            emit(late_addr)
            a(f's_waitcnt vmcnt({sum(x[1] for x in issued)})')
            a('s_barrier   ; Bx')
            stamp(1)
            a('s_barrier   ; Bx2')
            a('s_barrier   ; Bw')
            a('s_barrier   ; Bk')
            top = min(6, max(5, cfg.g0_pre + 4))
            for j in range(cfg.g0_pre, min(top, cfg.g0_pre + 3)): kv_issue(j)
            a('s_barrier   ; Bq')
            for j in range(cfg.g0_pre + 3, top): kv_issue(j)
            st['nxt'] = top
            stamp(2)
        else:
            a('L_hkv:')
            for j in range(cfg.g1_first): kv_issue(j)
            emit(late_addr)
            a(f's_waitcnt vmcnt({sum(x[1] for x in issued)})')
            a('s_barrier   ; Bx')
            stamp(1)
            for j in range(cfg.g1_first, 4): kv_issue(j)
            a('s_barrier   ; Bx2')
            for j in range(4, cfg.g1_pre): kv_issue(j, j >= 6)
            stamp(2)
            a('s_barrier   ; Bw')
            a('s_barrier   ; Bk')
            a('s_waitcnt vmcnt(0)')
            a('s_barrier   ; Bq')
            for j in range(6, min(8, cfg.g1_pre)): rb_write(j)
            st['nxt'] = cfg.g1_pre
        for k in range(MERGE):
            barrier_step(k, grp, st)
        assert st['nxt'] == 32
        if grp == 0: a('s_branch L_hmerge')
    a('L_hmerge:')
    for k in range(MERGE, 17):
        barrier_step(k, 1, st)
    a(f'''
    s_mov_b32 {sSPIN}, 0
    L_chk:
    s_waitcnt vmcnt(0)
    v_cmp_gt_u32 vcc, 8, v29
    s_cbranch_vccz L_chkd
    s_add_u32 {sSPIN}, {sSPIN}, 1
    s_cmp_gt_u32 {sSPIN}, 0x40000
    s_cbranch_scc1 L_chkd
    buffer_load_dword v29, v30, {DBG_}, 0 offen sc1
    s_branch L_chk
    L_chkd:
    s_setprio 0
    s_barrier   ; Bo
    ''')
    stamp(6)
    assert NP >= 4
    emit(w_first(NP + 7))
    n = 32 - NP
    nis = [7]
    def refill(upto):
        l = []
        while nis[0] <= min(upto, n - 1):
            l += w_pre(nis[0]) + [w_dma(0, sWO), w_dma(1, sWO)]; nis[0] += 1
        return l
    for idx in range(2): a(bread(idx))
    for idx in range(32):
        m = idx - NP
        if idx in (4, 8, 12, 16, 20, 24, 28): stamp(47 + idx // 4)
        nx2 = idx + 2
        if nx2 < 32:
            if nx2 - NP >= 7: a(f's_waitcnt vmcnt({2*(nis[0] - 1 - (nx2 - NP))})')
            a(bread(nx2))
            if nx2 >= NP: emit(areads(nx2, nx2 - NP))
        cnt = lambda i: 0 if i >= 32 else (5 if i >= NP else 1)
        a(f's_waitcnt lgkmcnt({cnt(idx + 1) + cnt(idx + 2)})')
        a(o_mfma(idx, 0, AF(idx, 0) if m >= 0 else PK(idx, 0), idx == 0))
        a(o_mfma(idx, 1, AF(idx, 1) if m >= 0 else PK(idx, 1), idx == 0))
        if m >= cfg.h_start - 1: emit(refill(max(m + 3, min(m + 3 + cfg.h_ahead, m + 8))))
        assert m + 3 < 7 or nis[0] > min(m + 3, n - 1)

    a('L_pub:')
    stamp(7)
    if cfg.bf16p:
        a(f"""
        s_lshl_b32 {sT0}, {sG}, 3
        s_add_u32 {sT1}, {sT0}, {sWAVE}
        s_lshl_b32 {sT2}, {sT1}, 3
        s_add_u32 {sT2}, {sT2}, {sHKV}
        s_lshl_b32 {sT2}, {sT2}, 12
        s_lshl_b32 {sT1}, {sT1}, 7
        s_add_u32 {sT1}, {sT1}, {FLAG_OFF}
        s_lshl_b32 {sC}, {sHKV}, 2
        s_add_u32 {sT1}, {sT1}, {sC}
        s_add_u32 {sT0}, {sT0}, {sHKV}        ; g*8 + own
        v_mov_b32 v10, 1
        v_mov_b32 v11, 0
        """)
        for pc in range(4):
            for d in range(4):
                a(f'v_cvt_pk_bf16_f32 v{96+4*pc+d}, v{64+8*pc+2*d}, v{65+8*pc+2*d}')
            a(f'buffer_store_dwordx4 v[{96+4*pc}:{99+4*pc}], v4, {WS_}, {sT2} offen offset:{1024*pc} sc1')
        a(f"""
        v_lshlrev_b32 v12, 2, v0
        s_lshl_b32 {sCHK}, {sT0}, 7
        s_add_u32 {sCHK}, {sCHK}, {FLAG_OFF}
        s_lshl_b32 {sT0}, {sT0}, 15
        s_lshr_b32 {sC}, {sWAVE}, 1
        s_lshl_b32 {sT2}, {sC}, 10
        s_add_u32 {sT0}, {sT0}, {sT2}
        s_and_b32 {sT2}, {sWAVE}, 1
        s_lshl_b32 {sCNT}, {sT2}, 8
        s_add_u32 {sT0}, {sT0}, {sCNT}
        v_bfe_u32 v14, v0, 4, 1
        v_lshlrev_b32 v15, 4, v2
        v_lshl_add_u32 v15, v14, 9, v15
        v_lshl_add_u32 v15, v3, 12, v15
        v_lshlrev_b32 v20, 11, v2
        v_lshl_add_u32 v20, v14, 4, v20
        v_lshl_add_u32 v20, v3, 3, v20
        s_lshl_b32 {sC}, {sC}, 5
        s_lshl_b32 {sT2}, {sT2}, 15
        s_add_u32 {sC}, {sC}, {sT2}
        s_waitcnt vmcnt(0)
        s_mov_b64 exec, 1
        buffer_store_dword v10, v11, {WS_}, {sT1} offen sc1
        s_mov_b64 exec, 0xff
        s_mov_b32 {sSPIN}, 0
        """)
        stamp(56)
        a(f"""
        L_poll:
        buffer_load_dword v13, v12, {WS_}, {sCHK} offen sc1
        s_add_u32 {sSPIN}, {sSPIN}, 1
        s_cmp_gt_u32 {sSPIN}, 0x40000
        s_cbranch_scc1 L_polled
        s_waitcnt vmcnt(0)
        v_cmp_ne_u32 vcc, 1, v13
        s_cbranch_vccnz L_poll
        L_polled:
        s_mov_b64 exec, -1
        """)
        stamp(57)
        for p in range(4):
            a(f'buffer_load_dwordx4 v[{96+4*p}:{99+4*p}], v15, {WS_}, {sT0} offen sc1')
            if p < 3: a(f's_add_u32 {sT0}, {sT0}, 8192')
        a(f's_mov_b32 {sT1}, 0xffff0000')
        for p in range(4):
            a(f's_waitcnt vmcnt({3-p})')
            for d in range(4):
                lo, hi = (64 + 2 * d, 65 + 2 * d) if p == 0 else (72 + 2 * d, 73 + 2 * d)
                a(f'v_lshlrev_b32 v{lo}, 16, v{96+4*p+d}')
                a(f'v_and_b32 v{hi}, {sT1}, v{96+4*p+d}')
            if p:
                for e in range(8):
                    a(f'v_add_f32 v{64+e}, v{64+e}, v{72+e}')
        a('s_nop 0')
        for e in range(4):
            a(f'v_permlane32_swap_b32 v{64+e}, v{68+e}')
        for e in range(4):
            a(f'v_add_f32 v{64+e}, v{64+e}, v{68+e}')
        a(f"""
        v_cvt_pk_bf16_f32 v96, v64, v65
        v_cvt_pk_bf16_f32 v97, v66, v67
        buffer_store_dwordx2 v[96:97], v20, {OUT_}, {sC} offen
        """)
    else:
        a(f'''
        s_lshl_b32 {sT0}, {sG}, 3
        s_add_u32 {sT1}, {sT0}, {sWAVE}
        s_lshl_b32 {sT2}, {sT1}, 3
        s_add_u32 {sT2}, {sT2}, {sHKV}
        s_lshl_b32 {sT2}, {sT2}, 13
        s_add_u32 {sCNT}, {sT2}, 4096
        s_lshl_b32 {sT1}, {sT1}, 7
        s_add_u32 {sT1}, {sT1}, {FLAG_OFF}
        s_lshl_b32 {sC}, {sHKV}, 2
        s_add_u32 {sT1}, {sT1}, {sC}
        s_add_u32 {sT0}, {sT0}, {sHKV}        ; g*8 + own
        v_mov_b32 v10, 1
        v_mov_b32 v11, 0
        v_lshlrev_b32 v12, 2, v0
        ''')
        for pc in range(8):
            so = sT2 if pc < 4 else sCNT
            a(f'buffer_store_dwordx4 v[{64+4*pc}:{67+4*pc}], v4, {WS_}, {so} offen offset:{1024*(pc % 4)} sc1')
        a(f'''
        s_lshl_b32 {sCHK}, {sT0}, 7
        s_add_u32 {sCHK}, {sCHK}, {FLAG_OFF}
        s_lshl_b32 {sT0}, {sT0}, 16
        s_lshl_b32 {sC}, {sWAVE}, 10
        s_add_u32 {sT0}, {sT0}, {sC}
        s_waitcnt vmcnt(0)
        s_mov_b64 exec, 1
        buffer_store_dword v10, v11, {WS_}, {sT1} offen sc1
        s_mov_b64 exec, 0xff
        s_mov_b32 {sSPIN}, 0
        ''')
        stamp(56)
        a(f'''
        L_poll:
        buffer_load_dword v13, v12, {WS_}, {sCHK} offen sc1
        s_add_u32 {sSPIN}, {sSPIN}, 1
        s_cmp_gt_u32 {sSPIN}, 0x40000
        s_cbranch_scc1 L_polled
        s_waitcnt vmcnt(0)
        v_cmp_ne_u32 vcc, 1, v13
        s_cbranch_vccnz L_poll
        L_polled:
        s_mov_b64 exec, -1
        ''')
        stamp(57)
        for p in range(8):
            a(f'buffer_load_dwordx4 v[{96+4*p}:{99+4*p}], v4, {WS_}, {sT0} offen sc1')
            if p < 7: a(f's_add_u32 {sT0}, {sT0}, 8192')
        a(f'''
        v_and_b32 v20, 31, v0
        v_lshlrev_b32 v20, 11, v20
        v_lshl_add_u32 v20, v3, 4, v20
        s_lshr_b32 {sT1}, {sWAVE}, 1
        s_lshl_b32 {sT1}, {sT1}, 5
        s_and_b32 {sT2}, {sWAVE}, 1
        s_lshl_b32 {sT2}, {sT2}, 3
        s_add_u32 {sT1}, {sT1}, {sT2}
        ''')
        for p in range(1, 8):
            a(f's_waitcnt vmcnt({7-p})')
            for d in range(4):
                a(f'v_add_f32 v{96+d}, v{96+d}, v{96+4*p+d}')
        a(f'''
        v_cvt_pk_bf16_f32 v96, v96, v97
        v_cvt_pk_bf16_f32 v97, v98, v99
        buffer_store_dwordx2 v[96:97], v20, {OUT_}, {sT1} offen
        ''')
    if cfg.stamps:
        stamp(58)
        a('s_waitcnt vmcnt(0)')
        stamp(59); cstamp(61)
        a(f'''
        s_add_u32 s28, s28, {STAMP_OFF}
        s_addc_u32 s29, s29, 0
        s_lshl_b32 {sT0}, s2, 3
        s_add_u32 {sT0}, {sT0}, {sWAVE}
        s_lshl_b32 {sT0}, {sT0}, 8
        v_lshl_add_u32 v13, v0, 2, {sT0}
        global_store_dword v13, {vSTAMP}, s[28:29]
        ''')
    a('L_end:')
    a('s_endpgm')
    for tag, sb in (('A', 1), ('B', 0), ('D', 1), ('E', 0), ('C', 1)):
        a(f"""
        L_slow{tag}:
        v_mov_b32 v15, v14
        s_nop 1
        v_permlane32_swap_b32 v14, v15
        v_max3_f32 v14, v14, v15, 0
        v_exp_f32 v15, -v14
        """)
        for r in range(16):
            a(f'v_sub_f32 v{S(sb)+r}, v{S(sb)+r}, v14')
        for r in range(16):
            a(f'v_sub_f32 v{CB+r}, v{CB+r}, v14')
        a(f'v_mul_f32 v{LA}, v{LA}, v15')
        if tag == 'C':
            for r in range(16):
                a(f'v_mul_f32 v{S(0)+r}, v{S(0)+r}, v15')
        for r in range(64):
            a(f'v_mul_f32 v{128+r}, v{128+r}, v15')
        a('s_nop 0')
        a(f's_branch L_back{tag}')

    return header([f'; @launch grid=(256,1,1) block=(512,1,1) lds={10*SLOT}']) + kernel_open(kn) + a.text() + descriptor(kn, 256, 102)

if __name__ == '__main__':
    out = sys.argv[1]
    cfg = Cfg()
    for kv in sys.argv[2:]:
        k, v = kv.split('=', 1)
        assert hasattr(cfg, k), k
        setattr(cfg, k, eval(v))
    t = gen(cfg)
    n = hazard.check(t)
    open(out, 'w').write(t)
    print(out, 'hazards:', n, 'lines:', t.count('\n'))
```

```python
import sys, struct
from asmlib import *
import hazard

def f32(x):
    return struct.unpack('<I', struct.pack('<f', x))[0]

SLOT = 16384
FLAG_OFF = 16 * 1024 * 1024
STAMP_OFF = 128 * 1024 * 1024
OBASE = 3 * SLOT
WSLOT = [8, 9, 6, 7, 0, 1, 2, 5]

def slot_of(j):
    return j if j < 10 else (j - 10) % 8

class Cfg:
    stamps = 0
    wq_pol = ''
    wo_pol = ''
    x_pol = ' nt'
    kv_pol = ' nt'
    w_at = (13, 14, 14, 14, 15, 15, 15)
    warm = True
    wq_first = 2
    stagger = 1
    g0_fly = 4
    g0_fly2 = 1
    g0_sw = 5
    g0_sw2 = 99
    w_at0 = None
    g0_pre = 0
    g1_pre = 10
    hprio = 1
    park = 8
    poll2 = False
    smem = (0, 0)
    wq6 = False
    rb_pre = 2
    out_pol = ''
    near_kv = True
    early = True
    park0 = 5
    T = 8.0
    kvrot = ''
    nomfma = False
    h_ahead = 4
    h_start = 5
    wq_both = False
    g1_first = 2
    g1_fly = 3
    bf16p = True

def gen(cfg):
    a = Asm()
    kn = NAME + '_kernel'
    def emit(l):
        for x in l: a(x)
    sWAVE, sHKV, sBR, sB, sG, sROT = 's30', 's31', 's32', 's33', 's34', 's35'
    K_, V_, X_, WQ_, WO_, WS_, OUT_, DBG_ = ['s[%d:%d]' % (36 + 4 * i, 39 + 4 * i) for i in range(8)]
    sT0, sT1, sT2, sCNT, sBASE, sLIM, sC, sCHK, sHW = 's68', 's69', 's70', 's71', 's72', 's73', 's74', 's75', 's76'
    sSPIN, sVB, sGRP, sWL, sWG = 's77', 's78', 's79', 's84', 's85'
    vSTAMP = 'v31'
    NP = 2 * cfg.park
    def stamp(i):
        if not cfg.stamps or (cfg.stamps == 2 and i not in (0, 59)) or (cfg.stamps == 3 and i not in (0, 8, 24, 6, 7, 56, 57, 58, 59)): return
        a('s_memrealtime s[100:101]')
        a('s_waitcnt lgkmcnt(0)')
        a(f'v_writelane_b32 {vSTAMP}, s100, {i}')
    def cstamp(i):
        if cfg.stamps != 1: return
        a('s_memtime s[100:101]')
        a('s_waitcnt lgkmcnt(0)')
        a(f'v_writelane_b32 {vSTAMP}, s100, {i}')

    a(f'''
    L_start:
    s_cmp_ge_u32 s2, 256
    s_cbranch_scc1 L_end
    s_load_dwordx16 s[4:19], s[0:1], 0
    s_load_dwordx8 s[20:27], s[0:1], 64
    s_load_dwordx2 s[28:29], s[0:1], 96
    v_lshrrev_b32 v1, 6, v0
    v_and_b32 v0, 63, v0
    v_readfirstlane_b32 {sWAVE}, v1
    s_and_b32 {sHKV}, s2, 3
    s_lshl_b32 {sHKV}, {sHKV}, 1
    s_bfe_u32 {sBR}, s2, 0x10003
    s_add_u32 {sHKV}, {sHKV}, {sBR}
    s_bfe_u32 {sBR}, s2, 0x10002
    s_lshr_b32 {sB}, s2, 4
    s_lshl_b32 {sG}, {sBR}, 4
    s_add_u32 {sG}, {sG}, {sB}
    s_lshl_b32 {sROT}, {sB}, 1
    ''')
    a({0: f's_mov_b32 {sGRP}, 0', 1: f's_and_b32 {sGRP}, {sHKV}, 1', 2: f's_mov_b32 {sGRP}, 1'}[cfg.stagger])
    if cfg.stamps:
        a(f'v_mov_b32 {vSTAMP}, 0')
    a(f'''
    v_lshrrev_b32 v1, 4, v0          ; lane>>4
    v_and_b32 v2, 15, v0             ; lane&15
    v_lshrrev_b32 v3, 5, v0          ; h2
    v_lshlrev_b32 v4, 4, v0          ; lane*16
    s_lshl_b32 {sT0}, {sB}, 3
    s_add_u32 {sT0}, {sT0}, {sHKV}
    s_lshl_b32 {sT0}, {sT0}, 18
    s_lshl_b32 {sT1}, {sB}, 15
    s_lshl_b32 {sT2}, {sHKV}, 10
    s_mov_b32 s38, 262144
    s_mov_b32 s39, 0x20000
    s_mov_b32 s42, 262144
    s_mov_b32 s43, 0x20000
    s_mov_b32 s46, 32768
    s_mov_b32 s47, 0x20000
    s_sub_u32 s50, 0x400000, {sT2}
    s_mov_b32 s51, 0x20000
    s_mov_b32 s54, 524288
    s_mov_b32 s55, 0x20000
    s_mov_b32 s58, {FLAG_OFF + 32768}
    s_mov_b32 s59, 0x20000
    s_mov_b32 s63, 0x20000
    s_mov_b32 s66, 256
    s_mov_b32 s67, 0x20000
    s_lshl_b32 {sWL}, {sWAVE}, 11
    s_lshl_b32 {sWG}, {sWAVE}, 7
    s_waitcnt lgkmcnt(0)
    ''')
    stamp(0); cstamp(60)
    a(f'''
    s_cmp_eq_u32 {sBR}, 0
    s_cselect_b32 s36, s6, s16
    s_cselect_b32 s37, s7, s17
    s_cselect_b32 s40, s8, s18
    s_cselect_b32 s41, s9, s19
    s_cselect_b32 s44, s4, s14
    s_cselect_b32 s45, s5, s15
    s_cselect_b32 s48, s10, s20
    s_cselect_b32 s49, s11, s21
    s_cselect_b32 s52, s12, s22
    s_cselect_b32 s53, s13, s23
    s_add_u32 s36, s36, {sT0}
    s_addc_u32 s37, s37, 0
    s_add_u32 s40, s40, {sT0}
    s_addc_u32 s41, s41, 0
    s_add_u32 s44, s44, {sT1}
    s_addc_u32 s45, s45, 0
    s_add_u32 s48, s48, {sT2}
    s_addc_u32 s49, s49, 0
    s_lshl_b32 {sT0}, {sHKV}, 19
    s_add_u32 s52, s52, {sT0}
    s_addc_u32 s53, s53, 0
    s_mov_b32 s56, s28
    s_mov_b32 s57, s29
    s_lshl_b32 {sT0}, {sBR}, 10
    s_lshl_b32 {sT1}, {sHKV}, 7
    s_add_u32 {sT0}, {sT0}, {sT1}
    s_sub_u32 s62, 65536, {sT0}
    s_lshl_b32 {sT1}, {sB}, 16
    s_add_u32 {sT0}, {sT0}, {sT1}
    s_add_u32 s60, s24, {sT0}
    s_addc_u32 s61, s25, 0
    s_mov_b32 s64, s26
    s_mov_b32 s65, s27
    s_cmp_lt_u32 {sWAVE}, 4
    s_cbranch_scc1 L_compute
    ''')
    a('s_setprio 1')
    vKD = ['v5', 'v6', 'v7', 'v8']; vVD = 'v9'
    a(f'''
    s_sub_u32 {sHW}, {sWAVE}, 4
    s_lshl_b32 {sT1}, {sROT}, 1
    s_lshl_b32 {sT2}, {sHW}, 3
    ''')
    for jq in range(8):
        a(f'''
        s_add_u32 {sT0}, {sT2}, {jq}
        s_and_b32 {sCNT}, {sT0}, 15
        v_xor_b32 v{16+jq}, {sCNT}, v0
        v_add_u32 v{16+jq}, {sT1}, v{16+jq}
        s_lshl_b32 {sT0}, {sT0}, 10
        v_and_b32 v{16+jq}, 63, v{16+jq}
        s_add_u32 m0, {sT0}, {4*SLOT}
        v_lshlrev_b32 v{16+jq}, 4, v{16+jq}
        buffer_load_dwordx4 v{16+jq}, {X_}, {sT0} offen{cfg.x_pol} lds
        ''')
    a(f'''
    v_xor_b32 v10, v2, v1
    v_lshlrev_b32 v10, 4, v10
    v_lshl_add_u32 v5, v1, 8, v10
    v_xor_b32 v6, 64, v5
    v_xor_b32 v7, 128, v5
    v_xor_b32 v8, 192, v5
    v_lshlrev_b32 v10, 2, v1
    v_xor_b32 v10, v10, v2
    v_lshlrev_b32 v10, 4, v10
    v_lshl_add_u32 v9, v1, 8, v10
    s_lshl_b32 {sBASE}, {sHW}, 12
    ''')
    if cfg.kvrot:
        a(cfg.kvrot.replace('B', sB).replace('H', sHKV).replace('R', sBR).replace(';', '\n'))
        a(f's_and_b32 s86, s86, 15\ns_lshl_b32 s86, s86, 14\ns_add_u32 s86, s86, {sBASE}')
    if cfg.near_kv:
        a(f's_cmp_eq_u32 {sGRP}, 0\ns_cbranch_scc1 L_helper')
        for j in range(cfg.g1_first):
            a(f's_add_u32 m0, {sBASE}, {j*SLOT}')
            a(f's_add_u32 {sT0}, {sBASE}, {(j//2)*SLOT}')
            for jj in range(4):
                va, srd = (vKD[jj], K_) if j % 2 == 0 else (vVD, V_)
                a(f'buffer_load_dwordx4 {va}, {srd}, {sT0} offen offset:{1024*jj}{cfg.kv_pol} lds')
    a('s_branch L_helper')
    a('L_compute:')

    vWD = ['v112', 'v113']
    vWA = lambda region, nb: f'v{114 + 2 * region + nb}'
    vOA, vPA0 = 'v120', 121
    oproj_addr = f'''
    v_lshrrev_b32 v112, 3, v0
    v_and_b32 v113, 7, v0
    v_bfe_u32 v114, v0, 4, 1
    v_lshlrev_b32 v114, 2, v114
    v_xor_b32 v113, v113, v114
    v_lshlrev_b32 v113, 4, v113
    v_lshl_add_u32 v112, v112, 10, v113
    v_add_u32 v113, 7168, v112
    v_and_b32 v114, 1, v0
    v_bfe_u32 v115, v0, 1, 1
    v_lshlrev_b32 v114, 4, v114
    v_lshl_add_u32 v114, v115, 3, v114  ; pi*8
    v_and_b32 v115, 1, v1
    v_lshl_add_u32 v114, v115, 5, v114  ; + g*32
    v_lshl_add_u32 v114, v3, 10, v114   ; + h2*1024
    v_bfe_u32 v115, v0, 2, 2
    v_lshl_add_u32 v114, v115, 7, v114  ; + r*128
    v_bfe_u32 v115, v0, 3, 1
    v_lshl_add_u32 v121, v115, 6, v114  ; + (r>>1)*64
    v_add_u32 v114, {sWL}, v121
    v_xor_b32 v115, 64, v114
    v_add_u32 v116, {4*SLOT}, v114
    v_add_u32 v117, {4*SLOT}, v115
    v_add_u32 v118, {8*SLOT}, v114
    v_add_u32 v119, {8*SLOT}, v115
    v_add_u32 v120, {OBASE}, v4
    '''.strip().split('\n')

    vWQ = ['v5', 'v6', 'v7', 'v8']
    a(f'''
    v_lshlrev_b32 v9, 2, v1
    v_xor_b32 v9, v9, v2
    v_lshlrev_b32 v9, 4, v9
    v_lshl_add_u32 v9, v1, 13, v9
    s_lshl_b32 {sT0}, {sWAVE}, 8
    v_add_u32 v5, {sT0}, v9
    v_add_u32 v6, {31744}, v5
    v_add_u32 v7, {2*31744}, v5
    v_add_u32 v8, {3*31744}, v5
    s_add_u32 {sBASE}, {sWAVE}, 6
    s_lshl_b32 {sBASE}, {sBASE}, 14
    ''')
    NQ = 6 if cfg.wq6 else 4
    a(f's_lshl_b32 {sVB}, {sWAVE}, 13\ns_add_u32 {sVB}, {sVB}, {4*SLOT}')
    def wq_pre(i):
        return [f's_add_u32 {sT0}, {sROT}, {i}', f's_and_b32 {sT0}, {sT0}, 31',
                (f's_add_u32 m0, {sBASE}, {(i % NQ) * 4096}' if i % NQ < 4 else f's_add_u32 m0, {sVB}, {(i % NQ - 4) * 4096}'),
                f's_lshl_b32 {sT0}, {sT0}, 17']
    def wq_dma(j):
        return f'buffer_load_dwordx4 {vWQ[j]}, {WQ_}, {sT0} offen offset:{1024*j}{cfg.wq_pol} lds'
    def wq_issue(i):
        emit(wq_pre(i)); emit([wq_dma(j) for j in range(4)])
    if not cfg.wq_both: a(f's_cmp_eq_u32 {sGRP}, 0\ns_cbranch_scc0 L_nowq0')
    for i in range(cfg.wq_first): wq_issue(i)
    a('L_nowq0:')
    a(f'''
    v_bfe_u32 v13, v0, 2, 2          ; r
    v_and_b32 v14, 1, v0
    v_bfe_u32 v15, v0, 1, 1
    v_lshlrev_b32 v14, 4, v14
    v_lshl_add_u32 v14, v15, 3, v14  ; pi*8
    v_and_b32 v15, 1, v1             ; g
    v_lshl_add_u32 v14, v15, 5, v14  ; g*32 + pi*8
    v_lshlrev_b32 v12, 11, v3        ; 8*h2*256
    v_mul_u32_u24 v15, 320, v13      ; r*256 + r*64
    v_add3_u32 v12, v12, v15, v14
    v_add_u32 v16, {sBASE}, v12
    v_xor_b32 v17, 64, v16
    v_xor_b32 v18, 128, v16
    v_xor_b32 v19, 192, v16
    v_and_b32 v20, 31, v0            ; q
    v_xor_b32 v21, v3, v2            ; h2 ^ (q&15)
    v_lshlrev_b32 v21, 4, v21
    v_lshl_add_u32 v21, v20, 10, v21
    v_add_u32 v21, {4*SLOT}, v21
    ''')
    vTQ = ['v16', 'v17', 'v18', 'v19']
    vTQ2 = ['v21', 'v22', 'v23', 'v24']
    XF = lambda i: 128 + 4 * i
    QA = lambda blk: 64 + 16 * blk
    BUF = lambda i, blk: 32 + 16 * (i & 1) + 4 * blk
    OA = lambda blk: 128 + 16 * blk
    for m in range(1, 8):
        a(f'v_xor_b32 v{21+m}, {32*m}, v21')
    vKL = 'v29'
    a(f'''
    v_bfe_u32 v13, v0, 2, 1
    v_bfe_u32 v14, v0, 3, 1
    v_and_b32 v15, 0x13, v0
    v_lshl_add_u32 v15, v13, 3, v15
    v_lshl_add_u32 v15, v14, 2, v15
    v_and_b32 v13, 15, v15
    v_xor_b32 v13, v13, v3
    v_lshlrev_b32 v13, 4, v13
    v_lshl_add_u32 {vKL}, v15, 8, v13
    v_and_b32 v13, 3, v0              ; row-sum operand: ones where row%4 == 0 and bit 2 of the row == bit 0 of the k group
    v_bfe_u32 v14, v0, 2, 1
    v_bfe_u32 v15, v0, 4, 1
    v_xor_b32 v14, v14, v15
    v_or_b32 v13, v13, v14
    v_cmp_eq_u32 vcc, 0, v13
    v_mov_b32 v14, 0x3f803f80
    v_mov_b32 v30, {hex(f32(1.4426950408889634 / 128 ** 0.5))}
    v_cndmask_b32 v10, 0, v14, vcc
    s_mov_b32 {sC}, {hex(f32(cfg.T))}
    s_barrier   ; Bx
    ''')
    stamp(1)
    for i in range(32):
        a(f'ds_read_b128 v[{XF(i)}:{XF(i)+3}], v{21 + (i & 7)} offset:{256*(i >> 3)}')
        if i in (14, 22, 30): a('s_waitcnt lgkmcnt(7)')
    a('s_waitcnt lgkmcnt(0)')
    a('s_barrier   ; Bx2')
    a('s_barrier   ; Bw')
    stamp(2)
    if not cfg.wq_both:
        a(f's_cmp_eq_u32 {sGRP}, 0\ns_cbranch_scc1 L_wq1')
        for i in range(cfg.wq_first): wq_issue(i)
        a('L_wq1:')
    for i in range(cfg.wq_first, NQ - 1): wq_issue(i)
    if cfg.wq6:
        a(f'v_add_u32 v21, {sVB}, v12\nv_xor_b32 v22, 64, v21\nv_xor_b32 v23, 128, v21\nv_xor_b32 v24, 192, v21')
    def q_mfma(i, blk):
        c = '0' if i == 0 else f'v[{QA(blk)}:{QA(blk)+15}]'
        return f'v_mfma_f32_32x32x16_bf16 v[{QA(blk)}:{QA(blk)+15}], v[{BUF(i,blk)}:{BUF(i,blk)+3}], v[{XF(i)}:{XF(i)+3}], {c}'
    for i in range(32):
        a(f's_waitcnt vmcnt({4*(min(31, i + NQ - 2) - i)})')
        if i == 0: stamp(3)
        if i in (4, 8, 16, 24): stamp(40 + i // 4)
        for blk in range(4):
            for u in range(2):
                r = BUF(i, blk) + 2 * u
                a(f'ds_read_b64_tr_b16 v[{r}:{r+1}], {(vTQ if i % NQ < 4 else vTQ2)[blk]} offset:{(i % NQ % 4)*4096 + 1024*u}')
        dma = i + NQ - 1 < 32
        if dma: emit(wq_pre(i + NQ - 1))
        for blk in range(4):
            if i > 0: a(q_mfma(i - 1, blk))
            if dma: a(wq_dma(blk))
            if 18 <= i < 26:
                for z in range(2):
                    a(f'v_mov_b32 v{128 + 8*(i-18) + 2*blk + z}, 0')
        if i + NQ - 1 == 31: a('s_barrier   ; Bk')
        a('s_waitcnt lgkmcnt(0)')
    a('s_barrier   ; Bq')
    for blk in range(4): a(q_mfma(31, blk))
    stamp(4)
    a(f"""
    s_mov_b32 {sCNT}, 13
    s_mov_b32 {sBASE}, 0
    s_mov_b32 {sLIM}, {10*SLOT}
    """)
    QF = lambda ks: 32 + 4 * ks
    S = lambda kb: 64 + 16 * kb
    P = lambda kk: 96 + 4 * kk if kk < 2 else 192 + 4 * (kk - 2)
    CB = 112
    LA, ON = 104, 108
    KF = lambda ks: 192 + 4 * ks
    VF = lambda kk, blk: 224 + 16 * (kk & 1) + 4 * blk
    vKA = ['v%d' % (16 + i) for i in range(8)]
    vVA = ['v24', 'v25', 'v26', 'v27']
    def qk(sb, ks, first=False):
        c = ('0' if first else f'v[{CB}:{CB+15}]') if ks == 0 else f'v[{S(sb)}:{S(sb)+15}]'
        return f'v_mfma_f32_32x32x16_bf16 v[{S(sb)}:{S(sb)+15}], v[{KF(ks)}:{KF(ks)+3}], v[{QF(ks)}:{QF(ks)+3}], {c}'
    def pv(kk, blk, pk):
        return f'v_mfma_f32_32x32x16_bf16 v[{OA(blk)}:{OA(blk)+15}], v[{VF(kk,blk)}:{VF(kk,blk)+3}], v[{P(pk)}:{P(pk)+3}], v[{OA(blk)}:{OA(blk)+15}]'
    rsum = lambda pk: f'v_mfma_f32_16x16x32_bf16 v[{LA}:{LA+3}], v[{ON}:{ON+3}], v[{P(pk)}:{P(pk)+3}], v[{LA}:{LA+3}]'
    kread = lambda ks, kb: f'ds_read_b128 v[{KF(ks)}:{KF(ks)+3}], {vKA[ks]} offset:{8192*kb}'
    def vread(kkg, blk):
        return [f'ds_read_b64_tr_b16 v[{VF(kkg,blk)+2*u}:{VF(kkg,blk)+2*u+1}], {vVA[blk]} offset:{kkg*4096 + 1024*u}' for u in range(2)]
    exp = lambda r: f'v_exp_f32 v{r}, v{r}'
    cvt = lambda pk, d, r: f'v_cvt_pk_bf16_f32 v{P(pk)+d}, v{r}, v{r+1}'
    def maxchain(sb):
        b = S(sb)
        l = [f'v_max3_f32 v14, v{b}, v{b+1}, v{b+2}', f'v_max3_f32 v15, v{b+3}, v{b+4}, v{b+5}']
        for z in range(4):
            t = 'v14' if z % 2 == 0 else 'v15'
            l.append(f'v_max3_f32 {t}, {t}, v{b+6+2*z}, v{b+7+2*z}')
        l.append(f'v_max3_f32 v14, v14, v{b+14}, v{b+15}')
        l.append(f'v_max_f32 v14, v14, v15')
        return l
    k_addr = [f'v_add_u32 {vKA[0]}, {sBASE}, {vKL}'] + [f'v_xor_b32 {vKA[ks]}, {32*ks}, {vKA[0]}' for ks in range(1, 8)]
    v_addr = [f'v_add_u32 {vVA[0]}, {sVB}, v12'] + [f'v_xor_b32 {vVA[blk]}, {64*blk}, {vVA[0]}' for blk in range(1, 4)]
    cmp_ = f'v_cmp_lt_f32 vcc, {sC}, v14'
    def branch(tag):
        a(f's_cbranch_vccnz L_slow{tag}')
        a(f'L_back{tag}:')
    def mini(cur, kb_read, x, barrier=False, vnext=True):
        nx = cur ^ 1; b = S(cur); k0 = 2 * cur; k1 = k0 + 1; kn_ = (k1 + 1) & 3
        R1 = sum([vread(k1, blk) for blk in range(4)], [])
        R0 = sum([vread(kn_, blk) for blk in range(4)], []) if vnext else [None] * 8
        D = [kread(ks, kb_read) for ks in range(8)]
        E = [exp(b + e) for e in range(16)]
        C = [cvt(d >> 2, d & 3, b + 2 * d) for d in range(8)]
        X = maxchain(nx)
        w4 = ['s_waitcnt lgkmcnt(4)']
        g = {0: [E[0], D[0], E[1]], 1: [E[2], D[1], E[3]], 2: [E[4], D[2], E[5]], 3: [E[6], D[3], E[7]],
             4: [D[4], C[0], C[1], C[2]] + w4, 5: [E[8], D[5], C[3], R1[0]], 6: [E[9], D[6], R1[1]], 7: [E[10], D[7], R1[2]],
             8: [R1[3], E[11], R1[4]], 9: [R1[5], E[12], R1[6]], 10: [E[13], R1[7], E[14]], 11: [E[15], C[4], C[5], C[6]],
             's0': [C[7], X[0], 's_waitcnt lgkmcnt(0)'],
             12: (['s_barrier   ; k(t+2): V(t+1), K(t+2) landed'] if barrier else []) + [R0[0], X[1], R0[1], X[2], X[3]],
             13: [R0[2], X[4], R0[3], X[5]], 14: [R0[4], X[6], R0[5], X[7]], 15: [R0[6], cmp_, R0[7]], 's1': []}
        def G(k): emit([y for y in g[k] if y] + x.get(k, []))
        for ks in range(8):
            a(qk(nx, ks)); G(ks)
        for blk in range(4):
            a(pv(k0, blk, 0)); G(8 + blk)
        a(rsum(0)); G('s0')
        for blk in range(4):
            a(pv(k1, blk, 1)); G(12 + blk)
        a(rsum(1)); G('s1')
    KA, VA = k_addr, v_addr
    def step(tags, last):
        if last:
            mini(0, 0, {4: [KA[5]], 5: [KA[6]], 6: [KA[7]], 7: [f's_add_u32 {sVB}, {sBASE}, {SLOT}']})
        else:
            mini(0, 0, {4: [KA[5]], 5: [KA[6]], 6: [KA[7]], 7: [f's_add_u32 {sVB}, {sBASE}, {SLOT}'],
                        8: [f's_add_u32 {sBASE}, {sBASE}, {2*SLOT}'], 9: [f's_cmp_eq_u32 {sBASE}, {sLIM}'],
                        13: [f's_cselect_b32 {sBASE}, 0, {sBASE}'], 14: [f's_cselect_b32 {sLIM}, {8*SLOT}, {sLIM}'],
                        15: [f's_sub_u32 {sCNT}, {sCNT}, 1']})
        branch(tags[0])
        if last:
            mini(1, 1, {7: [VA[0]], 9: [VA[1]], 13: [VA[2]], 14: [VA[3]]}, False, False)
        else:
            mini(1, 1, {6: [KA[0]], 7: [VA[0]], 8: [KA[1]], 9: [VA[1]], 13: [VA[2]], 14: [VA[3]], 15: [KA[2], KA[3]], 's1': [KA[4]]}, True)
        branch(tags[1])
    emit(k_addr)
    for ks in range(8):
        src = QA(ks >> 1) + 8 * (ks & 1)
        for d in range(4):
            a(f'v_pk_mul_f32 v[{src+2*d}:{src+2*d+1}], v[{src+2*d}:{src+2*d+1}], v[30:31] op_sel_hi:[1,0]')
        for d in range(4):
            a(f'v_cvt_pk_bf16_f32 v{QF(ks)+d}, v{src+2*d}, v{src+2*d+1}')
    a('s_barrier   ; k0')
    stamp(8)
    for ks in range(8):
        a(kread(ks, 0))
    a(f's_mov_b32 {sVB}, {SLOT}')
    a(f's_mov_b32 {sBASE}, {2*SLOT}')
    emit(v_addr)
    emit([f'v_mov_b32 v{LA+i}, 0' for i in range(4)])
    emit([f'v_mov_b32 v{ON+i}, v10' for i in range(4)])
    for ks in range(8):
        a('s_waitcnt lgkmcnt(7)')
        a(qk(0, ks, True))
        a(kread(ks, 1))
    emit(KA[:5])
    a('s_nop 5')
    emit(maxchain(0))
    a(f"""
    v_mov_b32 v15, v14
    s_waitcnt lgkmcnt(0)
    s_barrier   ; k1
    """)
    for blk in range(4): emit(vread(0, blk))
    a(f"""
    v_permlane32_swap_b32 v14, v15
    v_max_f32 v14, v14, v15
    """)
    emit([f'v_sub_f32 v{CB+i}, 0, v14' for i in range(16)])
    emit([f'v_sub_f32 v{S(0)+i}, v{S(0)+i}, v14' for i in range(16)])
    a('L_loop:')
    step('AB', False)
    a('s_cbranch_scc0 L_loop')
    a('L_last:')
    step('DE', True)
    a('L_tail:')
    b0, b1 = S(0), S(1)
    for ks in range(8):
        a(qk(1, ks)); emit([exp(b0 + 2 * ks), exp(b0 + 2 * ks + 1)])
    a(f's_lshl_b32 {sT1}, {sWAVE}, 3')
    a(f's_sub_u32 {sT1}, {sT1}, {sROT}')
    fill = list(oproj_addr)
    a('s_nop 7')
    emit(maxchain(1))
    a(cmp_)
    branch('C')
    emit([cvt(0, d, b0 + 2 * d) for d in range(4)])
    a('s_barrier   ; k16: V15 landed')
    stamp(39)
    for blk in range(4): emit(vread(0, blk))
    for blk in range(3): emit(vread(1, blk))
    emit([cvt(1, d, b0 + 8 + 2 * d) for d in range(4)])
    emit([exp(b1 + e) for e in range(4)])
    def oaddr(f):
        return [f's_add_u32 {sT0}, {sT1}, {f}', f's_and_b32 {sT0}, {sT0}, 31', f's_lshl_b32 {sT0}, {sT0}, 10',
                f'v_add_u32 v{16+f}, {sT0}, {vOA}']
    def take(n):
        l = fill[:n]; del fill[:n]; return l
    a('s_waitcnt lgkmcnt(6)')
    a(pv(0, 0, 0)); emit(vread(1, 3) + [exp(b1 + 4), exp(b1 + 5)])
    a(pv(0, 1, 0)); emit(vread(2, 0) + [exp(b1 + 6), exp(b1 + 7)])
    a(pv(0, 2, 0)); emit(vread(2, 1) + [exp(b1 + 8), exp(b1 + 9)])
    a(pv(0, 3, 0)); emit(vread(2, 2) + [cvt(2, d, b1 + 2 * d) for d in range(4)])
    a(rsum(0)); a('s_waitcnt lgkmcnt(6)')
    a(pv(1, 0, 1)); emit(vread(2, 3) + [exp(b1 + 10), exp(b1 + 11)])
    a(pv(1, 1, 1)); emit(vread(3, 0) + [exp(b1 + 12), exp(b1 + 13)])
    a(pv(1, 2, 1)); emit(vread(3, 1) + [exp(b1 + 14), exp(b1 + 15)])
    a(pv(1, 3, 1)); emit(vread(3, 2) + take(3))
    a(rsum(1)); emit(vread(3, 3) + [cvt(3, d, b1 + 8 + 2 * d) for d in range(4)])
    a(rsum(2)); emit(take(2) + ['s_waitcnt lgkmcnt(6)'])
    a(rsum(3)); emit(take(2))
    def norm(f):
        src = OA(f >> 1) + 8 * (f & 1); dst = 64 + 4 * f
        return ([f'v_pk_mul_f32 v[{src+e}:{src+e+1}], v[{src+e}:{src+e+1}], v[14:15] op_sel_hi:[1,0]' for e in range(0, 8, 2)] +
                [f'v_cvt_pk_bf16_f32 v{dst+d}, v{src+2*d}, v{src+2*d+1}' for d in range(4)] +
                [f'ds_write_b128 v{16+f}, v[{dst}:{dst+3}]'])
    a(pv(2, 0, 2)); emit(take(6))
    a(pv(3, 0, 3)); emit([f'v_rcp_f32 v14, v{LA}'] + take(5) + ['s_waitcnt lgkmcnt(0)'])
    a(pv(2, 1, 2)); emit(take(6))
    a(pv(3, 1, 3)); emit(take(2) + oaddr(0) + oaddr(1))
    assert not fill
    n0, n1 = norm(0), norm(1)
    a(pv(2, 2, 2)); emit(n0[:6])
    a(pv(3, 2, 3)); emit(n0[6:] + n1[:4])
    a(pv(2, 3, 2)); emit(n1[4:] + oaddr(2))
    a(pv(3, 3, 3))
    stamp(5)
    for f in range(2, 8):
        if f < 7: emit(oaddr(f + 1))
        emit(norm(f))
    a('s_waitcnt lgkmcnt(0)')
    a('s_barrier   ; Bo')
    stamp(6)
    AF = lambda i, nb: (32, 40, 96)[i % 3] + 4 * nb
    BF = lambda i: 48 + 4 * (i & 3)
    PA = lambda nb: 64 + 16 * nb
    PK = lambda idx, nb: 128 + 8 * idx + 4 * nb
    sWO = sCNT
    def w_first(idx):
        return [f's_add_u32 {sWO}, {sROT}, {idx - 1}', f's_lshl_b32 {sWO}, {sWO}, 14', f's_add_u32 {sWO}, {sWO}, {sWG}']
    def w_pre(m):
        return [f's_add_u32 {sWO}, {sWO}, 16384', f's_add_u32 m0, {sWL}, {WSLOT[m % 8]*SLOT}', f's_and_b32 {sWO}, {sWO}, 0x7ffff']
    def w_dma(hf, so=sT0):
        return f'buffer_load_dwordx4 {vWD[hf]}, {WO_}, {so} offen offset:{1024*hf}{cfg.wo_pol} lds'
    def o_mfma(idx, nb, areg, first=False):
        c = '0' if first else f'v[{PA(nb)}:{PA(nb)+15}]'
        return f'v_mfma_f32_32x32x16_bf16 v[{PA(nb)}:{PA(nb)+15}], v[{areg}:{areg+3}], v[{BF(idx)}:{BF(idx)+3}], {c}'
    bread = lambda idx: f'ds_read_b128 v[{BF(idx)}:{BF(idx)+3}], {vOA} offset:{1024*idx}'
    def areads(idx, m):
        sl = WSLOT[m % 8]
        return [f'ds_read_b64_tr_b16 v[{AF(idx,nb)+2*u}:{AF(idx,nb)+2*u+1}], {vWA(sl // 4, nb)} offset:{(sl % 4)*SLOT + 512*u}'
                for nb in range(2) for u in range(2)]
    emit(w_first(7)); emit(w_pre(7))
    emit([bread(0)] + areads(0, 0))
    emit([w_dma(0, sWO), w_dma(1, sWO)])
    emit([bread(1)] + areads(1, 1))
    for m in range(32):
        if m in (4, 8, 12, 16, 20, 24, 28): stamp(47 + m // 4)
        if m + 2 < 32:
            if m + 2 >= 7: a(f's_waitcnt vmcnt({2*(min(31, m + 7) - (m + 2))})')
            emit([bread(m + 2)] + areads(m + 2, m + 2))
        dma = m + 8 < 32
        if dma: emit(w_pre(m + 8))
        a(f's_waitcnt lgkmcnt({5 * min(2, 31 - m)})')
        a(o_mfma(m, 0, AF(m, 0), m == 0))
        if dma: a(w_dma(0, sWO))
        a(o_mfma(m, 1, AF(m, 1), m == 0))
        if dma: a(w_dma(1, sWO))
    a('s_branch L_pub')

    a('L_helper:')
    issued = []
    R0 = 4 if cfg.wq6 else 6
    RB = lambda j, jj: 128 + 16 * (j - R0) + 4 * jj
    def kv_issue(j, inreg=False):
        if not inreg: a(f's_add_u32 m0, {sBASE}, {slot_of(j)*SLOT}')
        if cfg.kvrot:
            a(f's_add_u32 {sT0}, s86, {(j//2)*SLOT}')
            a(f's_and_b32 {sT0}, {sT0}, 0x3ffff')
        else:
            a(f's_add_u32 {sT0}, {sBASE}, {(j//2)*SLOT}')
        for jj in range(4):
            va, srd = (vKD[jj], K_) if j % 2 == 0 else (vVD, V_)
            if inreg:
                a(f'buffer_load_dwordx4 v[{RB(j,jj)}:{RB(j,jj)+3}], {va}, {srd}, {sT0} offen offset:{1024*jj}{cfg.kv_pol}')
            else:
                a(f'buffer_load_dwordx4 {va}, {srd}, {sT0} offen offset:{1024*jj}{cfg.kv_pol} lds')
        issued.append((('kv', j), 4))
    def rb_write(j):
        for jj in range(4):
            a(f'ds_write_b128 {"v11" if j < 8 else "v10"}, v[{RB(j,jj)}:{RB(j,jj)+3}] offset:{(j % 4)*SLOT + 1024*jj}')
    def warm(lab0, lab1, tagn):
        if not cfg.warm: return
        lab = a.label('L_pc')
        a(f'''
        s_getpc_b64 s[80:81]
        {lab}:
        s_lshl_b32 {sT0}, {sB}, 2
        s_add_u32 {sT0}, {sT0}, {sHW}
        s_mul_i32 {sT0}, {sT0}, ((({lab1} - {lab0}) / 64 + 63) / 64) * 64
        v_lshl_add_u32 v32, v0, 6, {sT0}
        v_min_u32 v32, {lab1} - {lab0} - 4, v32
        s_add_u32 s80, s80, {lab0} - {lab}
        s_addc_u32 s81, s81, -1
        v_mov_b32 v33, s81
        v_add_co_u32 v32, vcc, s80, v32
        s_nop 1
        v_addc_co_u32 v33, vcc, 0, v33, vcc
        v_cmp_gt_u32 vcc, (({lab1} - {lab0}) / 64 + 63) / 64, v0
        s_and_saveexec_b64 s[82:83], vcc
        global_load_dword v34, v[32:33], off
        s_mov_b64 exec, s[82:83]
        ''')
        issued.append((('warm', tagn), 1))
    def w_resident(i):
        for own in range(2):
            a(f's_add_u32 {sT0}, {sROT}, {i + NP * own}')
            a(f's_and_b32 {sT0}, {sT0}, 31')
            a(f's_lshl_b32 {sT0}, {sT0}, 14')
            a(f's_add_u32 m0, {sWL}, {WSLOT[i]*SLOT - (0 if own else 4 * 2048)}')
            a(f's_add_u32 {sT0}, {sT0}, {sWG}')
            if not own: a(f's_sub_u32 {sT0}, {sT0}, 512')
            emit([w_dma(0), w_dma(1)])
        issued.append((('w', i), 4))
    def pw_issue(g):
        for j in range(2):
            a(f's_add_u32 {sT0}, {sROT}, {2*g + j}')
            a(f's_and_b32 {sT0}, {sT0}, 31')
            a(f's_lshl_b32 {sT0}, {sT0}, 14')
            a(f's_add_u32 m0, {sBASE}, {(8 + (g & 1))*SLOT + 2048*j}')
            a(f's_add_u32 {sT0}, {sT0}, {sWG}')
            emit([w_dma(0), w_dma(1)])
        issued.append((('pw', g), 4))
    def pw_read(g):
        for j in range(2):
            for nb in range(2):
                for u in range(2):
                    r = PK(2 * g + j, nb) + 2 * u
                    a(f'ds_read_b64_tr_b16 v[{r}:{r+1}], v{122 + nb} offset:{(g & 1)*SLOT + 2048*j + 512*u}')
    def smem_pref(lo, hi):
        if lo >= hi: return
        if lo == 0:
            a(f's_lshl_b32 {sT0}, {sROT}, 14\ns_lshl_b32 {sT1}, {sHW}, 13\ns_add_u32 {sT0}, {sT0}, {sT1}')
            a(f's_add_u32 s88, s52, {sT0}\ns_addc_u32 s89, s53, 0')
        for i in range(lo, hi):
            a(f's_load_dword s{90 + i % 8}, s[88:89], {(i >> 3) * 1024 + 512 + (i & 7) * 64}')
    def wait_for(*items):
        names = [x[0] for x in issued]
        k = max(names.index(it) for it in items)
        a(f's_waitcnt vmcnt({sum(x[1] for x in issued[k+1:])})')
    warm('L_start', 'L_end', 0)
    a(f'''
    s_mov_b32 {sC}, 99
    s_mov_b32 {sCHK}, 99
    s_lshl_b32 {sT0}, {sG}, 3
    v_mov_b32 v30, {sT0}
    v_mov_b32 v29, 8
    s_cmp_eq_u32 {sWAVE}, 4
    s_cbranch_scc0 L_noclear
    s_add_u32 {sT0}, {sT0}, {sHKV}
    s_lshl_b32 {sT0}, {sT0}, 7
    s_add_u32 {sT0}, {sT0}, {FLAG_OFF}
    s_and_b32 {sC}, {sB}, 3
    s_add_u32 {sC}, {sC}, 1
    s_add_u32 {sCHK}, {sC}, 9
    v_mov_b32 v27, 0
    v_mov_b32 v28, 1
    v_lshlrev_b32 v26, 2, v0
    s_mov_b64 exec, 0xff
    buffer_store_dword v27, v26, {WS_}, {sT0} offen sc1
    s_mov_b64 exec, -1
    L_noclear:
    ''')
    if cfg.hprio != 1: a(f's_setprio {cfg.hprio}')
    need = lambda k: 0 if k == 0 else min(31, 2 * k)
    free_at = lambda it: it // 2 + 1 if it % 2 == 0 else it // 2 + 2
    slot_free = lambda j: 0 if j < 10 else free_at(j - 10 if j < 18 else j - 8)
    MERGE = 17
    base_issued = list(issued)
    late_addr = oproj_addr + [f'v_add_u32 v11, {sBASE}, v4', f'v_add_u32 v10, {8*SLOT}, v11', f'v_add_u32 v11, {4*SLOT}, v11',
                              f'v_add_u32 v122, {sBASE}, v121', f'v_add_u32 v122, {8*SLOT}, v122', 'v_xor_b32 v123, 64, v122']
    a(f's_cmp_eq_u32 {sGRP}, 0\ns_cbranch_scc0 L_hkv')
    EP_ = [(16, 20), (104, 108), (24, 124), (8, 12)]
    def barrier_step(k, grp, st):
        gp = k - 2 - cfg.park0
        if 0 <= gp < cfg.park:
            wait_for(('kv', need(k)), ('pw', gp))
            pw_read(gp)
            a('s_waitcnt lgkmcnt(0)')
        else:
            wait_for(('kv', need(k)))
        if grp == 1 and k == 1: a('s_waitcnt lgkmcnt(0)')
        a(f's_barrier   ; k{k}')
        stamp(8 + k)
        if 2 <= k <= 15: cstamp(23 + k)
        if grp == 1 and k == 0:
            a('s_setprio 0')
            for j in range(R0 + cfg.rb_pre, cfg.g1_pre): rb_write(j)
            a(f's_setprio {cfg.hprio}')
        if 0 <= k - cfg.park0 < cfg.park: pw_issue(k - cfg.park0)
        while st['nxt'] < 32:
            j = st['nxt']
            if slot_free(j) > k or j > need(k + 1) + (cfg.g1_fly if grp else cfg.g0_fly if k < cfg.g0_sw else cfg.g0_fly2 if k < cfg.g0_sw2 else 4): break
            kv_issue(j); st['nxt'] += 1
        if k == 16:
            wait_for(('w', 3))
            for i in range(4):
                emit([f'ds_read_b64_tr_b16 v[{EP_[i][nb]+2*u}:{EP_[i][nb]+2*u+1}], {vWA(WSLOT[i] // 4, nb)} offset:{(WSLOT[i] % 4)*SLOT + 512*u}'
                      for nb in range(2) for u in range(2)])
                if i == 2: a('s_waitcnt lgkmcnt(8)')
        for wi, at in enumerate(cfg.w_at if grp or not cfg.w_at0 else cfg.w_at0):
            if at == k: w_resident(wi)
        if k == 16:
            emit(w_first(23))
            a('s_waitcnt lgkmcnt(0)')
        if grp == 0 and k < 4: smem_pref(min(cfg.smem[0], 32 + 8 * k), min(cfg.smem[0], 40 + 8 * k))
        if k == 11: warm('L_last', 'L_end', 1)
        if 1 <= k <= 4:
            lab = a.label('L_na')
            a(f's_cmp_eq_u32 {sC}, {k}\ns_cbranch_scc0 {lab}\ns_mov_b64 exec, 1')
            a(f'buffer_atomic_add v28, v30, {DBG_}, 0 offen sc1\ns_mov_b64 exec, -1\n{lab}:')
        if 10 <= k <= 13:
            lab = a.label('L_nc')
            a(f's_cmp_eq_u32 {sCHK}, {k}\ns_cbranch_scc0 {lab}')
            a(f'buffer_load_dword v29, v30, {DBG_}, 0 offen sc1\n{lab}:')
    states = []
    for grp in (0, 1):
        issued[:] = base_issued
        st = {}
        if grp == 0:
            for j in range(cfg.g0_pre): kv_issue(j)
            emit(late_addr)
            a(f's_waitcnt vmcnt({sum(x[1] for x in issued)})')
            a('s_barrier   ; Bx')
            stamp(1)
            a('s_barrier   ; Bx2')
            a('s_barrier   ; Bw')
            smem_pref(0, min(32, cfg.smem[0]))
            a('s_barrier   ; Bk')
            top = min(6, max(5, cfg.g0_pre + 4))
            for j in range(cfg.g0_pre, min(top, cfg.g0_pre + 3)): kv_issue(j)
            a('s_barrier   ; Bq')
            for j in range(cfg.g0_pre + 3, top): kv_issue(j)
            st['nxt'] = top
            stamp(2)
        else:
            a('L_hkv:')
            if cfg.near_kv:
                issued[:] = [(('kv', j), 4) for j in range(cfg.g1_first)] + base_issued
            else:
                for j in range(cfg.g1_first): kv_issue(j)
            emit(late_addr)
            a(f's_waitcnt vmcnt({sum(x[1] for x in issued)})')
            a('s_barrier   ; Bx')
            stamp(1)
            for j in range(cfg.g1_first, 4): kv_issue(j)
            a('s_barrier   ; Bx2')
            for j in range(4, cfg.g1_pre): kv_issue(j, j >= R0)
            stamp(2)
            a('s_barrier   ; Bw')
            smem_pref(0, cfg.smem[1])
            a('s_barrier   ; Bk')
            a('s_waitcnt vmcnt(0)')
            a('s_barrier   ; Bq')
            for j in range(R0, min(R0 + cfg.rb_pre, cfg.g1_pre)): rb_write(j)
            st['nxt'] = cfg.g1_pre
        for k in range(MERGE):
            barrier_step(k, grp, st)
        assert st['nxt'] == 32
        if grp == 0: a('s_branch L_hmerge')
    a('L_hmerge:')
    for k in range(MERGE, 17):
        barrier_step(k, 1, st)
    EP = [(16, 20), (104, 108), (24, 124), (8, 12)]
    def wread(dst, slot):
        return [f'ds_read_b64_tr_b16 v[{dst[nb]+2*u}:{dst[nb]+2*u+1}], {vWA(slot // 4, nb)} offset:{(slot % 4)*SLOT + 512*u}'
                for nb in range(2) for u in range(2)]
    def own_refill(slot):
        return [f's_add_u32 {sWO}, {sWO}, 16384', f's_add_u32 m0, {sWL}, {slot*SLOT}', f's_and_b32 {sWO}, {sWO}, 0x7ffff',
                w_dma(0, sWO), w_dma(1, sWO)]
    assert NP == 16 and cfg.early
    for i in range(4): emit(own_refill(WSLOT[i]))
    a(f"""
    s_mov_b32 {sSPIN}, 0
    s_waitcnt vmcnt(8)
    L_chk:
    v_cmp_gt_u32 vcc, 8, v29
    s_cbranch_vccz L_chkd
    s_add_u32 {sSPIN}, {sSPIN}, 1
    s_cmp_gt_u32 {sSPIN}, 0x40000
    s_cbranch_scc1 L_chkd
    buffer_load_dword v29, v30, {DBG_}, 0 offen sc1
    s_waitcnt vmcnt(0)
    s_branch L_chk
    L_chkd:
    s_barrier   ; Bo
    """)
    stamp(6)
    W = WSLOT
    seq = [(20, W[4]), (21, W[5]), (22, W[6]), (23, W[0])] + [(i, None) for i in range(20)] + \
          [(24, W[1]), (25, W[2]), (26, W[3]), (27, W[7]), (28, W[4]), (29, W[5]), (30, W[6]), (31, W[0])]
    vm_order = [23, 24, 25, 26]
    BFs = lambda n: 48 + 4 * (n & 3)
    AFs = lambda n: ((32, 36), (40, 44), (96, 100))[n % 3]
    def reads(n):
        idx, slot = seq[n]
        l = []
        if idx in vm_order and slot is not None:
            l.append(f's_waitcnt vmcnt({2*(len(vm_order) - 1 - vm_order.index(idx))})')
        l.append(f'ds_read_b128 v[{BFs(n)}:{BFs(n)+3}], {vOA} offset:{1024*idx}')
        if slot is not None: l += wread(AFs(n), slot)
        return l
    cnt = lambda n: 0 if n >= 32 else (5 if seq[n][1] is not None else 1)
    emit(reads(0)); emit(reads(1))
    emit(own_refill(W[7])); vm_order.append(27)
    for n in range(32):
        idx, slot = seq[n]
        if n in (4, 8, 12, 16, 20, 24, 28): stamp(47 + n // 4)
        if n + 2 < 32: emit(reads(n + 2))
        a(f's_waitcnt lgkmcnt({cnt(n + 1) + cnt(n + 2)})')
        for nb in range(2):
            areg = AFs(n)[nb] if slot is not None else (PK(idx, nb) if idx < 16 else EP[idx - 16][nb])
            c = '0' if n == 0 else f'v[{PA(nb)}:{PA(nb)+15}]'
            a(f'v_mfma_f32_32x32x16_bf16 v[{PA(nb)}:{PA(nb)+15}], v[{areg}:{areg+3}], v[{BFs(n)}:{BFs(n)+3}], {c}')
        if n < 4:
            emit(own_refill(slot)); vm_order.append(28 + n)
        if n == 3: a('s_setprio 0')

    a('L_pub:')
    stamp(7)
    if cfg.bf16p:
        a(f"""
        s_lshl_b32 {sT0}, {sG}, 3
        s_add_u32 {sT1}, {sT0}, {sWAVE}
        s_lshl_b32 {sT2}, {sT1}, 3
        s_add_u32 {sT2}, {sT2}, {sHKV}
        s_lshl_b32 {sT2}, {sT2}, 12
        s_lshl_b32 {sT1}, {sT1}, 7
        s_add_u32 {sT1}, {sT1}, {FLAG_OFF}
        s_lshl_b32 {sC}, {sHKV}, 2
        s_add_u32 {sT1}, {sT1}, {sC}
        s_add_u32 {sT0}, {sT0}, {sHKV}        ; g*8 + own
        v_mov_b32 v10, 1
        v_mov_b32 v11, 0
        """)
        for pc in range(4):
            for d in range(4):
                a(f'v_cvt_pk_bf16_f32 v{96+4*pc+d}, v{64+8*pc+2*d}, v{65+8*pc+2*d}')
            a(f'buffer_store_dwordx4 v[{96+4*pc}:{99+4*pc}], v4, {WS_}, {sT2} offen offset:{1024*pc} sc1')
        a(f"""
        v_lshlrev_b32 v12, 2, v0
        s_lshl_b32 {sCHK}, {sT0}, 7
        s_add_u32 {sCHK}, {sCHK}, {FLAG_OFF}
        s_lshl_b32 {sT0}, {sT0}, 15
        s_lshr_b32 {sC}, {sWAVE}, 1
        s_lshl_b32 {sT2}, {sC}, 10
        s_add_u32 {sT0}, {sT0}, {sT2}
        s_and_b32 {sT2}, {sWAVE}, 1
        s_lshl_b32 {sCNT}, {sT2}, 8
        s_add_u32 {sT0}, {sT0}, {sCNT}
        v_bfe_u32 v14, v0, 4, 1
        v_lshlrev_b32 v15, 4, v2
        v_lshl_add_u32 v15, v14, 9, v15
        v_lshl_add_u32 v15, v3, 12, v15
        v_lshlrev_b32 v20, 11, v2
        v_lshl_add_u32 v20, v14, 4, v20
        v_lshl_add_u32 v20, v3, 3, v20
        s_lshl_b32 {sC}, {sC}, 5
        s_lshl_b32 {sT2}, {sT2}, 15
        s_add_u32 {sC}, {sC}, {sT2}
        s_waitcnt vmcnt(0)
        s_mov_b64 exec, 1
        buffer_store_dword v10, v11, {WS_}, {sT1} offen sc1
        s_mov_b64 exec, 0xff
        s_mov_b32 {sSPIN}, 0
        """)
        stamp(56)
        if cfg.poll2:
            a(f"""
            buffer_load_dword v13, v12, {WS_}, {sCHK} offen sc1
            L_poll:
            buffer_load_dword v16, v12, {WS_}, {sCHK} offen sc1
            s_waitcnt vmcnt(1)
            v_cmp_ne_u32 vcc, 1, v13
            s_cbranch_vccz L_polled
            buffer_load_dword v13, v12, {WS_}, {sCHK} offen sc1
            s_add_u32 {sSPIN}, {sSPIN}, 1
            s_cmp_gt_u32 {sSPIN}, 0x40000
            s_cbranch_scc1 L_polled
            s_waitcnt vmcnt(1)
            v_cmp_ne_u32 vcc, 1, v16
            s_cbranch_vccnz L_poll
            L_polled:
            s_mov_b64 exec, -1
            """)
        else:
            a(f"""
            L_poll:
            buffer_load_dword v13, v12, {WS_}, {sCHK} offen sc1
            s_add_u32 {sSPIN}, {sSPIN}, 1
            s_cmp_gt_u32 {sSPIN}, 0x40000
            s_cbranch_scc1 L_polled
            s_waitcnt vmcnt(0)
            v_cmp_ne_u32 vcc, 1, v13
            s_cbranch_vccnz L_poll
            L_polled:
            s_mov_b64 exec, -1
            """)
        stamp(57)
        for p in range(4):
            a(f'buffer_load_dwordx4 v[{96+4*p}:{99+4*p}], v15, {WS_}, {sT0} offen sc1')
            if p < 3: a(f's_add_u32 {sT0}, {sT0}, 8192')
        a(f's_mov_b32 {sT1}, 0xffff0000')
        for p in range(4):
            a(f's_waitcnt vmcnt({3-p})')
            for d in range(4):
                lo, hi = (64 + 2 * d, 65 + 2 * d) if p == 0 else (72 + 2 * d, 73 + 2 * d)
                a(f'v_lshlrev_b32 v{lo}, 16, v{96+4*p+d}')
                a(f'v_and_b32 v{hi}, {sT1}, v{96+4*p+d}')
            if p:
                for e in range(8):
                    a(f'v_add_f32 v{64+e}, v{64+e}, v{72+e}')
        a('s_nop 0')
        for e in range(4):
            a(f'v_permlane32_swap_b32 v{64+e}, v{68+e}')
        for e in range(4):
            a(f'v_add_f32 v{64+e}, v{64+e}, v{68+e}')
        a(f"""
        v_cvt_pk_bf16_f32 v96, v64, v65
        v_cvt_pk_bf16_f32 v97, v66, v67
        buffer_store_dwordx2 v[96:97], v20, {OUT_}, {sC} offen{cfg.out_pol}
        """)
    else:
        a(f'''
        s_lshl_b32 {sT0}, {sG}, 3
        s_add_u32 {sT1}, {sT0}, {sWAVE}
        s_lshl_b32 {sT2}, {sT1}, 3
        s_add_u32 {sT2}, {sT2}, {sHKV}
        s_lshl_b32 {sT2}, {sT2}, 13
        s_add_u32 {sCNT}, {sT2}, 4096
        s_lshl_b32 {sT1}, {sT1}, 7
        s_add_u32 {sT1}, {sT1}, {FLAG_OFF}
        s_lshl_b32 {sC}, {sHKV}, 2
        s_add_u32 {sT1}, {sT1}, {sC}
        s_add_u32 {sT0}, {sT0}, {sHKV}        ; g*8 + own
        v_mov_b32 v10, 1
        v_mov_b32 v11, 0
        v_lshlrev_b32 v12, 2, v0
        ''')
        for pc in range(8):
            so = sT2 if pc < 4 else sCNT
            a(f'buffer_store_dwordx4 v[{64+4*pc}:{67+4*pc}], v4, {WS_}, {so} offen offset:{1024*(pc % 4)} sc1')
        a(f'''
        s_lshl_b32 {sCHK}, {sT0}, 7
        s_add_u32 {sCHK}, {sCHK}, {FLAG_OFF}
        s_lshl_b32 {sT0}, {sT0}, 16
        s_lshl_b32 {sC}, {sWAVE}, 10
        s_add_u32 {sT0}, {sT0}, {sC}
        s_waitcnt vmcnt(0)
        s_mov_b64 exec, 1
        buffer_store_dword v10, v11, {WS_}, {sT1} offen sc1
        s_mov_b64 exec, 0xff
        s_mov_b32 {sSPIN}, 0
        ''')
        stamp(56)
        a(f'''
        L_poll:
        buffer_load_dword v13, v12, {WS_}, {sCHK} offen sc1
        s_add_u32 {sSPIN}, {sSPIN}, 1
        s_cmp_gt_u32 {sSPIN}, 0x40000
        s_cbranch_scc1 L_polled
        s_waitcnt vmcnt(0)
        v_cmp_ne_u32 vcc, 1, v13
        s_cbranch_vccnz L_poll
        L_polled:
        s_mov_b64 exec, -1
        ''')
        stamp(57)
        for p in range(8):
            a(f'buffer_load_dwordx4 v[{96+4*p}:{99+4*p}], v4, {WS_}, {sT0} offen sc1')
            if p < 7: a(f's_add_u32 {sT0}, {sT0}, 8192')
        a(f'''
        v_and_b32 v20, 31, v0
        v_lshlrev_b32 v20, 11, v20
        v_lshl_add_u32 v20, v3, 4, v20
        s_lshr_b32 {sT1}, {sWAVE}, 1
        s_lshl_b32 {sT1}, {sT1}, 5
        s_and_b32 {sT2}, {sWAVE}, 1
        s_lshl_b32 {sT2}, {sT2}, 3
        s_add_u32 {sT1}, {sT1}, {sT2}
        ''')
        for p in range(1, 8):
            a(f's_waitcnt vmcnt({7-p})')
            for d in range(4):
                a(f'v_add_f32 v{96+d}, v{96+d}, v{96+4*p+d}')
        a(f'''
        v_cvt_pk_bf16_f32 v96, v96, v97
        v_cvt_pk_bf16_f32 v97, v98, v99
        buffer_store_dwordx2 v[96:97], v20, {OUT_}, {sT1} offen
        ''')
    if cfg.stamps:
        stamp(58)
        a('s_waitcnt vmcnt(0)')
        stamp(59); cstamp(61)
        a(f'''
        s_add_u32 s28, s28, {STAMP_OFF}
        s_addc_u32 s29, s29, 0
        s_lshl_b32 {sT0}, s2, 3
        s_add_u32 {sT0}, {sT0}, {sWAVE}
        s_lshl_b32 {sT0}, {sT0}, 8
        v_lshl_add_u32 v13, v0, 2, {sT0}
        global_store_dword v13, {vSTAMP}, s[28:29]
        ''')
    a('L_end:')
    a('s_endpgm')
    for tag, sb in (('A', 1), ('B', 0), ('D', 1), ('E', 0), ('C', 1)):
        a(f"""
        L_slow{tag}:
        v_mov_b32 v15, v14
        s_nop 1
        v_permlane32_swap_b32 v14, v15
        v_max3_f32 v14, v14, v15, 0
        v_exp_f32 v15, -v14
        """)
        for r in range(16):
            a(f'v_sub_f32 v{S(sb)+r}, v{S(sb)+r}, v14')
        for r in range(16):
            a(f'v_sub_f32 v{CB+r}, v{CB+r}, v14')
        a(f'v_mul_f32 v{LA}, v{LA}, v15')
        if tag == 'C':
            for r in range(16):
                a(f'v_mul_f32 v{S(0)+r}, v{S(0)+r}, v15')
        for r in range(64):
            a(f'v_mul_f32 v{128+r}, v{128+r}, v15')
        a('s_nop 0')
        a(f's_branch L_back{tag}')

    return header([f'; @launch grid=(256,1,1) block=(512,1,1) lds={10*SLOT}']) + kernel_open(kn) + a.text() + descriptor(kn, 256, 102)

if __name__ == '__main__':
    out = sys.argv[1]
    cfg = Cfg()
    for kv in sys.argv[2:]:
        k, v = kv.split('=', 1)
        assert hasattr(cfg, k), k
        setattr(cfg, k, eval(v))
    t = gen(cfg)
    if cfg.nomfma:
        i0 = t.index('L_loop:'); i1 = t.index('L_tail:')
        t = t[:i0] + '\n'.join(('    s_nop 7' if 'v_mfma_f32_32' in l else l) for l in t[i0:i1].split('\n')) + t[i1:]
    n = hazard.check(t)
    open(out, 'w').write(t)
    print(out, 'hazards:', n, 'lines:', t.count('\n'))
```

```python
import sys, struct
from asmlib import *
import hazard

def f32(x):
    return struct.unpack('<I', struct.pack('<f', x))[0]

SLOT = 16384
FLAG_OFF = 16 * 1024 * 1024
STAMP_OFF = 128 * 1024 * 1024
OBASE = 3 * SLOT
WSLOT = [8, 9, 6, 7, 0, 1, 2, 5]

def slot_of(j):
    return j if j < 10 else (j - 10) % 8

class Cfg:
    stamps = 0
    wq_pol = ''
    wo_pol = ''
    x_pol = ' nt'
    kv_pol = ' nt'
    w_at = (13, 14, 14, 14, 15, 15, 15)
    warm = True
    wq_first = 2
    stagger = 1
    g0_fly = 4
    g0_fly2 = 1
    g0_sw = 5
    g0_list = '2222211'
    g1_list = ''
    g0_sw2 = 99
    w_at0 = None
    g0_pre = 0
    g1_pre = 10
    hprio = 1
    park = 8
    poll2 = False
    smem = (0, 0)
    wq6 = False
    rb_pre = 2
    out_pol = ''
    near_kv = True
    early = True
    park0 = 5
    T = 8.0
    kvrot = ''
    nomfma = False
    h_ahead = 4
    h_start = 5
    wq_both = False
    g1_first = 2
    g1_fly = 9
    bf16p = True

def gen(cfg):
    a = Asm()
    kn = NAME + '_kernel'
    def emit(l):
        for x in l: a(x)
    sWAVE, sHKV, sBR, sB, sG, sROT = 's30', 's31', 's32', 's33', 's34', 's35'
    K_, V_, X_, WQ_, WO_, WS_, OUT_, DBG_ = ['s[%d:%d]' % (36 + 4 * i, 39 + 4 * i) for i in range(8)]
    sT0, sT1, sT2, sCNT, sBASE, sLIM, sC, sCHK, sHW = 's68', 's69', 's70', 's71', 's72', 's73', 's74', 's75', 's76'
    sSPIN, sVB, sGRP, sWL, sWG = 's77', 's78', 's79', 's84', 's85'
    vSTAMP = 'v31'
    NP = 2 * cfg.park
    def stamp(i):
        if not cfg.stamps or (cfg.stamps == 2 and i not in (0, 59)) or (cfg.stamps == 3 and i not in (0, 8, 24, 6, 7, 56, 57, 58, 59)): return
        a('s_memrealtime s[100:101]')
        a('s_waitcnt lgkmcnt(0)')
        a(f'v_writelane_b32 {vSTAMP}, s100, {i}')
    def cstamp(i):
        if cfg.stamps != 1: return
        a('s_memtime s[100:101]')
        a('s_waitcnt lgkmcnt(0)')
        a(f'v_writelane_b32 {vSTAMP}, s100, {i}')

    a(f'''
    L_start:
    s_cmp_ge_u32 s2, 256
    s_cbranch_scc1 L_end
    s_load_dwordx16 s[4:19], s[0:1], 0
    s_load_dwordx8 s[20:27], s[0:1], 64
    s_load_dwordx2 s[28:29], s[0:1], 96
    v_lshrrev_b32 v1, 6, v0
    v_and_b32 v0, 63, v0
    v_readfirstlane_b32 {sWAVE}, v1
    s_and_b32 {sHKV}, s2, 3
    s_lshl_b32 {sHKV}, {sHKV}, 1
    s_bfe_u32 {sBR}, s2, 0x10003
    s_add_u32 {sHKV}, {sHKV}, {sBR}
    s_bfe_u32 {sBR}, s2, 0x10002
    s_lshr_b32 {sB}, s2, 4
    s_lshl_b32 {sG}, {sBR}, 4
    s_add_u32 {sG}, {sG}, {sB}
    s_lshl_b32 {sROT}, {sB}, 1
    ''')
    a({0: f's_mov_b32 {sGRP}, 0', 1: f's_and_b32 {sGRP}, {sHKV}, 1', 2: f's_mov_b32 {sGRP}, 1'}[cfg.stagger])
    if cfg.stamps:
        a(f'v_mov_b32 {vSTAMP}, 0')
    a(f'''
    v_lshrrev_b32 v1, 4, v0          ; lane>>4
    v_and_b32 v2, 15, v0             ; lane&15
    v_lshrrev_b32 v3, 5, v0          ; h2
    v_lshlrev_b32 v4, 4, v0          ; lane*16
    s_lshl_b32 {sT0}, {sB}, 3
    s_add_u32 {sT0}, {sT0}, {sHKV}
    s_lshl_b32 {sT0}, {sT0}, 18
    s_lshl_b32 {sT1}, {sB}, 15
    s_lshl_b32 {sT2}, {sHKV}, 10
    s_mov_b32 s38, 262144
    s_mov_b32 s39, 0x20000
    s_mov_b32 s42, 262144
    s_mov_b32 s43, 0x20000
    s_mov_b32 s46, 32768
    s_mov_b32 s47, 0x20000
    s_sub_u32 s50, 0x400000, {sT2}
    s_mov_b32 s51, 0x20000
    s_mov_b32 s54, 524288
    s_mov_b32 s55, 0x20000
    s_mov_b32 s58, {FLAG_OFF + 32768}
    s_mov_b32 s59, 0x20000
    s_mov_b32 s63, 0x20000
    s_mov_b32 s66, 256
    s_mov_b32 s67, 0x20000
    s_lshl_b32 {sWL}, {sWAVE}, 11
    s_lshl_b32 {sWG}, {sWAVE}, 7
    s_waitcnt lgkmcnt(0)
    ''')
    stamp(0); cstamp(60)
    a(f'''
    s_cmp_eq_u32 {sBR}, 0
    s_cselect_b32 s36, s6, s16
    s_cselect_b32 s37, s7, s17
    s_cselect_b32 s40, s8, s18
    s_cselect_b32 s41, s9, s19
    s_cselect_b32 s44, s4, s14
    s_cselect_b32 s45, s5, s15
    s_cselect_b32 s48, s10, s20
    s_cselect_b32 s49, s11, s21
    s_cselect_b32 s52, s12, s22
    s_cselect_b32 s53, s13, s23
    s_add_u32 s36, s36, {sT0}
    s_addc_u32 s37, s37, 0
    s_add_u32 s40, s40, {sT0}
    s_addc_u32 s41, s41, 0
    s_add_u32 s44, s44, {sT1}
    s_addc_u32 s45, s45, 0
    s_add_u32 s48, s48, {sT2}
    s_addc_u32 s49, s49, 0
    s_lshl_b32 {sT0}, {sHKV}, 19
    s_add_u32 s52, s52, {sT0}
    s_addc_u32 s53, s53, 0
    s_mov_b32 s56, s28
    s_mov_b32 s57, s29
    s_lshl_b32 {sT0}, {sBR}, 10
    s_lshl_b32 {sT1}, {sHKV}, 7
    s_add_u32 {sT0}, {sT0}, {sT1}
    s_sub_u32 s62, 65536, {sT0}
    s_lshl_b32 {sT1}, {sB}, 16
    s_add_u32 {sT0}, {sT0}, {sT1}
    s_add_u32 s60, s24, {sT0}
    s_addc_u32 s61, s25, 0
    s_mov_b32 s64, s26
    s_mov_b32 s65, s27
    s_cmp_lt_u32 {sWAVE}, 4
    s_cbranch_scc1 L_compute
    ''')
    a('s_setprio 1')
    vKD = ['v5', 'v6', 'v7', 'v8']; vVD = 'v9'
    a(f'''
    s_sub_u32 {sHW}, {sWAVE}, 4
    s_lshl_b32 {sT1}, {sROT}, 1
    s_lshl_b32 {sT2}, {sHW}, 3
    ''')
    for jq in range(8):
        a(f'''
        s_add_u32 {sT0}, {sT2}, {jq}
        s_and_b32 {sCNT}, {sT0}, 15
        v_xor_b32 v{16+jq}, {sCNT}, v0
        v_add_u32 v{16+jq}, {sT1}, v{16+jq}
        s_lshl_b32 {sT0}, {sT0}, 10
        v_and_b32 v{16+jq}, 63, v{16+jq}
        s_add_u32 m0, {sT0}, {4*SLOT}
        v_lshlrev_b32 v{16+jq}, 4, v{16+jq}
        buffer_load_dwordx4 v{16+jq}, {X_}, {sT0} offen{cfg.x_pol} lds
        ''')
    a(f'''
    v_xor_b32 v10, v2, v1
    v_lshlrev_b32 v10, 4, v10
    v_lshl_add_u32 v5, v1, 8, v10
    v_xor_b32 v6, 64, v5
    v_xor_b32 v7, 128, v5
    v_xor_b32 v8, 192, v5
    v_lshlrev_b32 v10, 2, v1
    v_xor_b32 v10, v10, v2
    v_lshlrev_b32 v10, 4, v10
    v_lshl_add_u32 v9, v1, 8, v10
    s_lshl_b32 {sBASE}, {sHW}, 12
    ''')
    if cfg.kvrot:
        a(cfg.kvrot.replace('B', sB).replace('H', sHKV).replace('R', sBR).replace(';', '\n'))
        a(f's_and_b32 s86, s86, 15\ns_lshl_b32 s86, s86, 14\ns_add_u32 s86, s86, {sBASE}')
    if cfg.near_kv:
        a(f's_cmp_eq_u32 {sGRP}, 0\ns_cbranch_scc1 L_helper')
        for j in range(cfg.g1_first):
            a(f's_add_u32 m0, {sBASE}, {j*SLOT}')
            a(f's_add_u32 {sT0}, {sBASE}, {(j//2)*SLOT}')
            for jj in range(4):
                va, srd = (vKD[jj], K_) if j % 2 == 0 else (vVD, V_)
                a(f'buffer_load_dwordx4 {va}, {srd}, {sT0} offen offset:{1024*jj}{cfg.kv_pol} lds')
    a('s_branch L_helper')
    a('L_compute:')

    vWD = ['v112', 'v113']
    vWA = lambda region, nb: f'v{114 + 2 * region + nb}'
    vOA, vPA0 = 'v120', 121
    oproj_addr = f'''
    v_lshrrev_b32 v112, 3, v0
    v_and_b32 v113, 7, v0
    v_bfe_u32 v114, v0, 4, 1
    v_lshlrev_b32 v114, 2, v114
    v_xor_b32 v113, v113, v114
    v_lshlrev_b32 v113, 4, v113
    v_lshl_add_u32 v112, v112, 10, v113
    v_add_u32 v113, 7168, v112
    v_and_b32 v114, 1, v0
    v_bfe_u32 v115, v0, 1, 1
    v_lshlrev_b32 v114, 4, v114
    v_lshl_add_u32 v114, v115, 3, v114  ; pi*8
    v_and_b32 v115, 1, v1
    v_lshl_add_u32 v114, v115, 5, v114  ; + g*32
    v_lshl_add_u32 v114, v3, 10, v114   ; + h2*1024
    v_bfe_u32 v115, v0, 2, 2
    v_lshl_add_u32 v114, v115, 7, v114  ; + r*128
    v_bfe_u32 v115, v0, 3, 1
    v_lshl_add_u32 v121, v115, 6, v114  ; + (r>>1)*64
    v_add_u32 v114, {sWL}, v121
    v_xor_b32 v115, 64, v114
    v_add_u32 v116, {4*SLOT}, v114
    v_add_u32 v117, {4*SLOT}, v115
    v_add_u32 v118, {8*SLOT}, v114
    v_add_u32 v119, {8*SLOT}, v115
    v_add_u32 v120, {OBASE}, v4
    '''.strip().split('\n')

    vWQ = ['v5', 'v6', 'v7', 'v8']
    a(f'''
    v_lshlrev_b32 v9, 2, v1
    v_xor_b32 v9, v9, v2
    v_lshlrev_b32 v9, 4, v9
    v_lshl_add_u32 v9, v1, 13, v9
    s_lshl_b32 {sT0}, {sWAVE}, 8
    v_add_u32 v5, {sT0}, v9
    v_add_u32 v6, {31744}, v5
    v_add_u32 v7, {2*31744}, v5
    v_add_u32 v8, {3*31744}, v5
    s_add_u32 {sBASE}, {sWAVE}, 6
    s_lshl_b32 {sBASE}, {sBASE}, 14
    ''')
    NQ = 6 if cfg.wq6 else 4
    a(f's_lshl_b32 {sVB}, {sWAVE}, 13\ns_add_u32 {sVB}, {sVB}, {4*SLOT}')
    def wq_pre(i):
        return [f's_add_u32 {sT0}, {sROT}, {i}', f's_and_b32 {sT0}, {sT0}, 31',
                (f's_add_u32 m0, {sBASE}, {(i % NQ) * 4096}' if i % NQ < 4 else f's_add_u32 m0, {sVB}, {(i % NQ - 4) * 4096}'),
                f's_lshl_b32 {sT0}, {sT0}, 17']
    def wq_dma(j):
        return f'buffer_load_dwordx4 {vWQ[j]}, {WQ_}, {sT0} offen offset:{1024*j}{cfg.wq_pol} lds'
    def wq_issue(i):
        emit(wq_pre(i)); emit([wq_dma(j) for j in range(4)])
    if not cfg.wq_both: a(f's_cmp_eq_u32 {sGRP}, 0\ns_cbranch_scc0 L_nowq0')
    for i in range(cfg.wq_first): wq_issue(i)
    a('L_nowq0:')
    a(f'''
    v_bfe_u32 v13, v0, 2, 2          ; r
    v_and_b32 v14, 1, v0
    v_bfe_u32 v15, v0, 1, 1
    v_lshlrev_b32 v14, 4, v14
    v_lshl_add_u32 v14, v15, 3, v14  ; pi*8
    v_and_b32 v15, 1, v1             ; g
    v_lshl_add_u32 v14, v15, 5, v14  ; g*32 + pi*8
    v_lshlrev_b32 v12, 11, v3        ; 8*h2*256
    v_mul_u32_u24 v15, 320, v13      ; r*256 + r*64
    v_add3_u32 v12, v12, v15, v14
    v_add_u32 v16, {sBASE}, v12
    v_xor_b32 v17, 64, v16
    v_xor_b32 v18, 128, v16
    v_xor_b32 v19, 192, v16
    v_and_b32 v20, 31, v0            ; q
    v_xor_b32 v21, v3, v2            ; h2 ^ (q&15)
    v_lshlrev_b32 v21, 4, v21
    v_lshl_add_u32 v21, v20, 10, v21
    v_add_u32 v21, {4*SLOT}, v21
    ''')
    vTQ = ['v16', 'v17', 'v18', 'v19']
    vTQ2 = ['v21', 'v22', 'v23', 'v24']
    XF = lambda i: 128 + 4 * i
    QA = lambda blk: 64 + 16 * blk
    BUF = lambda i, blk: 32 + 16 * (i & 1) + 4 * blk
    OA = lambda blk: 128 + 16 * blk
    for m in range(1, 8):
        a(f'v_xor_b32 v{21+m}, {32*m}, v21')
    vKL = 'v29'
    a(f'''
    v_bfe_u32 v13, v0, 2, 1
    v_bfe_u32 v14, v0, 3, 1
    v_and_b32 v15, 0x13, v0
    v_lshl_add_u32 v15, v13, 3, v15
    v_lshl_add_u32 v15, v14, 2, v15
    v_and_b32 v13, 15, v15
    v_xor_b32 v13, v13, v3
    v_lshlrev_b32 v13, 4, v13
    v_lshl_add_u32 {vKL}, v15, 8, v13
    v_and_b32 v13, 3, v0              ; row-sum operand: ones where row%4 == 0 and bit 2 of the row == bit 0 of the k group
    v_bfe_u32 v14, v0, 2, 1
    v_bfe_u32 v15, v0, 4, 1
    v_xor_b32 v14, v14, v15
    v_or_b32 v13, v13, v14
    v_cmp_eq_u32 vcc, 0, v13
    v_mov_b32 v14, 0x3f803f80
    v_mov_b32 v30, {hex(f32(1.4426950408889634 / 128 ** 0.5))}
    v_cndmask_b32 v10, 0, v14, vcc
    s_mov_b32 {sC}, {hex(f32(cfg.T))}
    s_barrier   ; Bx
    ''')
    stamp(1)
    for i in range(32):
        a(f'ds_read_b128 v[{XF(i)}:{XF(i)+3}], v{21 + (i & 7)} offset:{256*(i >> 3)}')
        if i in (14, 22, 30): a('s_waitcnt lgkmcnt(7)')
    a('s_waitcnt lgkmcnt(0)')
    a('s_barrier   ; Bx2')
    a('s_barrier   ; Bw')
    stamp(2)
    if not cfg.wq_both:
        a(f's_cmp_eq_u32 {sGRP}, 0\ns_cbranch_scc1 L_wq1')
        for i in range(cfg.wq_first): wq_issue(i)
        a('L_wq1:')
    for i in range(cfg.wq_first, NQ - 1): wq_issue(i)
    if cfg.wq6:
        a(f'v_add_u32 v21, {sVB}, v12\nv_xor_b32 v22, 64, v21\nv_xor_b32 v23, 128, v21\nv_xor_b32 v24, 192, v21')
    def q_mfma(i, blk):
        c = '0' if i == 0 else f'v[{QA(blk)}:{QA(blk)+15}]'
        return f'v_mfma_f32_32x32x16_bf16 v[{QA(blk)}:{QA(blk)+15}], v[{BUF(i,blk)}:{BUF(i,blk)+3}], v[{XF(i)}:{XF(i)+3}], {c}'
    for i in range(32):
        a(f's_waitcnt vmcnt({4*(min(31, i + NQ - 2) - i)})')
        if i == 0: stamp(3)
        if i in (4, 8, 16, 24): stamp(40 + i // 4)
        for blk in range(4):
            for u in range(2):
                r = BUF(i, blk) + 2 * u
                a(f'ds_read_b64_tr_b16 v[{r}:{r+1}], {(vTQ if i % NQ < 4 else vTQ2)[blk]} offset:{(i % NQ % 4)*4096 + 1024*u}')
        dma = i + NQ - 1 < 32
        if dma: emit(wq_pre(i + NQ - 1))
        for blk in range(4):
            if 0 < i < 31 or (i == 31 and blk == 0): a(q_mfma(i - 1, blk))
            if dma: a(wq_dma(blk))
            if 18 <= i < 26:
                for z in range(2):
                    a(f'v_mov_b32 v{128 + 8*(i-18) + 2*blk + z}, 0')
        if i + NQ - 1 == 31: a('s_barrier   ; Bk')
        a('s_waitcnt lgkmcnt(0)')
    a('s_barrier   ; Bq')
    a(f"""
    s_mov_b32 {sCNT}, 13
    s_mov_b32 {sBASE}, 0
    s_mov_b32 {sLIM}, {10*SLOT}
    """)
    QF = lambda ks: 32 + 4 * ks
    S = lambda kb: 64 + 16 * kb
    P = lambda kk: 96 + 4 * kk if kk < 2 else 192 + 4 * (kk - 2)
    CB = 112
    LA, ON = 104, 108
    KF = lambda ks: 192 + 4 * ks
    VF = lambda kk, blk: 224 + 16 * (kk & 1) + 4 * blk
    vKA = ['v%d' % (16 + i) for i in range(8)]
    vVA = ['v24', 'v25', 'v26', 'v27']
    def qk(sb, ks, first=False):
        c = ('0' if first else f'v[{CB}:{CB+15}]') if ks == 0 else f'v[{S(sb)}:{S(sb)+15}]'
        return f'v_mfma_f32_32x32x16_bf16 v[{S(sb)}:{S(sb)+15}], v[{KF(ks)}:{KF(ks)+3}], v[{QF(ks)}:{QF(ks)+3}], {c}'
    def pv(kk, blk, pk):
        return f'v_mfma_f32_32x32x16_bf16 v[{OA(blk)}:{OA(blk)+15}], v[{VF(kk,blk)}:{VF(kk,blk)+3}], v[{P(pk)}:{P(pk)+3}], v[{OA(blk)}:{OA(blk)+15}]'
    rsum = lambda pk: f'v_mfma_f32_16x16x32_bf16 v[{LA}:{LA+3}], v[{ON}:{ON+3}], v[{P(pk)}:{P(pk)+3}], v[{LA}:{LA+3}]'
    kread = lambda ks, kb: f'ds_read_b128 v[{KF(ks)}:{KF(ks)+3}], {vKA[ks]} offset:{8192*kb}'
    def vread(kkg, blk):
        return [f'ds_read_b64_tr_b16 v[{VF(kkg,blk)+2*u}:{VF(kkg,blk)+2*u+1}], {vVA[blk]} offset:{kkg*4096 + 1024*u}' for u in range(2)]
    exp = lambda r: f'v_exp_f32 v{r}, v{r}'
    cvt = lambda pk, d, r: f'v_cvt_pk_bf16_f32 v{P(pk)+d}, v{r}, v{r+1}'
    def maxchain(sb):
        b = S(sb)
        l = [f'v_max3_f32 v14, v{b}, v{b+1}, v{b+2}', f'v_max3_f32 v15, v{b+3}, v{b+4}, v{b+5}']
        for z in range(4):
            t = 'v14' if z % 2 == 0 else 'v15'
            l.append(f'v_max3_f32 {t}, {t}, v{b+6+2*z}, v{b+7+2*z}')
        l.append(f'v_max3_f32 v14, v14, v{b+14}, v{b+15}')
        l.append(f'v_max_f32 v14, v14, v15')
        return l
    k_addr = [f'v_add_u32 {vKA[0]}, {sBASE}, {vKL}'] + [f'v_xor_b32 {vKA[ks]}, {32*ks}, {vKA[0]}' for ks in range(1, 8)]
    v_addr = [f'v_add_u32 {vVA[0]}, {sVB}, v12'] + [f'v_xor_b32 {vVA[blk]}, {64*blk}, {vVA[0]}' for blk in range(1, 4)]
    cmp_ = f'v_cmp_lt_f32 vcc, {sC}, v14'
    def branch(tag):
        a(f's_cbranch_vccnz L_slow{tag}')
        a(f'L_back{tag}:')
    def mini(cur, kb_read, x, barrier=False, vnext=True):
        nx = cur ^ 1; b = S(cur); k0 = 2 * cur; k1 = k0 + 1; kn_ = (k1 + 1) & 3
        R1 = sum([vread(k1, blk) for blk in range(4)], [])
        R0 = sum([vread(kn_, blk) for blk in range(4)], []) if vnext else [None] * 8
        D = [kread(ks, kb_read) for ks in range(8)]
        E = [exp(b + e) for e in range(16)]
        C = [cvt(d >> 2, d & 3, b + 2 * d) for d in range(8)]
        X = maxchain(nx)
        w4 = ['s_waitcnt lgkmcnt(4)']
        g = {0: [E[0], D[0], E[1]], 1: [E[2], D[1], E[3]], 2: [E[4], D[2], E[5]], 3: [E[6], D[3], E[7]],
             4: [D[4], C[0], C[1], C[2]] + w4, 5: [E[8], D[5], C[3], R1[0]], 6: [E[9], D[6], R1[1]], 7: [E[10], D[7], R1[2]],
             8: [R1[3], E[11], R1[4]], 9: [R1[5], E[12], R1[6]], 10: [E[13], R1[7], E[14]], 11: [E[15], C[4], C[5], C[6]],
             's0': [C[7], X[0], 's_waitcnt lgkmcnt(0)'],
             12: (['s_barrier   ; k(t+2): V(t+1), K(t+2) landed'] if barrier else []) + [R0[0], X[1], R0[1], X[2], X[3]],
             13: [R0[2], X[4], R0[3], X[5]], 14: [R0[4], X[6], R0[5], X[7]], 15: [R0[6], cmp_, R0[7]], 's1': []}
        def G(k): emit([y for y in g[k] if y] + x.get(k, []))
        for ks in range(8):
            a(qk(nx, ks)); G(ks)
        for blk in range(4):
            a(pv(k0, blk, 0)); G(8 + blk)
        a(rsum(0)); G('s0')
        for blk in range(4):
            a(pv(k1, blk, 1)); G(12 + blk)
        a(rsum(1)); G('s1')
    KA, VA = k_addr, v_addr
    def step(tags, last):
        if last:
            mini(0, 0, {4: [KA[5]], 5: [KA[6]], 6: [KA[7]], 7: [f's_add_u32 {sVB}, {sBASE}, {SLOT}']})
        else:
            mini(0, 0, {4: [KA[5]], 5: [KA[6]], 6: [KA[7]], 7: [f's_add_u32 {sVB}, {sBASE}, {SLOT}'],
                        8: [f's_add_u32 {sBASE}, {sBASE}, {2*SLOT}'], 9: [f's_cmp_eq_u32 {sBASE}, {sLIM}'],
                        13: [f's_cselect_b32 {sBASE}, 0, {sBASE}'], 14: [f's_cselect_b32 {sLIM}, {8*SLOT}, {sLIM}'],
                        15: [f's_sub_u32 {sCNT}, {sCNT}, 1']})
        branch(tags[0])
        if last:
            mini(1, 1, {7: [VA[0]], 9: [VA[1]], 13: [VA[2]], 14: [VA[3]]}, False, False)
        else:
            mini(1, 1, {6: [KA[0]], 7: [VA[0]], 8: [KA[1]], 9: [VA[1]], 13: [VA[2]], 14: [VA[3]], 15: [KA[2], KA[3]], 's1': [KA[4]]}, True)
        branch(tags[1])
    def qscale(ks):
        src = QA(ks >> 1) + 8 * (ks & 1)
        return [f'v_pk_mul_f32 v[{src+2*d}:{src+2*d+1}], v[{src+2*d}:{src+2*d+1}], v[30:31] op_sel_hi:[1,0]' for d in range(4)]
    def qpack(ks):
        src = QA(ks >> 1) + 8 * (ks & 1)
        return [f'v_cvt_pk_bf16_f32 v{QF(ks)+d}, v{src+2*d}, v{src+2*d+1}' for d in range(4)]
    a(q_mfma(31, 0)); emit(k_addr[:4])
    a(q_mfma(30, 1)); emit(k_addr[4:])
    a(q_mfma(31, 1)); a('s_nop 1')
    a(q_mfma(30, 2)); emit(qscale(0))
    a(q_mfma(31, 2)); emit(qscale(1))
    a(q_mfma(30, 3)); emit(qscale(2))
    a(q_mfma(31, 3)); emit(qscale(3))
    stamp(4)
    for ks in range(4): emit(qpack(ks))
    for ks in range(4, 8): emit(qscale(ks) + qpack(ks))
    a('s_barrier   ; k0')
    stamp(8)
    for ks in range(8):
        a(kread(ks, 0))
    a(f's_mov_b32 {sVB}, {SLOT}')
    a(f's_mov_b32 {sBASE}, {2*SLOT}')
    emit(v_addr)
    emit([f'v_mov_b32 v{LA+i}, 0' for i in range(4)])
    emit([f'v_mov_b32 v{ON+i}, v10' for i in range(4)])
    for ks in range(8):
        a('s_waitcnt lgkmcnt(7)')
        a(qk(0, ks, True))
        a(kread(ks, 1))
    emit(KA[:5])
    a('s_nop 5')
    emit(maxchain(0))
    a(f"""
    v_mov_b32 v15, v14
    s_waitcnt lgkmcnt(0)
    s_barrier   ; k1
    """)
    for blk in range(4): emit(vread(0, blk))
    a(f"""
    v_permlane32_swap_b32 v14, v15
    v_max_f32 v14, v14, v15
    """)
    emit([f'v_sub_f32 v{CB+i}, 0, v14' for i in range(16)])
    emit([f'v_sub_f32 v{S(0)+i}, v{S(0)+i}, v14' for i in range(16)])
    a('L_loop:')
    step('AB', False)
    a('s_cbranch_scc0 L_loop')
    a('L_last:')
    step('DE', True)
    a('L_tail:')
    b0, b1 = S(0), S(1)
    a(f's_lshl_b32 {sT1}, {sWAVE}, 3')
    a(f's_sub_u32 {sT1}, {sT1}, {sROT}')
    a(f's_lshl_b32 {sT1}, {sT1}, 10')
    oa = sum([[f's_and_b32 {sT0}, {sT1}, 0x7fff', f's_add_u32 {sT1}, {sT1}, 1024', f'v_add_u32 v{16+f}, {sT0}, v4'] for f in range(8)], [])
    for ks in range(8):
        a(qk(1, ks)); emit([exp(b0 + 2 * ks), exp(b0 + 2 * ks + 1)] + oa[2*ks:2*ks+2])
    emit(oa[16:])
    fill = list(oproj_addr)
    emit(maxchain(1))
    a(cmp_)
    branch('C')
    emit([cvt(0, d, b0 + 2 * d) for d in range(4)])
    a('s_barrier   ; k16: V15 landed')
    stamp(39)
    for blk in range(4): emit(vread(0, blk))
    for blk in range(3): emit(vread(1, blk))
    emit([cvt(1, d, b0 + 8 + 2 * d) for d in range(4)])
    emit([exp(b1 + e) for e in range(4)])
    def oaddr(f):
        return [f's_add_u32 {sT0}, {sT1}, {f}', f's_and_b32 {sT0}, {sT0}, 31', f's_lshl_b32 {sT0}, {sT0}, 10',
                f'v_add_u32 v{16+f}, {sT0}, {vOA}']
    def take(n):
        l = fill[:n]; del fill[:n]; return l
    a('s_waitcnt lgkmcnt(6)')
    a(pv(0, 0, 0)); emit(vread(1, 3) + [exp(b1 + 4), exp(b1 + 5)])
    a(pv(0, 1, 0)); emit(vread(2, 0) + [exp(b1 + 6), exp(b1 + 7)])
    a(pv(0, 2, 0)); emit(vread(2, 1) + [exp(b1 + 8), exp(b1 + 9)])
    a(pv(0, 3, 0)); emit(vread(2, 2) + [cvt(2, d, b1 + 2 * d) for d in range(4)])
    a(rsum(0)); a('s_waitcnt lgkmcnt(6)')
    a(pv(1, 0, 1)); emit(vread(2, 3) + [exp(b1 + 10), exp(b1 + 11)])
    a(pv(1, 1, 1)); emit(vread(3, 0) + [exp(b1 + 12), exp(b1 + 13)])
    a(pv(1, 2, 1)); emit(vread(3, 1) + [exp(b1 + 14), exp(b1 + 15)])
    a(pv(1, 3, 1)); emit(vread(3, 2) + take(3))
    a(rsum(1)); emit(vread(3, 3) + [cvt(3, d, b1 + 8 + 2 * d) for d in range(4)])
    a(rsum(2)); emit(take(2) + ['s_waitcnt lgkmcnt(6)'])
    a(rsum(3)); emit(take(2))
    def norm(f):
        src = OA(f >> 1) + 8 * (f & 1); dst = 64 + 4 * f
        return ([f'v_pk_mul_f32 v[{src+e}:{src+e+1}], v[{src+e}:{src+e+1}], v[14:15] op_sel_hi:[1,0]' for e in range(0, 8, 2)] +
                [f'v_cvt_pk_bf16_f32 v{dst+d}, v{src+2*d}, v{src+2*d+1}' for d in range(4)] +
                [f'ds_write_b128 v{16+f}, v[{dst}:{dst+3}] offset:{OBASE}'])
    a(pv(2, 0, 2)); emit(take(6))
    a(pv(3, 0, 3)); emit([f'v_rcp_f32 v14, v{LA}'] + take(5) + ['s_waitcnt lgkmcnt(0)'])
    a(pv(2, 1, 2)); emit(take(6))
    n0, n1, n2 = norm(0), norm(1), norm(2)
    a(pv(3, 1, 3)); emit(take(2) + n0[:4])
    assert not fill
    a(pv(2, 2, 2)); emit(n0[4:] + n1[:1])
    a(pv(3, 2, 3)); emit(n1[1:7])
    a(pv(2, 3, 2)); emit(n1[7:] + n2[:4])
    a(pv(3, 3, 3)); emit(n2[4:])
    stamp(5)
    for f in range(3, 8):
        emit(norm(f))
    a('s_waitcnt lgkmcnt(0)')
    a('s_barrier   ; Bo')
    stamp(6)
    AF = lambda i, nb: (32, 40, 96)[i % 3] + 4 * nb
    BF = lambda i: 48 + 4 * (i & 3)
    PA = lambda nb: 64 + 16 * nb
    PK = lambda idx, nb: 128 + 8 * idx + 4 * nb
    sWO = sCNT
    def w_first(idx):
        return [f's_add_u32 {sWO}, {sROT}, {idx - 1}', f's_lshl_b32 {sWO}, {sWO}, 14', f's_add_u32 {sWO}, {sWO}, {sWG}']
    def w_pre(m):
        return [f's_add_u32 {sWO}, {sWO}, 16384', f's_add_u32 m0, {sWL}, {WSLOT[m % 8]*SLOT}', f's_and_b32 {sWO}, {sWO}, 0x7ffff']
    def w_dma(hf, so=sT0):
        return f'buffer_load_dwordx4 {vWD[hf]}, {WO_}, {so} offen offset:{1024*hf}{cfg.wo_pol} lds'
    def o_mfma(idx, nb, areg, first=False):
        c = '0' if first else f'v[{PA(nb)}:{PA(nb)+15}]'
        return f'v_mfma_f32_32x32x16_bf16 v[{PA(nb)}:{PA(nb)+15}], v[{areg}:{areg+3}], v[{BF(idx)}:{BF(idx)+3}], {c}'
    bread = lambda idx: f'ds_read_b128 v[{BF(idx)}:{BF(idx)+3}], {vOA} offset:{1024*idx}'
    def areads(idx, m):
        sl = WSLOT[m % 8]
        return [f'ds_read_b64_tr_b16 v[{AF(idx,nb)+2*u}:{AF(idx,nb)+2*u+1}], {vWA(sl // 4, nb)} offset:{(sl % 4)*SLOT + 512*u}'
                for nb in range(2) for u in range(2)]
    emit(w_first(7)); emit(w_pre(7))
    emit([bread(0)] + areads(0, 0))
    emit([w_dma(0, sWO), w_dma(1, sWO)])
    emit([bread(1)] + areads(1, 1))
    for m in range(32):
        if m in (4, 8, 12, 16, 20, 24, 28): stamp(47 + m // 4)
        if m + 2 < 32:
            if m + 2 >= 7: a(f's_waitcnt vmcnt({2*(min(31, m + 7) - (m + 2))})')
            emit([bread(m + 2)] + areads(m + 2, m + 2))
        dma = m + 8 < 32
        if dma: emit(w_pre(m + 8))
        a(f's_waitcnt lgkmcnt({5 * min(2, 31 - m)})')
        a(o_mfma(m, 0, AF(m, 0), m == 0))
        if dma: a(w_dma(0, sWO))
        a(o_mfma(m, 1, AF(m, 1), m == 0))
        if dma: a(w_dma(1, sWO))
    a('s_branch L_pub')

    a('L_helper:')
    issued = []
    R0 = 4 if cfg.wq6 else 6
    RB = lambda j, jj: 128 + 16 * (j - R0) + 4 * jj
    def kv_issue(j, inreg=False):
        if not inreg: a(f's_add_u32 m0, {sBASE}, {slot_of(j)*SLOT}')
        if cfg.kvrot:
            a(f's_add_u32 {sT0}, s86, {(j//2)*SLOT}')
            a(f's_and_b32 {sT0}, {sT0}, 0x3ffff')
        else:
            a(f's_add_u32 {sT0}, {sBASE}, {(j//2)*SLOT}')
        for jj in range(4):
            va, srd = (vKD[jj], K_) if j % 2 == 0 else (vVD, V_)
            if inreg:
                a(f'buffer_load_dwordx4 v[{RB(j,jj)}:{RB(j,jj)+3}], {va}, {srd}, {sT0} offen offset:{1024*jj}{cfg.kv_pol}')
            else:
                a(f'buffer_load_dwordx4 {va}, {srd}, {sT0} offen offset:{1024*jj}{cfg.kv_pol} lds')
        issued.append((('kv', j), 4))
    def rb_write(j):
        for jj in range(4):
            a(f'ds_write_b128 {"v11" if j < 8 else "v10"}, v[{RB(j,jj)}:{RB(j,jj)+3}] offset:{(j % 4)*SLOT + 1024*jj}')
    def warm(lab0, lab1, tagn):
        if not cfg.warm: return
        lab = a.label('L_pc')
        a(f'''
        s_getpc_b64 s[80:81]
        {lab}:
        s_lshl_b32 {sT0}, {sB}, 2
        s_add_u32 {sT0}, {sT0}, {sHW}
        s_mul_i32 {sT0}, {sT0}, ((({lab1} - {lab0}) / 64 + 63) / 64) * 64
        v_lshl_add_u32 v32, v0, 6, {sT0}
        v_min_u32 v32, {lab1} - {lab0} - 4, v32
        s_add_u32 s80, s80, {lab0} - {lab}
        s_addc_u32 s81, s81, -1
        v_mov_b32 v33, s81
        v_add_co_u32 v32, vcc, s80, v32
        s_nop 1
        v_addc_co_u32 v33, vcc, 0, v33, vcc
        v_cmp_gt_u32 vcc, (({lab1} - {lab0}) / 64 + 63) / 64, v0
        s_and_saveexec_b64 s[82:83], vcc
        global_load_dword v34, v[32:33], off
        s_mov_b64 exec, s[82:83]
        ''')
        issued.append((('warm', tagn), 1))
    def w_resident(i):
        for own in range(2):
            a(f's_add_u32 {sT0}, {sROT}, {i + NP * own}')
            a(f's_and_b32 {sT0}, {sT0}, 31')
            a(f's_lshl_b32 {sT0}, {sT0}, 14')
            a(f's_add_u32 m0, {sWL}, {WSLOT[i]*SLOT - (0 if own else 4 * 2048)}')
            a(f's_add_u32 {sT0}, {sT0}, {sWG}')
            if not own: a(f's_sub_u32 {sT0}, {sT0}, 512')
            emit([w_dma(0), w_dma(1)])
        issued.append((('w', i), 4))
    def pw_issue(g):
        for j in range(2):
            a(f's_add_u32 {sT0}, {sROT}, {2*g + j}')
            a(f's_and_b32 {sT0}, {sT0}, 31')
            a(f's_lshl_b32 {sT0}, {sT0}, 14')
            a(f's_add_u32 m0, {sBASE}, {(8 + (g & 1))*SLOT + 2048*j}')
            a(f's_add_u32 {sT0}, {sT0}, {sWG}')
            emit([w_dma(0), w_dma(1)])
        issued.append((('pw', g), 4))
    def pw_read(g):
        for j in range(2):
            for nb in range(2):
                for u in range(2):
                    r = PK(2 * g + j, nb) + 2 * u
                    a(f'ds_read_b64_tr_b16 v[{r}:{r+1}], v{122 + nb} offset:{(g & 1)*SLOT + 2048*j + 512*u}')
    def smem_pref(lo, hi):
        if lo >= hi: return
        if lo == 0:
            a(f's_lshl_b32 {sT0}, {sROT}, 14\ns_lshl_b32 {sT1}, {sHW}, 13\ns_add_u32 {sT0}, {sT0}, {sT1}')
            a(f's_add_u32 s88, s52, {sT0}\ns_addc_u32 s89, s53, 0')
        for i in range(lo, hi):
            a(f's_load_dword s{90 + i % 8}, s[88:89], {(i >> 3) * 1024 + 512 + (i & 7) * 64}')
    def wait_for(*items):
        names = [x[0] for x in issued]
        k = max(names.index(it) for it in items)
        a(f's_waitcnt vmcnt({sum(x[1] for x in issued[k+1:])})')
    warm('L_start', 'L_end', 0)
    a(f'''
    s_mov_b32 {sC}, 99
    s_mov_b32 {sCHK}, 99
    s_lshl_b32 {sT0}, {sG}, 3
    v_mov_b32 v30, {sT0}
    v_mov_b32 v29, 8
    s_cmp_eq_u32 {sWAVE}, 4
    s_cbranch_scc0 L_noclear
    s_add_u32 {sT0}, {sT0}, {sHKV}
    s_lshl_b32 {sT0}, {sT0}, 7
    s_add_u32 {sT0}, {sT0}, {FLAG_OFF}
    s_and_b32 {sC}, {sB}, 3
    s_add_u32 {sC}, {sC}, 1
    s_add_u32 {sCHK}, {sC}, 9
    v_mov_b32 v27, 0
    v_mov_b32 v28, 1
    v_lshlrev_b32 v26, 2, v0
    s_mov_b64 exec, 0xff
    buffer_store_dword v27, v26, {WS_}, {sT0} offen sc1
    s_mov_b64 exec, -1
    L_noclear:
    ''')
    if cfg.hprio != 1: a(f's_setprio {cfg.hprio}')
    need = lambda k: 0 if k == 0 else min(31, 2 * k)
    free_at = lambda it: it // 2 + 1 if it % 2 == 0 else it // 2 + 2
    slot_free = lambda j: 0 if j < 10 else free_at(j - 10 if j < 18 else j - 8)
    MERGE = 17
    base_issued = list(issued)
    late_addr = oproj_addr + [f'v_add_u32 v11, {sBASE}, v4', f'v_add_u32 v10, {8*SLOT}, v11', f'v_add_u32 v11, {4*SLOT}, v11',
                              f'v_add_u32 v122, {sBASE}, v121', f'v_add_u32 v122, {8*SLOT}, v122', 'v_xor_b32 v123, 64, v122']
    a(f's_cmp_eq_u32 {sGRP}, 0\ns_cbranch_scc0 L_hkv')
    EP_ = [(16, 20), (104, 108), (24, 124), (8, 12)]
    def fly(grp, k):
        l = cfg.g1_list if grp else cfg.g0_list
        if l: return int(l[min(k, len(l) - 1)])
        return cfg.g1_fly if grp else cfg.g0_fly if k < cfg.g0_sw else cfg.g0_fly2 if k < cfg.g0_sw2 else 4
    def barrier_step(k, grp, st):
        gp = k - 2 - cfg.park0
        if 0 <= gp < cfg.park:
            wait_for(('kv', need(k)), ('pw', gp))
            pw_read(gp)
            a('s_waitcnt lgkmcnt(0)')
        else:
            wait_for(('kv', need(k)))
        if grp == 1 and k == 1: a('s_waitcnt lgkmcnt(0)')
        a(f's_barrier   ; k{k}')
        stamp(8 + k)
        if 2 <= k <= 15: cstamp(23 + k)
        if grp == 1 and k == 0:
            a('s_setprio 0')
            for j in range(R0 + cfg.rb_pre, cfg.g1_pre): rb_write(j)
            a(f's_setprio {cfg.hprio}')
        if 0 <= k - cfg.park0 < cfg.park: pw_issue(k - cfg.park0)
        while st['nxt'] < 32:
            j = st['nxt']
            if slot_free(j) > k or j > need(k + 1) + fly(grp, k): break
            kv_issue(j); st['nxt'] += 1
        if k == 16:
            wait_for(('w', 3))
            for i in range(4):
                emit([f'ds_read_b64_tr_b16 v[{EP_[i][nb]+2*u}:{EP_[i][nb]+2*u+1}], {vWA(WSLOT[i] // 4, nb)} offset:{(WSLOT[i] % 4)*SLOT + 512*u}'
                      for nb in range(2) for u in range(2)])
                if i == 2: a('s_waitcnt lgkmcnt(8)')
        for wi, at in enumerate(cfg.w_at if grp or not cfg.w_at0 else cfg.w_at0):
            if at == k: w_resident(wi)
        if k == 16:
            emit(w_first(23))
            a('s_waitcnt lgkmcnt(0)')
        if grp == 0 and k < 4: smem_pref(min(cfg.smem[0], 32 + 8 * k), min(cfg.smem[0], 40 + 8 * k))
        if k == 11: warm('L_last', 'L_end', 1)
        if 1 <= k <= 4:
            lab = a.label('L_na')
            a(f's_cmp_eq_u32 {sC}, {k}\ns_cbranch_scc0 {lab}\ns_mov_b64 exec, 1')
            a(f'buffer_atomic_add v28, v30, {DBG_}, 0 offen sc1\ns_mov_b64 exec, -1\n{lab}:')
        if 10 <= k <= 13:
            lab = a.label('L_nc')
            a(f's_cmp_eq_u32 {sCHK}, {k}\ns_cbranch_scc0 {lab}')
            a(f'buffer_load_dword v29, v30, {DBG_}, 0 offen sc1\n{lab}:')
    states = []
    for grp in (0, 1):
        issued[:] = base_issued
        st = {}
        if grp == 0:
            for j in range(cfg.g0_pre): kv_issue(j)
            emit(late_addr)
            a(f's_waitcnt vmcnt({sum(x[1] for x in issued)})')
            a('s_barrier   ; Bx')
            stamp(1)
            a('s_barrier   ; Bx2')
            a('s_barrier   ; Bw')
            smem_pref(0, min(32, cfg.smem[0]))
            a('s_barrier   ; Bk')
            top = min(6, max(5, cfg.g0_pre + 4))
            for j in range(cfg.g0_pre, min(top, cfg.g0_pre + 3)): kv_issue(j)
            a('s_barrier   ; Bq')
            for j in range(cfg.g0_pre + 3, top): kv_issue(j)
            st['nxt'] = top
            stamp(2)
        else:
            a('L_hkv:')
            if cfg.near_kv:
                issued[:] = [(('kv', j), 4) for j in range(cfg.g1_first)] + base_issued
            else:
                for j in range(cfg.g1_first): kv_issue(j)
            emit(late_addr)
            a(f's_waitcnt vmcnt({sum(x[1] for x in issued)})')
            a('s_barrier   ; Bx')
            stamp(1)
            for j in range(cfg.g1_first, 4): kv_issue(j)
            a('s_barrier   ; Bx2')
            for j in range(4, cfg.g1_pre): kv_issue(j, j >= R0)
            stamp(2)
            a('s_barrier   ; Bw')
            smem_pref(0, cfg.smem[1])
            a('s_barrier   ; Bk')
            a('s_waitcnt vmcnt(0)')
            a('s_barrier   ; Bq')
            for j in range(R0, min(R0 + cfg.rb_pre, cfg.g1_pre)): rb_write(j)
            st['nxt'] = cfg.g1_pre
        for k in range(MERGE):
            barrier_step(k, grp, st)
        assert st['nxt'] == 32
        if grp == 0: a('s_branch L_hmerge')
    a('L_hmerge:')
    for k in range(MERGE, 17):
        barrier_step(k, 1, st)
    EP = [(16, 20), (104, 108), (24, 124), (8, 12)]
    def wread(dst, slot):
        return [f'ds_read_b64_tr_b16 v[{dst[nb]+2*u}:{dst[nb]+2*u+1}], {vWA(slot // 4, nb)} offset:{(slot % 4)*SLOT + 512*u}'
                for nb in range(2) for u in range(2)]
    def own_refill(slot):
        return [f's_add_u32 {sWO}, {sWO}, 16384', f's_add_u32 m0, {sWL}, {slot*SLOT}', f's_and_b32 {sWO}, {sWO}, 0x7ffff',
                w_dma(0, sWO), w_dma(1, sWO)]
    assert NP == 16 and cfg.early
    for i in range(4): emit(own_refill(WSLOT[i]))
    a(f"""
    s_mov_b32 {sSPIN}, 0
    s_waitcnt vmcnt(8)
    L_chk:
    v_cmp_gt_u32 vcc, 8, v29
    s_cbranch_vccz L_chkd
    s_add_u32 {sSPIN}, {sSPIN}, 1
    s_cmp_gt_u32 {sSPIN}, 0x40000
    s_cbranch_scc1 L_chkd
    buffer_load_dword v29, v30, {DBG_}, 0 offen sc1
    s_waitcnt vmcnt(0)
    s_branch L_chk
    L_chkd:
    s_barrier   ; Bo
    """)
    stamp(6)
    W = WSLOT
    seq = [(20, W[4]), (21, W[5]), (22, W[6]), (23, W[0])] + [(i, None) for i in range(20)] + \
          [(24, W[1]), (25, W[2]), (26, W[3]), (27, W[7]), (28, W[4]), (29, W[5]), (30, W[6]), (31, W[0])]
    vm_order = [23, 24, 25, 26]
    BFs = lambda n: 48 + 4 * (n & 3)
    AFs = lambda n: ((32, 36), (40, 44), (96, 100))[n % 3]
    def reads(n):
        idx, slot = seq[n]
        l = []
        if idx in vm_order and slot is not None:
            l.append(f's_waitcnt vmcnt({2*(len(vm_order) - 1 - vm_order.index(idx))})')
        l.append(f'ds_read_b128 v[{BFs(n)}:{BFs(n)+3}], {vOA} offset:{1024*idx}')
        if slot is not None: l += wread(AFs(n), slot)
        return l
    cnt = lambda n: 0 if n >= 32 else (5 if seq[n][1] is not None else 1)
    emit(reads(0)); emit(reads(1))
    emit(own_refill(W[7])); vm_order.append(27)
    for n in range(32):
        idx, slot = seq[n]
        if n in (4, 8, 12, 16, 20, 24, 28): stamp(47 + n // 4)
        if n + 2 < 32: emit(reads(n + 2))
        a(f's_waitcnt lgkmcnt({cnt(n + 1) + cnt(n + 2)})')
        for nb in range(2):
            areg = AFs(n)[nb] if slot is not None else (PK(idx, nb) if idx < 16 else EP[idx - 16][nb])
            c = '0' if n == 0 else f'v[{PA(nb)}:{PA(nb)+15}]'
            a(f'v_mfma_f32_32x32x16_bf16 v[{PA(nb)}:{PA(nb)+15}], v[{areg}:{areg+3}], v[{BFs(n)}:{BFs(n)+3}], {c}')
        if n < 4:
            emit(own_refill(slot)); vm_order.append(28 + n)
        if n == 3: a('s_setprio 0')

    a('L_pub:')
    stamp(7)
    if cfg.bf16p:
        a(f"""
        s_lshl_b32 {sT0}, {sG}, 3
        s_add_u32 {sT1}, {sT0}, {sWAVE}
        s_lshl_b32 {sT2}, {sT1}, 3
        s_add_u32 {sT2}, {sT2}, {sHKV}
        s_lshl_b32 {sT2}, {sT2}, 12
        s_lshl_b32 {sT1}, {sT1}, 7
        s_add_u32 {sT1}, {sT1}, {FLAG_OFF}
        s_lshl_b32 {sC}, {sHKV}, 2
        s_add_u32 {sT1}, {sT1}, {sC}
        s_add_u32 {sT0}, {sT0}, {sHKV}        ; g*8 + own
        v_mov_b32 v10, 1
        v_mov_b32 v11, 0
        """)
        for pc in range(4):
            for d in range(4):
                a(f'v_cvt_pk_bf16_f32 v{96+4*pc+d}, v{64+8*pc+2*d}, v{65+8*pc+2*d}')
            a(f'buffer_store_dwordx4 v[{96+4*pc}:{99+4*pc}], v4, {WS_}, {sT2} offen offset:{1024*pc} sc1')
        a(f"""
        v_lshlrev_b32 v12, 2, v0
        s_lshl_b32 {sCHK}, {sT0}, 7
        s_add_u32 {sCHK}, {sCHK}, {FLAG_OFF}
        s_lshl_b32 {sT0}, {sT0}, 15
        s_lshr_b32 {sC}, {sWAVE}, 1
        s_lshl_b32 {sT2}, {sC}, 10
        s_add_u32 {sT0}, {sT0}, {sT2}
        s_and_b32 {sT2}, {sWAVE}, 1
        s_lshl_b32 {sCNT}, {sT2}, 8
        s_add_u32 {sT0}, {sT0}, {sCNT}
        v_bfe_u32 v14, v0, 4, 1
        v_lshlrev_b32 v15, 4, v2
        v_lshl_add_u32 v15, v14, 9, v15
        v_lshl_add_u32 v15, v3, 12, v15
        v_lshlrev_b32 v20, 11, v2
        v_lshl_add_u32 v20, v14, 4, v20
        v_lshl_add_u32 v20, v3, 3, v20
        s_lshl_b32 {sC}, {sC}, 5
        s_lshl_b32 {sT2}, {sT2}, 15
        s_add_u32 {sC}, {sC}, {sT2}
        s_waitcnt vmcnt(0)
        s_mov_b64 exec, 1
        buffer_store_dword v10, v11, {WS_}, {sT1} offen sc1
        s_mov_b64 exec, 0xff
        s_mov_b32 {sSPIN}, 0
        """)
        stamp(56)
        if cfg.poll2:
            a(f"""
            buffer_load_dword v13, v12, {WS_}, {sCHK} offen sc1
            L_poll:
            buffer_load_dword v16, v12, {WS_}, {sCHK} offen sc1
            s_waitcnt vmcnt(1)
            v_cmp_ne_u32 vcc, 1, v13
            s_cbranch_vccz L_polled
            buffer_load_dword v13, v12, {WS_}, {sCHK} offen sc1
            s_add_u32 {sSPIN}, {sSPIN}, 1
            s_cmp_gt_u32 {sSPIN}, 0x40000
            s_cbranch_scc1 L_polled
            s_waitcnt vmcnt(1)
            v_cmp_ne_u32 vcc, 1, v16
            s_cbranch_vccnz L_poll
            L_polled:
            s_mov_b64 exec, -1
            """)
        else:
            a(f"""
            L_poll:
            buffer_load_dword v13, v12, {WS_}, {sCHK} offen sc1
            s_add_u32 {sSPIN}, {sSPIN}, 1
            s_cmp_gt_u32 {sSPIN}, 0x40000
            s_cbranch_scc1 L_polled
            s_waitcnt vmcnt(0)
            v_cmp_ne_u32 vcc, 1, v13
            s_cbranch_vccnz L_poll
            L_polled:
            s_mov_b64 exec, -1
            """)
        stamp(57)
        for p in range(4):
            a(f'buffer_load_dwordx4 v[{96+4*p}:{99+4*p}], v15, {WS_}, {sT0} offen sc1')
            if p < 3: a(f's_add_u32 {sT0}, {sT0}, 8192')
        a(f's_mov_b32 {sT1}, 0xffff0000')
        for p in range(4):
            a(f's_waitcnt vmcnt({3-p})')
            for d in range(4):
                lo, hi = (64 + 2 * d, 65 + 2 * d) if p == 0 else (72 + 2 * d, 73 + 2 * d)
                a(f'v_lshlrev_b32 v{lo}, 16, v{96+4*p+d}')
                a(f'v_and_b32 v{hi}, {sT1}, v{96+4*p+d}')
            if p:
                for e in range(8):
                    a(f'v_add_f32 v{64+e}, v{64+e}, v{72+e}')
        a('s_nop 0')
        for e in range(4):
            a(f'v_permlane32_swap_b32 v{64+e}, v{68+e}')
        for e in range(4):
            a(f'v_add_f32 v{64+e}, v{64+e}, v{68+e}')
        a(f"""
        v_cvt_pk_bf16_f32 v96, v64, v65
        v_cvt_pk_bf16_f32 v97, v66, v67
        buffer_store_dwordx2 v[96:97], v20, {OUT_}, {sC} offen{cfg.out_pol}
        """)
    else:
        a(f'''
        s_lshl_b32 {sT0}, {sG}, 3
        s_add_u32 {sT1}, {sT0}, {sWAVE}
        s_lshl_b32 {sT2}, {sT1}, 3
        s_add_u32 {sT2}, {sT2}, {sHKV}
        s_lshl_b32 {sT2}, {sT2}, 13
        s_add_u32 {sCNT}, {sT2}, 4096
        s_lshl_b32 {sT1}, {sT1}, 7
        s_add_u32 {sT1}, {sT1}, {FLAG_OFF}
        s_lshl_b32 {sC}, {sHKV}, 2
        s_add_u32 {sT1}, {sT1}, {sC}
        s_add_u32 {sT0}, {sT0}, {sHKV}        ; g*8 + own
        v_mov_b32 v10, 1
        v_mov_b32 v11, 0
        v_lshlrev_b32 v12, 2, v0
        ''')
        for pc in range(8):
            so = sT2 if pc < 4 else sCNT
            a(f'buffer_store_dwordx4 v[{64+4*pc}:{67+4*pc}], v4, {WS_}, {so} offen offset:{1024*(pc % 4)} sc1')
        a(f'''
        s_lshl_b32 {sCHK}, {sT0}, 7
        s_add_u32 {sCHK}, {sCHK}, {FLAG_OFF}
        s_lshl_b32 {sT0}, {sT0}, 16
        s_lshl_b32 {sC}, {sWAVE}, 10
        s_add_u32 {sT0}, {sT0}, {sC}
        s_waitcnt vmcnt(0)
        s_mov_b64 exec, 1
        buffer_store_dword v10, v11, {WS_}, {sT1} offen sc1
        s_mov_b64 exec, 0xff
        s_mov_b32 {sSPIN}, 0
        ''')
        stamp(56)
        a(f'''
        L_poll:
        buffer_load_dword v13, v12, {WS_}, {sCHK} offen sc1
        s_add_u32 {sSPIN}, {sSPIN}, 1
        s_cmp_gt_u32 {sSPIN}, 0x40000
        s_cbranch_scc1 L_polled
        s_waitcnt vmcnt(0)
        v_cmp_ne_u32 vcc, 1, v13
        s_cbranch_vccnz L_poll
        L_polled:
        s_mov_b64 exec, -1
        ''')
        stamp(57)
        for p in range(8):
            a(f'buffer_load_dwordx4 v[{96+4*p}:{99+4*p}], v4, {WS_}, {sT0} offen sc1')
            if p < 7: a(f's_add_u32 {sT0}, {sT0}, 8192')
        a(f'''
        v_and_b32 v20, 31, v0
        v_lshlrev_b32 v20, 11, v20
        v_lshl_add_u32 v20, v3, 4, v20
        s_lshr_b32 {sT1}, {sWAVE}, 1
        s_lshl_b32 {sT1}, {sT1}, 5
        s_and_b32 {sT2}, {sWAVE}, 1
        s_lshl_b32 {sT2}, {sT2}, 3
        s_add_u32 {sT1}, {sT1}, {sT2}
        ''')
        for p in range(1, 8):
            a(f's_waitcnt vmcnt({7-p})')
            for d in range(4):
                a(f'v_add_f32 v{96+d}, v{96+d}, v{96+4*p+d}')
        a(f'''
        v_cvt_pk_bf16_f32 v96, v96, v97
        v_cvt_pk_bf16_f32 v97, v98, v99
        buffer_store_dwordx2 v[96:97], v20, {OUT_}, {sT1} offen
        ''')
    if cfg.stamps:
        stamp(58)
        a('s_waitcnt vmcnt(0)')
        stamp(59); cstamp(61)
        a(f'''
        s_add_u32 s28, s28, {STAMP_OFF}
        s_addc_u32 s29, s29, 0
        s_lshl_b32 {sT0}, s2, 3
        s_add_u32 {sT0}, {sT0}, {sWAVE}
        s_lshl_b32 {sT0}, {sT0}, 8
        v_lshl_add_u32 v13, v0, 2, {sT0}
        global_store_dword v13, {vSTAMP}, s[28:29]
        ''')
    a('L_end:')
    a('s_endpgm')
    for tag, sb in (('A', 1), ('B', 0), ('D', 1), ('E', 0), ('C', 1)):
        a(f"""
        L_slow{tag}:
        v_mov_b32 v15, v14
        s_nop 1
        v_permlane32_swap_b32 v14, v15
        v_max3_f32 v14, v14, v15, 0
        v_exp_f32 v15, -v14
        """)
        for r in range(16):
            a(f'v_sub_f32 v{S(sb)+r}, v{S(sb)+r}, v14')
        for r in range(16):
            a(f'v_sub_f32 v{CB+r}, v{CB+r}, v14')
        a(f'v_mul_f32 v{LA}, v{LA}, v15')
        if tag == 'C':
            for r in range(16):
                a(f'v_mul_f32 v{S(0)+r}, v{S(0)+r}, v15')
        for r in range(64):
            a(f'v_mul_f32 v{128+r}, v{128+r}, v15')
        a('s_nop 0')
        a(f's_branch L_back{tag}')

    return header([f'; @launch grid=(256,1,1) block=(512,1,1) lds={10*SLOT}']) + kernel_open(kn) + a.text() + descriptor(kn, 256, 102)

if __name__ == '__main__':
    out = sys.argv[1]
    cfg = Cfg()
    for kv in sys.argv[2:]:
        k, v = kv.split('=', 1)
        assert hasattr(cfg, k), k
        setattr(cfg, k, eval(v))
    t = gen(cfg)
    if cfg.nomfma:
        i0 = t.index('L_loop:'); i1 = t.index('L_tail:')
        t = t[:i0] + '\n'.join(('    s_nop 7' if 'v_mfma_f32_32' in l else l) for l in t[i0:i1].split('\n')) + t[i1:]
    n = hazard.check(t)
    open(out, 'w').write(t)
    print(out, 'hazards:', n, 'lines:', t.count('\n'))
```

```python
import sys, struct
from asmlib import *
import hazard

def f32(x):
    return struct.unpack('<I', struct.pack('<f', x))[0]

SLOT = 16384
FLAG_OFF = 16 * 1024 * 1024
STAMP_OFF = 128 * 1024 * 1024
OBASE = 3 * SLOT
WSLOT = [8, 9, 6, 7, 0, 1, 2, 5]

def slot_of(j):
    return j if j < 10 else (j - 10) % 8

class Cfg:
    stamps = 0
    wq_pol = ''
    wo_pol = ''
    x_pol = ' nt'
    kv_pol = ' nt'
    w_at = (13, 14, 14, 14, 15, 15, 15)
    warm = False
    wq_first = 2
    stagger = 1
    g0_fly = 4
    g0_fly2 = 1
    g0_sw = 5
    g0_list = '3333311'
    g1_list = ''
    g0_sw2 = 99
    w_at0 = None
    g0_pre = 0
    g1_pre = 10
    hprio = 1
    park = 8
    poll2 = False
    align = ''
    oprio = 3
    cprio = 0
    nrm = 3
    smem = (0, 0)
    wq6 = False
    rb_pre = 2
    out_pol = ''
    near_kv = True
    early = True
    park0 = 5
    T = 8.0
    kvrot = ''
    nomfma = False
    h_ahead = 4
    h_start = 5
    wq_both = False
    g1_first = 2
    g1_fly = 9
    bf16p = True

woff = lambda idx: ((idx >> 1) << 15) | ((idx & 1) << 13)

def gen(cfg):
    a = Asm()
    kn = NAME + '_kernel'
    def emit(l):
        for x in l: a(x)
    sWAVE, sHKV, sBR, sB, sG, sROT = 's30', 's31', 's32', 's33', 's34', 's35'
    K_, V_, X_, WQ_, WO_, WS_, OUT_, DBG_ = ['s[%d:%d]' % (36 + 4 * i, 39 + 4 * i) for i in range(8)]
    sT0, sT1, sT2, sCNT, sBASE, sLIM, sC, sCHK, sHW = 's68', 's69', 's70', 's71', 's72', 's73', 's74', 's75', 's76'
    sSPIN, sVB, sGRP, sWL, sWG, sWX = 's77', 's78', 's79', 's84', 's85', 's87'
    vSTAMP = 'v31'
    NP = 2 * cfg.park
    def stamp(i):
        if not cfg.stamps or (cfg.stamps == 2 and i not in (0, 59)) or (cfg.stamps == 3 and i not in (0, 8, 24, 6, 7, 56, 57, 58, 59)): return
        a('s_memrealtime s[100:101]')
        a('s_waitcnt lgkmcnt(0)')
        a(f'v_writelane_b32 {vSTAMP}, s100, {i}')
    def cstamp(i):
        if cfg.stamps != 1: return
        a('s_memtime s[100:101]')
        a('s_waitcnt lgkmcnt(0)')
        a(f'v_writelane_b32 {vSTAMP}, s100, {i}')

    a(f'''
    L_start:
    s_cmp_ge_u32 s2, 256
    s_cbranch_scc1 L_end
    s_load_dwordx16 s[4:19], s[0:1], 0
    s_load_dwordx8 s[20:27], s[0:1], 64
    s_load_dwordx2 s[28:29], s[0:1], 96
    v_lshrrev_b32 v1, 6, v0
    v_and_b32 v0, 63, v0
    v_readfirstlane_b32 {sWAVE}, v1
    s_and_b32 {sHKV}, s2, 3
    s_lshl_b32 {sHKV}, {sHKV}, 1
    s_bfe_u32 {sBR}, s2, 0x10003
    s_add_u32 {sHKV}, {sHKV}, {sBR}
    s_bfe_u32 {sBR}, s2, 0x10002
    s_lshr_b32 {sB}, s2, 4
    s_lshl_b32 {sG}, {sBR}, 4
    s_add_u32 {sG}, {sG}, {sB}
    s_lshl_b32 {sROT}, {sB}, 1
    ''')
    a({0: f's_mov_b32 {sGRP}, 0', 1: f's_and_b32 {sGRP}, {sHKV}, 1', 2: f's_mov_b32 {sGRP}, 1'}[cfg.stagger])
    if cfg.stamps:
        a(f'v_mov_b32 {vSTAMP}, 0')
    a(f'''
    v_lshrrev_b32 v1, 4, v0          ; lane>>4
    v_and_b32 v2, 15, v0             ; lane&15
    v_lshrrev_b32 v3, 5, v0          ; h2
    v_lshlrev_b32 v4, 4, v0          ; lane*16
    s_lshl_b32 {sT0}, {sB}, 3
    s_add_u32 {sT0}, {sT0}, {sHKV}
    s_lshl_b32 {sT0}, {sT0}, 18
    s_lshl_b32 {sT1}, {sB}, 15
    s_lshl_b32 {sT2}, {sHKV}, 10
    s_mov_b32 s38, 262144
    s_mov_b32 s39, 0x20000
    s_mov_b32 s42, 262144
    s_mov_b32 s43, 0x20000
    s_mov_b32 s46, 32768
    s_mov_b32 s47, 0x20000
    s_sub_u32 s50, 0x400000, {sT2}
    s_mov_b32 s51, 0x20000
    s_mov_b32 s54, 524288
    s_mov_b32 s55, 0x20000
    s_mov_b32 s58, {FLAG_OFF + 32768}
    s_mov_b32 s59, 0x20000
    s_mov_b32 s63, 0x20000
    s_mov_b32 s66, 256
    s_mov_b32 s67, 0x20000
    s_lshl_b32 {sWL}, {sWAVE}, 11
    s_lshl_b32 {sWG}, {sWAVE}, 7
    s_lshl_b32 {sWX}, {sROT}, 14
    s_add_u32 {sWX}, {sWX}, {sWG}
    s_waitcnt lgkmcnt(0)
    ''')
    stamp(0); cstamp(60)
    a(f'''
    s_cmp_eq_u32 {sBR}, 0
    s_cselect_b32 s36, s6, s16
    s_cselect_b32 s37, s7, s17
    s_cselect_b32 s40, s8, s18
    s_cselect_b32 s41, s9, s19
    s_cselect_b32 s44, s4, s14
    s_cselect_b32 s45, s5, s15
    s_cselect_b32 s48, s10, s20
    s_cselect_b32 s49, s11, s21
    s_cselect_b32 s52, s12, s22
    s_cselect_b32 s53, s13, s23
    s_add_u32 s36, s36, {sT0}
    s_addc_u32 s37, s37, 0
    s_add_u32 s40, s40, {sT0}
    s_addc_u32 s41, s41, 0
    s_add_u32 s44, s44, {sT1}
    s_addc_u32 s45, s45, 0
    s_add_u32 s48, s48, {sT2}
    s_addc_u32 s49, s49, 0
    s_lshl_b32 {sT0}, {sHKV}, 19
    s_add_u32 s52, s52, {sT0}
    s_addc_u32 s53, s53, 0
    s_mov_b32 s56, s28
    s_mov_b32 s57, s29
    s_lshl_b32 {sT0}, {sBR}, 10
    s_lshl_b32 {sT1}, {sHKV}, 7
    s_add_u32 {sT0}, {sT0}, {sT1}
    s_sub_u32 s62, 65536, {sT0}
    s_lshl_b32 {sT1}, {sB}, 16
    s_add_u32 {sT0}, {sT0}, {sT1}
    s_add_u32 s60, s24, {sT0}
    s_addc_u32 s61, s25, 0
    s_mov_b32 s64, s26
    s_mov_b32 s65, s27
    s_cmp_lt_u32 {sWAVE}, 4
    s_cbranch_scc1 L_compute
    ''')
    a('s_setprio 1')
    vKD = ['v5', 'v6', 'v7', 'v8']; vVD = ['v9', 'v12']
    a(f'''
    s_sub_u32 {sHW}, {sWAVE}, 4
    s_lshl_b32 {sT1}, {sROT}, 1
    s_lshl_b32 {sT2}, {sHW}, 3
    ''')
    for jq in range(8):
        a(f'''
        s_add_u32 {sT0}, {sT2}, {jq}
        s_and_b32 {sCNT}, {sT0}, 15
        v_xor_b32 v{16+jq}, {sCNT}, v0
        v_add_u32 v{16+jq}, {sT1}, v{16+jq}
        s_lshl_b32 {sT0}, {sT0}, 10
        v_and_b32 v{16+jq}, 63, v{16+jq}
        s_add_u32 m0, {sT0}, {4*SLOT}
        v_lshlrev_b32 v{16+jq}, 4, v{16+jq}
        buffer_load_dwordx4 v{16+jq}, {X_}, {sT0} offen{cfg.x_pol} lds
        ''')
    a(f'''
    v_xor_b32 v10, v2, v1
    v_lshlrev_b32 v10, 4, v10
    v_lshl_add_u32 v5, v1, 8, v10
    v_xor_b32 v6, 64, v5
    v_xor_b32 v7, 128, v5
    v_xor_b32 v8, 192, v5
    v_lshlrev_b32 v10, 1, v1
    v_xor_b32 v10, v10, v2
    v_lshlrev_b32 v10, 4, v10
    v_lshl_add_u32 v9, v1, 8, v10
    v_xor_b32 v12, 128, v9
    s_lshl_b32 {sBASE}, {sHW}, 12
    ''')
    if cfg.kvrot:
        a(cfg.kvrot.replace('B', sB).replace('H', sHKV).replace('R', sBR).replace(';', '\n'))
        a(f's_and_b32 s86, s86, 15\ns_lshl_b32 s86, s86, 14\ns_add_u32 s86, s86, {sBASE}')
    if cfg.near_kv:
        a(f's_cmp_eq_u32 {sGRP}, 0\ns_cbranch_scc1 L_helper')
        for j in range(cfg.g1_first):
            a(f's_add_u32 m0, {sBASE}, {j*SLOT}')
            a(f's_add_u32 {sT0}, {sBASE}, {(j//2)*SLOT}')
            for jj in range(4):
                va, srd = (vKD[jj], K_) if j % 2 == 0 else (vVD[jj & 1], V_)
                a(f'buffer_load_dwordx4 {va}, {srd}, {sT0} offen offset:{1024*jj}{cfg.kv_pol} lds')
    a('s_branch L_helper')
    a('L_compute:')

    vWD = ['v112', 'v113']
    vWA = lambda region, nb: f'v{114 + 2 * region + nb}'
    vOA, vPA0 = 'v120', 121
    oproj_addr = f'''
    v_lshrrev_b32 v112, 3, v0
    v_and_b32 v113, 7, v0
    v_bfe_u32 v114, v0, 4, 1
    v_lshlrev_b32 v114, 2, v114
    v_xor_b32 v113, v113, v114
    v_lshlrev_b32 v113, 4, v113
    v_lshl_add_u32 v112, v112, 10, v113
    v_add_u32 v113, 15360, v112
    v_and_b32 v114, 1, v0
    v_bfe_u32 v115, v0, 1, 1
    v_lshlrev_b32 v114, 4, v114
    v_lshl_add_u32 v114, v115, 3, v114  ; pi*8
    v_and_b32 v115, 1, v1
    v_lshl_add_u32 v114, v115, 5, v114  ; + g*32
    v_lshl_add_u32 v114, v3, 9, v114    ; + h2*512
    v_bfe_u32 v115, v0, 2, 2
    v_lshl_add_u32 v114, v115, 7, v114  ; + r*128
    v_bfe_u32 v115, v0, 3, 1
    v_lshl_add_u32 v121, v115, 6, v114  ; + (r>>1)*64
    v_add_u32 v114, {sWL}, v121
    v_xor_b32 v115, 64, v114
    v_add_u32 v116, {4*SLOT}, v114
    v_add_u32 v117, {4*SLOT}, v115
    v_add_u32 v118, {8*SLOT}, v114
    v_add_u32 v119, {8*SLOT}, v115
    v_add_u32 v120, {OBASE}, v4
    '''.strip().split('\n')

    vWQ = ['v5', 'v6', 'v7', 'v8']
    a(f'''
    v_lshlrev_b32 v9, 2, v1
    v_xor_b32 v9, v9, v2
    v_lshlrev_b32 v9, 4, v9
    v_lshl_add_u32 v9, v1, 13, v9
    s_lshl_b32 {sT0}, {sWAVE}, 8
    v_add_u32 v5, {sT0}, v9
    v_add_u32 v6, {31744}, v5
    v_add_u32 v7, {2*31744}, v5
    v_add_u32 v8, {3*31744}, v5
    s_add_u32 {sBASE}, {sWAVE}, 6
    s_lshl_b32 {sBASE}, {sBASE}, 14
    ''')
    NQ = 6 if cfg.wq6 else 4
    a(f's_lshl_b32 {sVB}, {sWAVE}, 13\ns_add_u32 {sVB}, {sVB}, {4*SLOT}')
    def wq_pre(i):
        return [f's_add_u32 {sT0}, {sROT}, {i}', f's_and_b32 {sT0}, {sT0}, 31',
                (f's_add_u32 m0, {sBASE}, {(i % NQ) * 4096}' if i % NQ < 4 else f's_add_u32 m0, {sVB}, {(i % NQ - 4) * 4096}'),
                f's_lshl_b32 {sT0}, {sT0}, 17']
    def wq_dma(j):
        return f'buffer_load_dwordx4 {vWQ[j]}, {WQ_}, {sT0} offen offset:{1024*j}{cfg.wq_pol} lds'
    def wq_issue(i):
        emit(wq_pre(i)); emit([wq_dma(j) for j in range(4)])
    if not cfg.wq_both: a(f's_cmp_eq_u32 {sGRP}, 0\ns_cbranch_scc0 L_nowq0')
    for i in range(cfg.wq_first): wq_issue(i)
    a('L_nowq0:')
    a(f'''
    v_bfe_u32 v13, v0, 2, 2          ; r
    v_and_b32 v14, 1, v0
    v_bfe_u32 v15, v0, 1, 1
    v_lshlrev_b32 v14, 4, v14
    v_lshl_add_u32 v14, v15, 3, v14  ; pi*8
    v_and_b32 v15, 1, v1             ; g
    v_lshl_add_u32 v14, v15, 5, v14  ; g*32 + pi*8
    v_lshlrev_b32 v12, 11, v3        ; 8*h2*256
    v_mul_u32_u24 v15, 320, v13      ; r*256 + r*64
    v_add3_u32 v12, v12, v15, v14
    v_add_u32 v16, {sBASE}, v12
    v_xor_b32 v17, 64, v16
    v_xor_b32 v18, 128, v16
    v_xor_b32 v19, 192, v16
    v_and_b32 v20, 31, v0            ; q
    v_xor_b32 v21, v3, v2            ; h2 ^ (q&15)
    v_lshlrev_b32 v21, 4, v21
    v_lshl_add_u32 v21, v20, 10, v21
    v_add_u32 v21, {4*SLOT}, v21
    ''')
    vTQ = ['v16', 'v17', 'v18', 'v19']
    vTQ2 = ['v21', 'v22', 'v23', 'v24']
    XF = lambda i: 128 + 4 * i
    QA = lambda blk: 64 + 16 * blk
    BUF = lambda i, blk: 32 + 16 * (i & 1) + 4 * blk
    OA = lambda blk: 128 + 16 * blk
    for m in range(1, 8):
        a(f'v_xor_b32 v{21+m}, {32*m}, v21')
    vKL, vVL, vOL = 'v29', 'v13', 'v9'
    a(f"""
    v_xor_b32 v14, v1, v2
    v_lshlrev_b32 v14, 4, v14
    v_lshl_add_u32 {vKL}, v2, 8, v14
    v_bfe_u32 v14, v0, 2, 4             ; 4g + r
    v_and_b32 v15, 7, v14
    v_lshlrev_b32 v14, 8, v14
    v_lshl_add_u32 v14, v15, 5, v14
    v_and_b32 v15, 3, v0
    v_lshl_add_u32 {vVL}, v15, 3, v14
    v_lshlrev_b32 v14, 4, v2
    v_lshl_add_u32 v14, v3, 10, v14
    v_and_b32 v15, 1, v1
    v_lshl_add_u32 {vOL}, v15, 9, v14
    v_mov_b32 v30, {hex(f32(1.4426950408889634 / 128 ** 0.5))}
    s_mov_b32 {sC}, {hex(f32(cfg.T))}
    s_barrier   ; Bx
    """)
    stamp(1)
    for i in range(32):
        a(f'ds_read_b128 v[{XF(i)}:{XF(i)+3}], v{21 + (i & 7)} offset:{256*(i >> 3)}')
        if i in (14, 22, 30): a('s_waitcnt lgkmcnt(7)')
    a('s_waitcnt lgkmcnt(0)')
    a('s_barrier   ; Bx2')
    a('s_barrier   ; Bw')
    stamp(2)
    if not cfg.wq_both:
        a(f's_cmp_eq_u32 {sGRP}, 0\ns_cbranch_scc1 L_wq1')
        for i in range(cfg.wq_first): wq_issue(i)
        a('L_wq1:')
    for i in range(cfg.wq_first, NQ - 1): wq_issue(i)
    if cfg.wq6:
        a(f'v_add_u32 v21, {sVB}, v12\nv_xor_b32 v22, 64, v21\nv_xor_b32 v23, 128, v21\nv_xor_b32 v24, 192, v21')
    pre = [x.replace('v112', 'v28').replace('v113', 'v14').replace('v114', 'v12').replace('v115', 'v15').replace('v121', 'v12')
           for x in oproj_addr[:7] + oproj_addr[8:20]]
    emit(pre)
    a(f's_lshl_b32 {sT0}, {sWAVE}, 3\ns_xor_b32 {sT0}, {sT0}, {sROT}\ns_lshl_b32 {sT0}, {sT0}, 10\nv_add_u32 v11, {sT0}, {vOL}')
    def q_mfma(i, blk):
        c = '0' if i == 0 else f'v[{QA(blk)}:{QA(blk)+15}]'
        return f'v_mfma_f32_32x32x16_bf16 v[{QA(blk)}:{QA(blk)+15}], v[{BUF(i,blk)}:{BUF(i,blk)+3}], v[{XF(i)}:{XF(i)+3}], {c}'
    for i in range(32):
        a(f's_waitcnt vmcnt({4*(min(31, i + NQ - 2) - i)})')
        if i == 0: stamp(3)
        if i in (4, 8, 16, 24): stamp(40 + i // 4)
        for blk in range(4):
            for u in range(2):
                r = BUF(i, blk) + 2 * u
                a(f'ds_read_b64_tr_b16 v[{r}:{r+1}], {(vTQ if i % NQ < 4 else vTQ2)[blk]} offset:{(i % NQ % 4)*4096 + 1024*u}')
        dma = i + NQ - 1 < 32
        if dma: emit(wq_pre(i + NQ - 1))
        for blk in range(4):
            if 0 < i < 31 or (i == 31 and blk == 0): a(q_mfma(i - 1, blk))
            if dma: a(wq_dma(blk))
            if 18 <= i < 26:
                for z in range(2):
                    a(f'v_mov_b32 v{128 + 8*(i-18) + 2*blk + z}, 0')
        if i + NQ - 1 == 31: a('s_barrier   ; Bk')
        a('s_waitcnt lgkmcnt(0)')
    a('s_barrier   ; Bq')
    a(f"""
    s_mov_b32 {sCNT}, 13
    s_mov_b32 {sBASE}, 0
    s_mov_b32 {sLIM}, {10*SLOT}
    """)
    QF = lambda ks: 32 + 4 * ks
    S = lambda kb: 64 + 16 * kb
    P = lambda i: 96 + 4 * i if i < 2 else 192 + 4 * (i - 2)
    CB = lambda u: 112 + 4 * u
    LA = lambda u: 104 + 4 * u
    ON = 124
    KF = lambda i: 192 + 4 * i
    VF = lambda t: 224 + 4 * t
    OT = lambda t, u: 128 + 8 * t + 4 * u
    vKA = ['v16', 'v17', 'v18', 'v19']
    vVA = ['v%d' % (20 + t) for t in range(8)]
    M16 = lambda d, x, y, c: f'v_mfma_f32_16x16x32_bf16 v[{d}:{d+3}], v[{x}:{x+3}], v[{y}:{y+3}], ' + (f'v[{c}:{c+3}]' if c is not None else '0')
    def qk(sb, j, first=False):
        s_, kt, u = j >> 2, (j >> 1) & 1, j & 1
        d = S(sb) + 8 * u + 4 * kt
        return M16(d, KF(2 * s_ + kt), QF(2 * s_ + u), d if s_ else (None if first else CB(u)))
    pv = lambda t, u, p: M16(OT(t, u), VF(t), P(p), OT(t, u))
    rsum = lambda u, p: M16(LA(u), ON, P(p), LA(u))
    kread = lambda i, kb: f'ds_read_b128 v[{KF(i)}:{KF(i)+3}], {vKA[i >> 1]} offset:{8192*kb + 4096*(i & 1)}'
    vread = lambda j, kb: f'ds_read_b64_tr_b16 v[{VF(j >> 1)+2*(j & 1)}:{VF(j >> 1)+2*(j & 1)+1}], {vVA[j >> 1]} offset:{8192*kb + 4096*(j & 1)}'
    exp = lambda r: f'v_exp_f32 v{r}, v{r}'
    cvt = lambda p, d, r: f'v_cvt_pk_bf16_f32 v{P(p)+d}, v{r}, v{r+1}'
    def maxchain(sb):
        b = S(sb)
        l = [f'v_max3_f32 v14, v{b}, v{b+1}, v{b+2}', f'v_max3_f32 v15, v{b+3}, v{b+8}, v{b+9}',
             f'v_max3_f32 v14, v14, v{b+10}, v{b+11}', f'v_max3_f32 v15, v15, v{b+4}, v{b+5}',
             f'v_max3_f32 v14, v14, v{b+6}, v{b+7}', f'v_max3_f32 v15, v15, v{b+12}, v{b+13}',
             f'v_max3_f32 v14, v14, v{b+14}, v{b+15}', f'v_max_f32 v14, v14, v15']
        return l
    def rowmax(sb, floor):
        l = []
        for u, (x, y) in enumerate((('v14', 'v15'), ('v6', 'v7'))):
            b = S(sb) + 8 * u
            l += [f'v_max3_f32 {x}, v{b}, v{b+1}, v{b+2}', f'v_max3_f32 {y}, v{b+3}, v{b+4}, v{b+5}',
                  f'v_max3_f32 {x}, {x}, v{b+6}, v{b+7}']
        l += ['v_max_f32 v14, v14, v15', 'v_max_f32 v6, v6, v7', 'v_mov_b32 v15, v14', 'v_mov_b32 v7, v6', 's_nop 0',
              'v_permlane32_swap_b32 v14, v15', 'v_permlane32_swap_b32 v6, v7',
              'v_max_f32 v14, v14, v15', 'v_max_f32 v6, v6, v7', 'v_mov_b32 v15, v14', 'v_mov_b32 v7, v6', 's_nop 0',
              'v_permlane16_swap_b32 v14, v15', 'v_permlane16_swap_b32 v6, v7']
        l += ['v_max3_f32 v14, v14, v15, 0', 'v_max3_f32 v6, v6, v7, 0'] if floor else ['v_max_f32 v14, v14, v15', 'v_max_f32 v6, v6, v7']
        return l
    KA = [f'v_add_u32 {vKA[0]}, {sBASE}, {vKL}'] + [f'v_xor_b32 {vKA[i]}, {64*i}, {vKA[0]}' for i in range(1, 4)]
    VA = [f'v_add_u32 {vVA[0]}, {sVB}, {vVL}'] + [f'v_xor_b32 {vVA[t]}, {32*t}, {vVA[0]}' for t in range(1, 8)]
    cmp_ = f'v_cmp_lt_f32 vcc, {sC}, v14'
    def branch(tag):
        a(f's_cbranch_vccnz L_slow{tag}')
        a(f'L_back{tag}:')
    def mini(cur, x, barrier=False, vnext=True):
        nx = cur ^ 1; b = S(cur)
        Rc = {j: vread(j, cur) for j in range(9, 16)}
        Rn = [vread(j, nx) if vnext else None for j in range(9)]
        D = [kread(i, cur) for i in range(8)]
        E = [exp(b + e) for e in range(16)]
        C = [cvt(d >> 2, d & 3, b + 2 * d) for d in range(8)]
        X = maxchain(nx)
        W = lambda n: f's_waitcnt lgkmcnt({n})'
        g = {0: [Rc[9], E[0]], 1: [E[1]], 2: [Rc[10], E[2]], 3: [D[0], E[3]], 4: [Rc[11], E[4]], 5: [D[1], E[5]],
             6: [Rc[12], E[6]], 7: [W(6), E[7]], 8: [D[2], Rc[13], C[0]], 9: [D[3], C[1]], 10: [Rc[14], C[2]], 11: [D[4], C[3]],
             12: [Rc[15], E[8]], 13: [D[5], E[9]], 14: [E[10]], 15: [D[6], E[11]],
             16: [E[12]], 17: [D[7], E[13]], 18: [E[14]], 19: [E[15], W(3)], 20: [C[4], C[5]], 21: [C[6], C[7]],
             22: [X[0]], 23: [X[1]], 's0': [W(0)] + (['s_barrier   ; k(t+2): V(t+1), K(t+2) landed'] if barrier else []),
             24: [Rn[0], X[2]], 25: [Rn[1], X[3]], 26: [Rn[2], X[4]], 27: [Rn[3], X[5]], 28: [Rn[4], X[6]], 29: [Rn[5], X[7]],
             30: [Rn[6], cmp_], 31: [Rn[7]], 's1': [Rn[8]]}
        def G(k): emit([y for y in g[k] if y] + x.get(k, []))
        for j in range(16):
            a(qk(nx, j)); G(j)
        for t in range(8):
            a(pv(t, 0, 0)); G(16 + t)
        a(rsum(0, 0)); G('s0')
        for t in range(8):
            a(pv(t, 1, 1)); G(24 + t)
        a(rsum(1, 1)); G('s1')
    vx = {1: [VA[0]], 9: [VA[1]], 10: [VA[2]], 11: [VA[3]], 14: [VA[4]], 16: [VA[5]], 22: [VA[6]], 23: [VA[7]]}
    def step(tags, last):
        if last:
            mini(0, {1: [f's_add_u32 {sVB}, {sBASE}, {SLOT}']})
        else:
            mini(0, {1: [f's_add_u32 {sVB}, {sBASE}, {SLOT}'], 9: [f's_add_u32 {sBASE}, {sBASE}, {2*SLOT}'],
                     10: [f's_cmp_eq_u32 {sBASE}, {sLIM}'], 11: [f's_cselect_b32 {sBASE}, 0, {sBASE}'],
                     14: [f's_cselect_b32 {sLIM}, {8*SLOT}, {sLIM}'], 22: [f's_sub_u32 {sCNT}, {sCNT}, 1']})
        branch(tags[0])
        if last:
            mini(1, vx, False, False)
        else:
            mini(1, {**vx, 18: [KA[0]], 31: [KA[1]], 's1': [KA[2]], 's0': [], 20: [], 27: [], 26: [], 29: [KA[3]]}, True)
        branch(tags[1])
    class Lds:
        def __init__(s): s.ops = []; s.done = 0
        def rd(s, ins, tag=None): a(ins); s.ops.append(tag)
        def need(s, tag):
            k = s.ops.index(tag) + 1
            if k > s.done:
                a(f's_waitcnt lgkmcnt({len(s.ops) - k})'); s.done = k
    def qscale(ks):
        src = QA(ks >> 1) + 8 * (ks & 1)
        return [f'v_pk_mul_f32 v[{src+2*d}:{src+2*d+1}], v[{src+2*d}:{src+2*d+1}], v[30:31] op_sel_hi:[1,0]' for d in range(4)]
    def qpack(ks):
        src = QA(ks >> 1) + 8 * (ks & 1)
        return [f'v_cvt_pk_bf16_f32 v{QF(ks)+d}, v{src+2*d}, v{src+2*d+1}' for d in range(4)]
    def qswap(s_):
        x, y = QF(2 * s_), QF(2 * s_ + 1)
        return [f'v_permlane32_swap_b32 v{x+d}, v{y+d}' for d in range(4)] + [f'v_permlane16_swap_b32 v{x+d}, v{y+d}' for d in range(4)]
    a(q_mfma(31, 0)); emit(KA)
    a(q_mfma(30, 1)); a(f's_mov_b32 {sVB}, {SLOT}'); emit(VA[:3])
    a(q_mfma(31, 1)); emit(VA[3:6])
    a(q_mfma(30, 2)); emit(qscale(0))
    a(q_mfma(31, 2)); emit(qscale(1))
    a(q_mfma(30, 3)); emit(qscale(2))
    a(q_mfma(31, 3)); emit(qscale(3))
    stamp(4)
    for ks in range(4): emit(qpack(ks))
    a('s_barrier   ; k0')
    stamp(8)
    L = Lds()
    for i in range(8): L.rd(kread(i, 0), ('a', i))
    a(f's_mov_b32 {sBASE}, {2*SLOT}')
    emit(qscale(4) + qscale(5)); emit(qswap(0)); emit(qpack(4) + qpack(5))
    emit(qscale(6) + qscale(7)); emit(qswap(1)); emit(qpack(6) + qpack(7))
    late = VA[6:] + qswap(2) + qswap(3) + [f'v_mov_b32 v{LA(0)+i}, 0' for i in range(8)] + [f'v_mov_b32 v{ON+i}, 0x3f803f80' for i in range(4)]
    for j in range(16):
        L.need(('a', j >> 1))
        a(qk(0, j, True))
        if j & 1: L.rd(kread(j >> 1, 1), ('b', j >> 1))
        emit(late[:2]); del late[:2]
    assert not late
    emit(KA)
    a('s_nop 2')
    rm = rowmax(0, False)
    emit(rm[:10])
    a('s_waitcnt lgkmcnt(0)')
    a('s_barrier   ; k1')
    for j in range(9): a(vread(j, 0))
    emit(rm[11:])
    for u, m in enumerate(('v14', 'v6')):
        emit([f'v_sub_f32 v{CB(u)+i}, 0, {m}' for i in range(4)])
        emit([f'v_sub_f32 v{S(0)+8*u+i}, v{S(0)+8*u+i}, {m}' for i in range(8)])
    if 'l' in cfg.align: a('.p2align 6')
    if 'L' in cfg.align: a('.p2align 6\ns_nop 0')
    a('L_loop:')
    step('AB', False)
    a('s_cbranch_scc0 L_loop')
    a('L_last:')
    step('DE', True)
    a('L_tail:')
    b0, b1 = S(0), S(1)
    vOW = ['v11', 'v16', 'v17', 'v18']
    fill = [f'v_xor_b32 {vOW[h]}, {h << 11}, v11' for h in range(1, 4)] + \
           ['v_mov_b32 v112, v28', 'v_add_u32 v113, 15360, v28', 'v_mov_b32 v114, v12'] + oproj_addr[20:]
    for j in range(16):
        a(qk(1, j)); emit([exp(b0 + j)])
    emit(fill[:7]); del fill[:7]
    def take(n):
        l = fill[:n]; del fill[:n]; return l
    emit(maxchain(1))
    a(cmp_)
    branch('C')
    emit([cvt(0, d, b0 + 2 * d) for d in range(4)])
    a('s_barrier   ; k16: V15 landed')
    stamp(39)
    L = Lds()
    for j in range(14): L.rd(vread(j, 0), ('a', j))
    emit([cvt(1, d, b0 + 8 + 2 * d) for d in range(4)])
    E1 = [exp(b1 + e) for e in range(16)]
    emit(E1[:2])
    for t in range(8):
        if t % 2 == 0: L.need(('a', 2 * t + 3))
        a(pv(t, 0, 0))
        if t < 2: L.rd(vread(14 + t, 0), ('a', 14 + t))
        a(E1[2 + t])
    a(rsum(0, 0)); a(E1[10])
    C2 = [cvt(2, d, b1 + 2 * d) for d in range(4)]; C3 = [cvt(3, d, b1 + 8 + 2 * d) for d in range(4)]
    fl = [[E1[11]], [E1[12]], [E1[13]], [E1[14]], [E1[15]], C2[:2], C2[2:], C3[:2]]
    for t in range(8):
        a(pv(t, 1, 1))
        if t == 7: L.need(('b', 1))
        L.rd(vread(2 * t, 1), ('b', 2 * t)); L.rd(vread(2 * t + 1, 1), ('b', 2 * t + 1))
        emit(fl[t])
    a(rsum(1, 1)); emit(C3[2:])
    a(rsum(0, 2)); emit(take(2))
    a(rsum(1, 3)); emit(take(2))
    def norm(tp, u):
        inv = ('v[14:15]', 'v[6:7]')[u]; dst = 64 + 8 * tp + 4 * u
        l = []
        for k in range(2):
            src = OT(2 * tp + k, u)
            l += [f'v_pk_mul_f32 v[{src+e}:{src+e+1}], v[{src+e}:{src+e+1}], {inv} op_sel_hi:[1,0]' for e in (0, 2)]
        for k in range(2):
            src = OT(2 * tp + k, u)
            l += [f'v_cvt_pk_bf16_f32 v{dst+2*k+d}, v{src+2*d}, v{src+2*d+1}' for d in range(2)]
        return l + [f'ds_write_b128 {vOW[tp]}, v[{dst}:{dst+3}] offset:{OBASE + 256*u}']
    pend = []
    for t in range(8):
        if t % 2 == 0: L.need(('b', 2 * t + 3))
        if t == 2: emit([f'v_rcp_f32 v14, v{LA(0)}', f'v_rcp_f32 v6, v{LA(1)}'])
        if t == 3: pend += norm(0, 0)[:2]
        if t == 4: pend += norm(0, 0)[2:] + norm(0, 1)
        if t == 6: pend += norm(1, 0) + norm(1, 1)
        for u in range(2):
            a(pv(t, u, 2 + u))
            if t < 2: emit(take(1) or ['s_nop 0'])
            emit(pend[:cfg.nrm]); del pend[:cfg.nrm]
    assert not fill
    stamp(5)
    emit(pend)
    for tp in (2, 3):
        emit(norm(tp, 0) + norm(tp, 1))
    if 'c' in cfg.align: a('.p2align 6')
    if 'C' in cfg.align: a('.p2align 6\ns_nop 0')
    a('s_waitcnt lgkmcnt(0)')
    a('s_barrier   ; Bo')
    stamp(6)
    AF = lambda i, nb: (32, 40, 96)[i % 3] + 4 * nb
    BF = lambda i: 48 + 4 * (i & 3)
    PA = lambda nb: 64 + 16 * nb
    PK = lambda idx, nb: 128 + 8 * idx + 4 * nb
    sWO = sCNT
    def w_pre(m):
        return [f's_add_u32 m0, {sWL}, {WSLOT[m % 8]*SLOT}', f's_xor_b32 {sWO}, {sWX}, {woff(m)}']
    def w_dma(hf, so=sT0):
        return f'buffer_load_dwordx4 {vWD[hf]}, {WO_}, {so} offen offset:{1024*hf}{cfg.wo_pol} lds'
    def o_mfma(idx, nb, areg, first=False):
        c = '0' if first else f'v[{PA(nb)}:{PA(nb)+15}]'
        return f'v_mfma_f32_32x32x16_bf16 v[{PA(nb)}:{PA(nb)+15}], v[{areg}:{areg+3}], v[{BF(idx)}:{BF(idx)+3}], {c}'
    bread = lambda idx: f'ds_read_b128 v[{BF(idx)}:{BF(idx)+3}], {vOA} offset:{1024*idx}'
    def areads(idx, m):
        sl = WSLOT[m % 8]
        return [f'ds_read_b64_tr_b16 v[{AF(idx,nb)+2*u}:{AF(idx,nb)+2*u+1}], {vWA(sl // 4, nb)} offset:{(sl % 4)*SLOT + 1024*u}'
                for nb in range(2) for u in range(2)]
    if cfg.cprio: a(f's_setprio {cfg.cprio}')
    emit(w_pre(7))
    emit([bread(0)] + areads(0, 0))
    emit([w_dma(0, sWO), w_dma(1, sWO)])
    emit([bread(1)] + areads(1, 1))
    for m in range(32):
        if m in (4, 8, 12, 16, 20, 24, 28): stamp(47 + m // 4)
        if m + 2 < 32:
            if m + 2 >= 7: a(f's_waitcnt vmcnt({2*(min(31, m + 7) - (m + 2))})')
            emit([bread(m + 2)] + areads(m + 2, m + 2))
        dma = m + 8 < 32
        if dma: emit(w_pre(m + 8))
        a(f's_waitcnt lgkmcnt({5 * min(2, 31 - m)})')
        a(o_mfma(m, 0, AF(m, 0), m == 0))
        if dma: a(w_dma(0, sWO))
        a(o_mfma(m, 1, AF(m, 1), m == 0))
        if dma: a(w_dma(1, sWO))
    a('s_branch L_pub')

    a('L_helper:')
    issued = []
    R0 = 4 if cfg.wq6 else 6
    RB = lambda j, jj: 128 + 16 * (j - R0) + 4 * jj
    def kv_issue(j, inreg=False):
        if not inreg: a(f's_add_u32 m0, {sBASE}, {slot_of(j)*SLOT}')
        if cfg.kvrot:
            a(f's_add_u32 {sT0}, s86, {(j//2)*SLOT}')
            a(f's_and_b32 {sT0}, {sT0}, 0x3ffff')
        else:
            a(f's_add_u32 {sT0}, {sBASE}, {(j//2)*SLOT}')
        for jj in range(4):
            va, srd = (vKD[jj], K_) if j % 2 == 0 else (vVD[jj & 1], V_)
            if inreg:
                a(f'buffer_load_dwordx4 v[{RB(j,jj)}:{RB(j,jj)+3}], {va}, {srd}, {sT0} offen offset:{1024*jj}{cfg.kv_pol}')
            else:
                a(f'buffer_load_dwordx4 {va}, {srd}, {sT0} offen offset:{1024*jj}{cfg.kv_pol} lds')
        issued.append((('kv', j), 4))
    def rb_write(j):
        for jj in range(4):
            a(f'ds_write_b128 {"v11" if j < 8 else "v10"}, v[{RB(j,jj)}:{RB(j,jj)+3}] offset:{(j % 4)*SLOT + 1024*jj}')
    def warm(lab0, lab1, tagn):
        if not cfg.warm: return
        lab = a.label('L_pc')
        a(f'''
        s_getpc_b64 s[80:81]
        {lab}:
        s_lshl_b32 {sT0}, {sB}, 2
        s_add_u32 {sT0}, {sT0}, {sHW}
        s_mul_i32 {sT0}, {sT0}, ((({lab1} - {lab0}) / 64 + 63) / 64) * 64
        v_lshl_add_u32 v32, v0, 6, {sT0}
        v_min_u32 v32, {lab1} - {lab0} - 4, v32
        s_add_u32 s80, s80, {lab0} - {lab}
        s_addc_u32 s81, s81, -1
        v_mov_b32 v33, s81
        v_add_co_u32 v32, vcc, s80, v32
        s_nop 1
        v_addc_co_u32 v33, vcc, 0, v33, vcc
        v_cmp_gt_u32 vcc, (({lab1} - {lab0}) / 64 + 63) / 64, v0
        s_and_saveexec_b64 s[82:83], vcc
        global_load_dword v34, v[32:33], off
        s_mov_b64 exec, s[82:83]
        ''')
        issued.append((('warm', tagn), 1))
    def w_resident(i):
        for own in range(2):
            a(f's_xor_b32 {sT0}, {sWX}, {woff(i + NP * own)}')
            a(f's_add_u32 m0, {sWL}, {WSLOT[i]*SLOT - (0 if own else 4 * 2048)}')
            a(f's_sub_u32 {sT0}, {sT0}, {0 if own else 512}')
            emit([w_dma(0), w_dma(1)])
        issued.append((('w', i), 4))
    def pw_issue(g):
        for j in range(2):
            a(f's_add_u32 m0, {sBASE}, {(8 + (g & 1))*SLOT + 2048*j}')
            a(f's_xor_b32 {sT0}, {sWX}, {woff(2*g + j)}')
            emit([w_dma(0), w_dma(1)])
        issued.append((('pw', g), 4))
    def pw_read(g):
        for j in range(2):
            for nb in range(2):
                for u in range(2):
                    r = PK(2 * g + j, nb) + 2 * u
                    a(f'ds_read_b64_tr_b16 v[{r}:{r+1}], v{122 + nb} offset:{(g & 1)*SLOT + 2048*j + 1024*u}')
    def smem_pref(lo, hi):
        if lo >= hi: return
        if lo == 0:
            a(f's_lshl_b32 {sT0}, {sROT}, 14\ns_lshl_b32 {sT1}, {sHW}, 13\ns_add_u32 {sT0}, {sT0}, {sT1}')
            a(f's_add_u32 s88, s52, {sT0}\ns_addc_u32 s89, s53, 0')
        for i in range(lo, hi):
            a(f's_load_dword s{90 + i % 8}, s[88:89], {(i >> 3) * 1024 + 512 + (i & 7) * 64}')
    def wait_for(*items):
        names = [x[0] for x in issued]
        k = max(names.index(it) for it in items)
        a(f's_waitcnt vmcnt({sum(x[1] for x in issued[k+1:])})')
    warm('L_start', 'L_end', 0)
    a(f'''
    s_mov_b32 {sC}, 99
    s_mov_b32 {sCHK}, 99
    s_lshl_b32 {sT0}, {sG}, 3
    v_mov_b32 v30, {sT0}
    v_mov_b32 v29, 8
    s_cmp_eq_u32 {sWAVE}, 4
    s_cbranch_scc0 L_noclear
    s_add_u32 {sT0}, {sT0}, {sHKV}
    s_lshl_b32 {sT0}, {sT0}, 7
    s_add_u32 {sT0}, {sT0}, {FLAG_OFF}
    s_and_b32 {sC}, {sB}, 3
    s_add_u32 {sC}, {sC}, 1
    s_add_u32 {sCHK}, {sC}, 9
    v_mov_b32 v27, 0
    v_mov_b32 v28, 1
    v_lshlrev_b32 v26, 2, v0
    s_mov_b64 exec, 0xff
    buffer_store_dword v27, v26, {WS_}, {sT0} offen sc1
    s_mov_b64 exec, -1
    L_noclear:
    ''')
    if cfg.hprio != 1: a(f's_setprio {cfg.hprio}')
    need = lambda k: 0 if k == 0 else min(31, 2 * k)
    free_at = lambda it: it // 2 + 1 if it % 2 == 0 else it // 2 + 2
    slot_free = lambda j: 0 if j < 10 else free_at(j - 10 if j < 18 else j - 8)
    MERGE = 17
    base_issued = list(issued)
    late_addr = oproj_addr + [f'v_add_u32 v11, {sBASE}, v4', f'v_add_u32 v10, {8*SLOT}, v11', f'v_add_u32 v11, {4*SLOT}, v11',
                              f'v_add_u32 v122, {sBASE}, v121', f'v_add_u32 v122, {8*SLOT}, v122', 'v_xor_b32 v123, 64, v122']
    a(f's_cmp_eq_u32 {sGRP}, 0\ns_cbranch_scc0 L_hkv')
    EP_ = [(16, 20), (104, 108), (24, 124), (8, 12)]
    def fly(grp, k):
        l = cfg.g1_list if grp else cfg.g0_list
        if l: return int(l[min(k, len(l) - 1)])
        return cfg.g1_fly if grp else cfg.g0_fly if k < cfg.g0_sw else cfg.g0_fly2 if k < cfg.g0_sw2 else 4
    def barrier_step(k, grp, st):
        gp = k - 2 - cfg.park0
        if 0 <= gp < cfg.park:
            wait_for(('kv', need(k)), ('pw', gp))
            pw_read(gp)
            a('s_waitcnt lgkmcnt(0)')
        else:
            wait_for(('kv', need(k)))
        if grp == 1 and k == 1: a('s_waitcnt lgkmcnt(0)')
        a(f's_barrier   ; k{k}')
        stamp(8 + k)
        if 2 <= k <= 15: cstamp(23 + k)
        if grp == 1 and k == 0:
            a('s_setprio 0')
            for j in range(R0 + cfg.rb_pre, cfg.g1_pre): rb_write(j)
            a(f's_setprio {cfg.hprio}')
        if 0 <= k - cfg.park0 < cfg.park: pw_issue(k - cfg.park0)
        while st['nxt'] < 32:
            j = st['nxt']
            if slot_free(j) > k or j > need(k + 1) + fly(grp, k): break
            kv_issue(j); st['nxt'] += 1
        if k == 16:
            wait_for(('w', 3))
            for i in range(4):
                emit([f'ds_read_b64_tr_b16 v[{EP_[i][nb]+2*u}:{EP_[i][nb]+2*u+1}], {vWA(WSLOT[i] // 4, nb)} offset:{(WSLOT[i] % 4)*SLOT + 1024*u}'
                      for nb in range(2) for u in range(2)])
                if i == 2: a('s_waitcnt lgkmcnt(8)')
        for wi, at in enumerate(cfg.w_at if grp or not cfg.w_at0 else cfg.w_at0):
            if at == k: w_resident(wi)
        if k == 16:
            a('s_waitcnt lgkmcnt(0)')
        if grp == 0 and k < 4: smem_pref(min(cfg.smem[0], 32 + 8 * k), min(cfg.smem[0], 40 + 8 * k))
        if k == 11: warm('L_last', 'L_end', 1)
        if 1 <= k <= 4:
            lab = a.label('L_na')
            a(f's_cmp_eq_u32 {sC}, {k}\ns_cbranch_scc0 {lab}\ns_mov_b64 exec, 1')
            a(f'buffer_atomic_add v28, v30, {DBG_}, 0 offen sc1\ns_mov_b64 exec, -1\n{lab}:')
        if 10 <= k <= 13:
            lab = a.label('L_nc')
            a(f's_cmp_eq_u32 {sCHK}, {k}\ns_cbranch_scc0 {lab}')
            a(f'buffer_load_dword v29, v30, {DBG_}, 0 offen sc1\n{lab}:')
    states = []
    for grp in (0, 1):
        issued[:] = base_issued
        st = {}
        if grp == 0:
            for j in range(cfg.g0_pre): kv_issue(j)
            emit(late_addr)
            a(f's_waitcnt vmcnt({sum(x[1] for x in issued)})')
            a('s_barrier   ; Bx')
            stamp(1)
            a('s_barrier   ; Bx2')
            a('s_barrier   ; Bw')
            smem_pref(0, min(32, cfg.smem[0]))
            a('s_barrier   ; Bk')
            top = min(6, max(5, cfg.g0_pre + 4))
            for j in range(cfg.g0_pre, min(top, cfg.g0_pre + 3)): kv_issue(j)
            a('s_barrier   ; Bq')
            for j in range(cfg.g0_pre + 3, top): kv_issue(j)
            st['nxt'] = top
            stamp(2)
        else:
            a('L_hkv:')
            if cfg.near_kv:
                issued[:] = [(('kv', j), 4) for j in range(cfg.g1_first)] + base_issued
            else:
                for j in range(cfg.g1_first): kv_issue(j)
            emit(late_addr)
            a(f's_waitcnt vmcnt({sum(x[1] for x in issued)})')
            a('s_barrier   ; Bx')
            stamp(1)
            for j in range(cfg.g1_first, 4): kv_issue(j)
            a('s_barrier   ; Bx2')
            for j in range(4, cfg.g1_pre): kv_issue(j, j >= R0)
            stamp(2)
            a('s_barrier   ; Bw')
            smem_pref(0, cfg.smem[1])
            a('s_barrier   ; Bk')
            a('s_waitcnt vmcnt(0)')
            a('s_barrier   ; Bq')
            for j in range(R0, min(R0 + cfg.rb_pre, cfg.g1_pre)): rb_write(j)
            st['nxt'] = cfg.g1_pre
        for k in range(MERGE):
            barrier_step(k, grp, st)
        assert st['nxt'] == 32
        if grp == 0: a('s_branch L_hmerge')
    a('L_hmerge:')
    for k in range(MERGE, 17):
        barrier_step(k, 1, st)
    EP = [(16, 20), (104, 108), (24, 124), (8, 12)]
    def wread(dst, slot):
        return [f'ds_read_b64_tr_b16 v[{dst[nb]+2*u}:{dst[nb]+2*u+1}], {vWA(slot // 4, nb)} offset:{(slot % 4)*SLOT + 1024*u}'
                for nb in range(2) for u in range(2)]
    def own_refill(slot, idx):
        return [f's_add_u32 m0, {sWL}, {slot*SLOT}', f's_xor_b32 {sWO}, {sWX}, {woff(idx)}', w_dma(0, sWO), w_dma(1, sWO)]
    assert NP == 16 and cfg.early
    for i in range(4): emit(own_refill(WSLOT[i], 23 + i))
    a(f"""
    s_mov_b32 {sSPIN}, 0
    s_waitcnt vmcnt(8)
    L_chk:
    v_cmp_gt_u32 vcc, 8, v29
    s_cbranch_vccz L_chkd
    s_add_u32 {sSPIN}, {sSPIN}, 1
    s_cmp_gt_u32 {sSPIN}, 0x40000
    s_cbranch_scc1 L_chkd
    buffer_load_dword v29, v30, {DBG_}, 0 offen sc1
    s_waitcnt vmcnt(0)
    s_branch L_chk
    L_chkd:
    s_barrier   ; Bo
    """)
    stamp(6)
    W = WSLOT
    seq = [(20, W[4]), (21, W[5]), (22, W[6]), (23, W[0])] + [(i, None) for i in range(20)] + \
          [(24, W[1]), (25, W[2]), (26, W[3]), (27, W[7]), (28, W[4]), (29, W[5]), (30, W[6]), (31, W[0])]
    vm_order = [23, 24, 25, 26]
    BFs = lambda n: 48 + 4 * (n & 3)
    AFs = lambda n: ((32, 36), (40, 44), (96, 100))[n % 3]
    def reads(n):
        idx, slot = seq[n]
        l = []
        if idx in vm_order and slot is not None:
            l.append(f's_waitcnt vmcnt({2*(len(vm_order) - 1 - vm_order.index(idx))})')
        l.append(f'ds_read_b128 v[{BFs(n)}:{BFs(n)+3}], {vOA} offset:{1024*idx}')
        if slot is not None: l += wread(AFs(n), slot)
        return l
    cnt = lambda n: 0 if n >= 32 else (5 if seq[n][1] is not None else 1)
    if cfg.oprio < 0: a('s_setprio 0')
    emit(reads(0)); emit(reads(1))
    emit(own_refill(W[7], 27)); vm_order.append(27)
    for n in range(32):
        idx, slot = seq[n]
        if n in (4, 8, 12, 16, 20, 24, 28): stamp(47 + n // 4)
        if n + 2 < 32: emit(reads(n + 2))
        a(f's_waitcnt lgkmcnt({cnt(n + 1) + cnt(n + 2)})')
        for nb in range(2):
            areg = AFs(n)[nb] if slot is not None else (PK(idx, nb) if idx < 16 else EP[idx - 16][nb])
            c = '0' if n == 0 else f'v[{PA(nb)}:{PA(nb)+15}]'
            a(f'v_mfma_f32_32x32x16_bf16 v[{PA(nb)}:{PA(nb)+15}], v[{areg}:{areg+3}], v[{BFs(n)}:{BFs(n)+3}], {c}')
        if n < 4:
            emit(own_refill(slot, 28 + n)); vm_order.append(28 + n)
        if n == cfg.oprio: a('s_setprio 0')

    a('L_pub:')
    stamp(7)
    if cfg.bf16p:
        a(f"""
        s_lshl_b32 {sT0}, {sG}, 3
        s_add_u32 {sT1}, {sT0}, {sWAVE}
        s_lshl_b32 {sT2}, {sT1}, 3
        s_add_u32 {sT2}, {sT2}, {sHKV}
        s_lshl_b32 {sT2}, {sT2}, 12
        s_lshl_b32 {sT1}, {sT1}, 7
        s_add_u32 {sT1}, {sT1}, {FLAG_OFF}
        s_lshl_b32 {sC}, {sHKV}, 2
        s_add_u32 {sT1}, {sT1}, {sC}
        s_add_u32 {sT0}, {sT0}, {sHKV}        ; g*8 + own
        v_mov_b32 v10, 1
        v_mov_b32 v11, 0
        """)
        for pc in range(4):
            for d in range(4):
                a(f'v_cvt_pk_bf16_f32 v{96+4*pc+d}, v{64+8*pc+2*d}, v{65+8*pc+2*d}')
            a(f'buffer_store_dwordx4 v[{96+4*pc}:{99+4*pc}], v4, {WS_}, {sT2} offen offset:{1024*pc} sc1')
        a(f"""
        v_lshlrev_b32 v12, 2, v0
        s_lshl_b32 {sCHK}, {sT0}, 7
        s_add_u32 {sCHK}, {sCHK}, {FLAG_OFF}
        s_lshl_b32 {sT0}, {sT0}, 15
        s_lshr_b32 {sC}, {sWAVE}, 1
        s_lshl_b32 {sT2}, {sC}, 10
        s_add_u32 {sT0}, {sT0}, {sT2}
        s_and_b32 {sT2}, {sWAVE}, 1
        s_lshl_b32 {sCNT}, {sT2}, 8
        s_add_u32 {sT0}, {sT0}, {sCNT}
        v_bfe_u32 v14, v0, 4, 1
        v_lshlrev_b32 v15, 4, v2
        v_lshl_add_u32 v15, v14, 9, v15
        v_lshl_add_u32 v15, v3, 12, v15
        v_lshlrev_b32 v20, 11, v2
        v_lshl_add_u32 v20, v14, 4, v20
        v_lshl_add_u32 v20, v3, 3, v20
        s_lshl_b32 {sC}, {sC}, 5
        s_lshl_b32 {sT2}, {sT2}, 15
        s_add_u32 {sC}, {sC}, {sT2}
        s_waitcnt vmcnt(0)
        s_mov_b64 exec, 1
        buffer_store_dword v10, v11, {WS_}, {sT1} offen sc1
        s_mov_b64 exec, 0xff
        s_mov_b32 {sSPIN}, 0
        """)
        stamp(56)
        if cfg.poll2:
            a(f"""
            buffer_load_dword v13, v12, {WS_}, {sCHK} offen sc1
            L_poll:
            buffer_load_dword v16, v12, {WS_}, {sCHK} offen sc1
            s_waitcnt vmcnt(1)
            v_cmp_ne_u32 vcc, 1, v13
            s_cbranch_vccz L_polled
            buffer_load_dword v13, v12, {WS_}, {sCHK} offen sc1
            s_add_u32 {sSPIN}, {sSPIN}, 1
            s_cmp_gt_u32 {sSPIN}, 0x40000
            s_cbranch_scc1 L_polled
            s_waitcnt vmcnt(1)
            v_cmp_ne_u32 vcc, 1, v16
            s_cbranch_vccnz L_poll
            L_polled:
            s_mov_b64 exec, -1
            """)
        else:
            a(f"""
            L_poll:
            buffer_load_dword v13, v12, {WS_}, {sCHK} offen sc1
            s_add_u32 {sSPIN}, {sSPIN}, 1
            s_cmp_gt_u32 {sSPIN}, 0x40000
            s_cbranch_scc1 L_polled
            s_waitcnt vmcnt(0)
            v_cmp_ne_u32 vcc, 1, v13
            s_cbranch_vccnz L_poll
            L_polled:
            s_mov_b64 exec, -1
            """)
        stamp(57)
        for p in range(4):
            a(f'buffer_load_dwordx4 v[{96+4*p}:{99+4*p}], v15, {WS_}, {sT0} offen sc1')
            if p < 3: a(f's_add_u32 {sT0}, {sT0}, 8192')
        a(f's_mov_b32 {sT1}, 0xffff0000')
        for p in range(4):
            a(f's_waitcnt vmcnt({3-p})')
            for d in range(4):
                lo, hi = (64 + 2 * d, 65 + 2 * d) if p == 0 else (72 + 2 * d, 73 + 2 * d)
                a(f'v_lshlrev_b32 v{lo}, 16, v{96+4*p+d}')
                a(f'v_and_b32 v{hi}, {sT1}, v{96+4*p+d}')
            if p:
                for e in range(8):
                    a(f'v_add_f32 v{64+e}, v{64+e}, v{72+e}')
        a('s_nop 0')
        for e in range(4):
            a(f'v_permlane32_swap_b32 v{64+e}, v{68+e}')
        for e in range(4):
            a(f'v_add_f32 v{64+e}, v{64+e}, v{68+e}')
        a(f"""
        v_cvt_pk_bf16_f32 v96, v64, v65
        v_cvt_pk_bf16_f32 v97, v66, v67
        buffer_store_dwordx2 v[96:97], v20, {OUT_}, {sC} offen{cfg.out_pol}
        """)
    else:
        a(f'''
        s_lshl_b32 {sT0}, {sG}, 3
        s_add_u32 {sT1}, {sT0}, {sWAVE}
        s_lshl_b32 {sT2}, {sT1}, 3
        s_add_u32 {sT2}, {sT2}, {sHKV}
        s_lshl_b32 {sT2}, {sT2}, 13
        s_add_u32 {sCNT}, {sT2}, 4096
        s_lshl_b32 {sT1}, {sT1}, 7
        s_add_u32 {sT1}, {sT1}, {FLAG_OFF}
        s_lshl_b32 {sC}, {sHKV}, 2
        s_add_u32 {sT1}, {sT1}, {sC}
        s_add_u32 {sT0}, {sT0}, {sHKV}        ; g*8 + own
        v_mov_b32 v10, 1
        v_mov_b32 v11, 0
        v_lshlrev_b32 v12, 2, v0
        ''')
        for pc in range(8):
            so = sT2 if pc < 4 else sCNT
            a(f'buffer_store_dwordx4 v[{64+4*pc}:{67+4*pc}], v4, {WS_}, {so} offen offset:{1024*(pc % 4)} sc1')
        a(f'''
        s_lshl_b32 {sCHK}, {sT0}, 7
        s_add_u32 {sCHK}, {sCHK}, {FLAG_OFF}
        s_lshl_b32 {sT0}, {sT0}, 16
        s_lshl_b32 {sC}, {sWAVE}, 10
        s_add_u32 {sT0}, {sT0}, {sC}
        s_waitcnt vmcnt(0)
        s_mov_b64 exec, 1
        buffer_store_dword v10, v11, {WS_}, {sT1} offen sc1
        s_mov_b64 exec, 0xff
        s_mov_b32 {sSPIN}, 0
        ''')
        stamp(56)
        a(f'''
        L_poll:
        buffer_load_dword v13, v12, {WS_}, {sCHK} offen sc1
        s_add_u32 {sSPIN}, {sSPIN}, 1
        s_cmp_gt_u32 {sSPIN}, 0x40000
        s_cbranch_scc1 L_polled
        s_waitcnt vmcnt(0)
        v_cmp_ne_u32 vcc, 1, v13
        s_cbranch_vccnz L_poll
        L_polled:
        s_mov_b64 exec, -1
        ''')
        stamp(57)
        for p in range(8):
            a(f'buffer_load_dwordx4 v[{96+4*p}:{99+4*p}], v4, {WS_}, {sT0} offen sc1')
            if p < 7: a(f's_add_u32 {sT0}, {sT0}, 8192')
        a(f'''
        v_and_b32 v20, 31, v0
        v_lshlrev_b32 v20, 11, v20
        v_lshl_add_u32 v20, v3, 4, v20
        s_lshr_b32 {sT1}, {sWAVE}, 1
        s_lshl_b32 {sT1}, {sT1}, 5
        s_and_b32 {sT2}, {sWAVE}, 1
        s_lshl_b32 {sT2}, {sT2}, 3
        s_add_u32 {sT1}, {sT1}, {sT2}
        ''')
        for p in range(1, 8):
            a(f's_waitcnt vmcnt({7-p})')
            for d in range(4):
                a(f'v_add_f32 v{96+d}, v{96+d}, v{96+4*p+d}')
        a(f'''
        v_cvt_pk_bf16_f32 v96, v96, v97
        v_cvt_pk_bf16_f32 v97, v98, v99
        buffer_store_dwordx2 v[96:97], v20, {OUT_}, {sT1} offen
        ''')
    if cfg.stamps:
        stamp(58)
        a('s_waitcnt vmcnt(0)')
        stamp(59); cstamp(61)
        a(f'''
        s_add_u32 s28, s28, {STAMP_OFF}
        s_addc_u32 s29, s29, 0
        s_lshl_b32 {sT0}, s2, 3
        s_add_u32 {sT0}, {sT0}, {sWAVE}
        s_lshl_b32 {sT0}, {sT0}, 8
        v_lshl_add_u32 v13, v0, 2, {sT0}
        global_store_dword v13, {vSTAMP}, s[28:29]
        ''')
    a('L_end:')
    a('s_endpgm')
    for tag, sb in (('A', 1), ('B', 0), ('D', 1), ('E', 0), ('C', 1)):
        a(f'L_slow{tag}:')
        emit(rowmax(sb, True))
        a('v_exp_f32 v15, -v14')
        a('v_exp_f32 v7, -v6')
        for u, (d, al) in enumerate((('v14', 'v15'), ('v6', 'v7'))):
            emit([f'v_sub_f32 v{S(sb)+8*u+r}, v{S(sb)+8*u+r}, {d}' for r in range(8)])
            if tag != 'C': emit([f'v_sub_f32 v{CB(u)+r}, v{CB(u)+r}, {d}' for r in range(4)])
            a(f'v_mul_f32 v{LA(u)}, v{LA(u)}, {al}')
            if tag == 'C':
                emit([f'v_mul_f32 v{S(0)+8*u+r}, v{S(0)+8*u+r}, {al}' for r in range(8)])
            for t in range(8):
                emit([f'v_mul_f32 v{OT(t,u)+r}, v{OT(t,u)+r}, {al}' for r in range(4)])
        a('s_nop 0')
        a(f's_branch L_back{tag}')

    return header([f'; @launch grid=(256,1,1) block=(512,1,1) lds={10*SLOT}']) + kernel_open(kn) + a.text() + descriptor(kn, 256, 102)

if __name__ == '__main__':
    out = sys.argv[1]
    cfg = Cfg()
    for kv in sys.argv[2:]:
        k, v = kv.split('=', 1)
        assert hasattr(cfg, k), k
        setattr(cfg, k, eval(v))
    t = gen(cfg)
    if cfg.nomfma:
        i0 = t.index('L_loop:'); i1 = t.index('L_tail:')
        t = t[:i0] + '\n'.join(('    s_nop 7' if 'v_mfma_f32_32' in l else l) for l in t[i0:i1].split('\n')) + t[i1:]
    n = hazard.check(t)
    open(out, 'w').write(t)
    print(out, 'hazards:', n, 'lines:', t.count('\n'))
```

```python
import sys, struct
from asmlib import *
import hazard

def f32(x):
    return struct.unpack('<I', struct.pack('<f', x))[0]

SLOT = 16384
FLAG_OFF = 16 * 1024 * 1024
STAMP_OFF = 128 * 1024 * 1024
OBASE = 3 * SLOT
WSLOT = [8, 9, 6, 7, 0, 1, 2, 5]

def slot_of(j):
    return j if j < 10 else (j - 10) % 8

class Cfg:
    stamps = 0
    wq_pol = ''
    wo_pol = ''
    x_pol = ''
    kv_pol = ' nt'
    w_at = (13, 14, 14, 14, 15, 15, 15)
    warm = False
    wq_first = 3
    stagger = 1
    g0_fly = 4
    g0_fly2 = 1
    g0_sw = 5
    g0_list = '3333311'
    g1_list = ''
    g0_sw2 = 99
    w_at0 = None
    g0_pre = 0
    g1_pre = 11
    hprio = 1
    park = 8
    poll2 = False
    hearly = 0
    wtouch = (0, 0)
    hs0 = True
    hburst = 24
    hbp = 0
    poll1 = 0
    psleep = 0
    align = ''
    oprio = 3
    cprio = 0
    nrm = 3
    smem = (0, 0)
    wq6 = False
    rb_pre = 2
    out_pol = ''
    near_kv = True
    early = True
    park0 = 5
    T = 8.0
    kvrot = ''
    nomfma = False
    h_ahead = 4
    h_start = 5
    wq_both = False
    g1_first = 2
    g1_fly = 5
    bf16p = True

woff = lambda idx: ((idx >> 1) << 15) | ((idx & 1) << 13)

def gen(cfg):
    a = Asm()
    kn = NAME + '_kernel'
    def emit(l):
        for x in l: a(x)
    sWAVE, sHKV, sBR, sB, sG, sROT = 's30', 's31', 's32', 's33', 's34', 's35'
    K_, V_, X_, WQ_, WO_, WS_, OUT_, DBG_ = ['s[%d:%d]' % (36 + 4 * i, 39 + 4 * i) for i in range(8)]
    sT0, sT1, sT2, sCNT, sBASE, sLIM, sC, sCHK, sHW = 's68', 's69', 's70', 's71', 's72', 's73', 's74', 's75', 's76'
    sSPIN, sVB, sGRP, sWL, sWG, sWX = 's77', 's78', 's79', 's84', 's85', 's87'
    vSTAMP = 'v31'
    NP = 2 * cfg.park
    def stamp(i):
        if not cfg.stamps or (cfg.stamps == 2 and i not in (0, 59)) or (cfg.stamps == 3 and i not in (0, 8, 24, 6, 7, 56, 57, 58, 59)): return
        a('s_memrealtime s[100:101]')
        a('s_waitcnt lgkmcnt(0)')
        a(f'v_writelane_b32 {vSTAMP}, s100, {i}')
    def cstamp(i):
        if cfg.stamps != 1: return
        a('s_memtime s[100:101]')
        a('s_waitcnt lgkmcnt(0)')
        a(f'v_writelane_b32 {vSTAMP}, s100, {i}')

    a(f'''
    L_start:
    s_cmp_ge_u32 s2, 256
    s_cbranch_scc1 L_end
    s_load_dwordx16 s[4:19], s[0:1], 0
    s_load_dwordx8 s[20:27], s[0:1], 64
    s_load_dwordx2 s[28:29], s[0:1], 96
    v_lshrrev_b32 v1, 6, v0
    v_and_b32 v0, 63, v0
    v_readfirstlane_b32 {sWAVE}, v1
    s_and_b32 {sHKV}, s2, 3
    s_lshl_b32 {sHKV}, {sHKV}, 1
    s_bfe_u32 {sBR}, s2, 0x10003
    s_add_u32 {sHKV}, {sHKV}, {sBR}
    s_bfe_u32 {sBR}, s2, 0x10002
    s_lshr_b32 {sB}, s2, 4
    s_lshl_b32 {sG}, {sBR}, 4
    s_add_u32 {sG}, {sG}, {sB}
    s_lshl_b32 {sROT}, {sB}, 1
    ''')
    a({0: f's_mov_b32 {sGRP}, 0', 1: f's_and_b32 {sGRP}, {sHKV}, 1', 2: f's_mov_b32 {sGRP}, 1'}[cfg.stagger])
    if cfg.stamps:
        a(f'v_mov_b32 {vSTAMP}, 0')
    a(f'''
    v_lshrrev_b32 v1, 4, v0          ; lane>>4
    v_and_b32 v2, 15, v0             ; lane&15
    v_lshrrev_b32 v3, 5, v0          ; h2
    v_lshlrev_b32 v4, 4, v0          ; lane*16
    s_lshl_b32 {sT0}, {sB}, 3
    s_add_u32 {sT0}, {sT0}, {sHKV}
    s_lshl_b32 {sT0}, {sT0}, 18
    s_lshl_b32 {sT1}, {sB}, 15
    s_lshl_b32 {sT2}, {sHKV}, 10
    s_mov_b32 s38, 262144
    s_mov_b32 s39, 0x20000
    s_mov_b32 s42, 262144
    s_mov_b32 s43, 0x20000
    s_mov_b32 s46, 32768
    s_mov_b32 s47, 0x20000
    s_sub_u32 s50, 0x400000, {sT2}
    s_mov_b32 s51, 0x20000
    s_mov_b32 s54, 524288
    s_mov_b32 s55, 0x20000
    s_mov_b32 s58, {FLAG_OFF + 32768}
    s_mov_b32 s59, 0x20000
    s_mov_b32 s63, 0x20000
    s_mov_b32 s66, 256
    s_mov_b32 s67, 0x20000
    s_lshl_b32 {sWL}, {sWAVE}, 11
    s_lshl_b32 {sWG}, {sWAVE}, 7
    s_lshl_b32 {sWX}, {sROT}, 14
    s_add_u32 {sWX}, {sWX}, {sWG}
    s_waitcnt lgkmcnt(0)
    ''')
    stamp(0); cstamp(60)
    a(f'''
    s_cmp_eq_u32 {sBR}, 0
    s_cselect_b32 s36, s6, s16
    s_cselect_b32 s37, s7, s17
    s_cselect_b32 s40, s8, s18
    s_cselect_b32 s41, s9, s19
    s_cselect_b32 s44, s4, s14
    s_cselect_b32 s45, s5, s15
    s_cselect_b32 s48, s10, s20
    s_cselect_b32 s49, s11, s21
    s_cselect_b32 s52, s12, s22
    s_cselect_b32 s53, s13, s23
    s_add_u32 s36, s36, {sT0}
    s_addc_u32 s37, s37, 0
    s_add_u32 s40, s40, {sT0}
    s_addc_u32 s41, s41, 0
    s_add_u32 s44, s44, {sT1}
    s_addc_u32 s45, s45, 0
    s_add_u32 s48, s48, {sT2}
    s_addc_u32 s49, s49, 0
    s_lshl_b32 {sT0}, {sHKV}, 19
    s_add_u32 s52, s52, {sT0}
    s_addc_u32 s53, s53, 0
    s_mov_b32 s56, s28
    s_mov_b32 s57, s29
    s_lshl_b32 {sT0}, {sBR}, 10
    s_lshl_b32 {sT1}, {sHKV}, 7
    s_add_u32 {sT0}, {sT0}, {sT1}
    s_sub_u32 s62, 65536, {sT0}
    s_lshl_b32 {sT1}, {sB}, 16
    s_add_u32 {sT0}, {sT0}, {sT1}
    s_add_u32 s60, s24, {sT0}
    s_addc_u32 s61, s25, 0
    s_mov_b32 s64, s26
    s_mov_b32 s65, s27
    s_cmp_lt_u32 {sWAVE}, 4
    s_cbranch_scc1 L_compute
    ''')
    a('s_setprio 1')
    vKD = ['v5', 'v6', 'v7', 'v8']; vVD = ['v9', 'v12']
    a(f'''
    s_sub_u32 {sHW}, {sWAVE}, 4
    s_lshl_b32 {sT1}, {sROT}, 1
    s_lshl_b32 {sT2}, {sHW}, 3
    ''')
    for jq in range(8):
        a(f'''
        s_add_u32 {sT0}, {sT2}, {jq}
        s_and_b32 {sCNT}, {sT0}, 15
        v_xor_b32 v{16+jq}, {sCNT}, v0
        v_add_u32 v{16+jq}, {sT1}, v{16+jq}
        s_lshl_b32 {sT0}, {sT0}, 10
        v_and_b32 v{16+jq}, 63, v{16+jq}
        s_add_u32 m0, {sT0}, {4*SLOT}
        v_lshlrev_b32 v{16+jq}, 4, v{16+jq}
        buffer_load_dwordx4 v{16+jq}, {X_}, {sT0} offen{cfg.x_pol} lds
        ''')
    a(f'''
    v_xor_b32 v10, v2, v1
    v_lshlrev_b32 v10, 4, v10
    v_lshl_add_u32 v5, v1, 8, v10
    v_xor_b32 v6, 64, v5
    v_xor_b32 v7, 128, v5
    v_xor_b32 v8, 192, v5
    v_lshlrev_b32 v10, 1, v1
    v_xor_b32 v10, v10, v2
    v_lshlrev_b32 v10, 4, v10
    v_lshl_add_u32 v9, v1, 8, v10
    v_xor_b32 v12, 128, v9
    s_lshl_b32 {sBASE}, {sHW}, 12
    ''')
    if cfg.kvrot:
        a(cfg.kvrot.replace('B', sB).replace('H', sHKV).replace('R', sBR).replace(';', '\n'))
        a(f's_and_b32 s86, s86, 15\ns_lshl_b32 s86, s86, 14\ns_add_u32 s86, s86, {sBASE}')
    if cfg.near_kv:
        a(f's_cmp_eq_u32 {sGRP}, 0\ns_cbranch_scc1 L_helper')
        for j in range(cfg.g1_first):
            a(f's_add_u32 m0, {sBASE}, {j*SLOT}')
            a(f's_add_u32 {sT0}, {sBASE}, {(j//2)*SLOT}')
            for jj in range(4):
                va, srd = (vKD[jj], K_) if j % 2 == 0 else (vVD[jj & 1], V_)
                a(f'buffer_load_dwordx4 {va}, {srd}, {sT0} offen offset:{1024*jj}{cfg.kv_pol} lds')
    a('s_branch L_helper')
    a('L_compute:')

    vWD = ['v112', 'v113']
    vWA = lambda region, nb: f'v{114 + 2 * region + nb}'
    vOA, vPA0 = 'v120', 121
    oproj_addr = f'''
    v_lshrrev_b32 v112, 3, v0
    v_and_b32 v113, 7, v0
    v_bfe_u32 v114, v0, 4, 1
    v_lshlrev_b32 v114, 2, v114
    v_xor_b32 v113, v113, v114
    v_lshlrev_b32 v113, 4, v113
    v_lshl_add_u32 v112, v112, 10, v113
    v_add_u32 v113, 15360, v112
    v_and_b32 v114, 1, v0
    v_bfe_u32 v115, v0, 1, 1
    v_lshlrev_b32 v114, 4, v114
    v_lshl_add_u32 v114, v115, 3, v114  ; pi*8
    v_and_b32 v115, 1, v1
    v_lshl_add_u32 v114, v115, 5, v114  ; + g*32
    v_lshl_add_u32 v114, v3, 9, v114    ; + h2*512
    v_bfe_u32 v115, v0, 2, 2
    v_lshl_add_u32 v114, v115, 7, v114  ; + r*128
    v_bfe_u32 v115, v0, 3, 1
    v_lshl_add_u32 v121, v115, 6, v114  ; + (r>>1)*64
    v_add_u32 v114, {sWL}, v121
    v_xor_b32 v115, 64, v114
    v_add_u32 v116, {4*SLOT}, v114
    v_add_u32 v117, {4*SLOT}, v115
    v_add_u32 v118, {8*SLOT}, v114
    v_add_u32 v119, {8*SLOT}, v115
    v_add_u32 v120, {OBASE}, v4
    '''.strip().split('\n')

    vWQ = ['v5', 'v6', 'v7', 'v8']
    a(f'''
    v_lshlrev_b32 v9, 2, v1
    v_xor_b32 v9, v9, v2
    v_lshlrev_b32 v9, 4, v9
    v_lshl_add_u32 v9, v1, 13, v9
    s_lshl_b32 {sT0}, {sWAVE}, 8
    v_add_u32 v5, {sT0}, v9
    v_add_u32 v6, {31744}, v5
    v_add_u32 v7, {2*31744}, v5
    v_add_u32 v8, {3*31744}, v5
    s_add_u32 {sBASE}, {sWAVE}, 6
    s_lshl_b32 {sBASE}, {sBASE}, 14
    ''')
    NQ = 6 if cfg.wq6 else 4
    a(f's_lshl_b32 {sVB}, {sWAVE}, 13\ns_add_u32 {sVB}, {sVB}, {4*SLOT}')
    def wq_pre(i):
        return [f's_add_u32 {sT0}, {sROT}, {i}', f's_and_b32 {sT0}, {sT0}, 31',
                (f's_add_u32 m0, {sBASE}, {(i % NQ) * 4096}' if i % NQ < 4 else f's_add_u32 m0, {sVB}, {(i % NQ - 4) * 4096}'),
                f's_lshl_b32 {sT0}, {sT0}, 17']
    def wq_dma(j):
        return f'buffer_load_dwordx4 {vWQ[j]}, {WQ_}, {sT0} offen offset:{1024*j}{cfg.wq_pol} lds'
    def wq_issue(i):
        emit(wq_pre(i)); emit([wq_dma(j) for j in range(4)])
    if not cfg.wq_both: a(f's_cmp_eq_u32 {sGRP}, 0\ns_cbranch_scc0 L_nowq0')
    for i in range(cfg.wq_first): wq_issue(i)
    a('L_nowq0:')
    if cfg.hs0:
        a(f'''
        s_cmp_eq_u32 {sWAVE}, 0
        s_cbranch_scc0 L_noclear
        s_lshl_b32 {sT0}, {sG}, 3
        s_add_u32 {sT0}, {sT0}, {sHKV}
        s_lshl_b32 {sT0}, {sT0}, 7
        s_add_u32 {sT0}, {sT0}, {FLAG_OFF}
        v_mov_b32 v10, 0
        v_lshlrev_b32 v11, 2, v0
        s_mov_b64 exec, 0xff
        buffer_store_dword v10, v11, {WS_}, {sT0} offen sc1
        s_mov_b64 exec, -1
        L_noclear:
        ''')
    a(f'''
    v_bfe_u32 v13, v0, 2, 2          ; r
    v_and_b32 v14, 1, v0
    v_bfe_u32 v15, v0, 1, 1
    v_lshlrev_b32 v14, 4, v14
    v_lshl_add_u32 v14, v15, 3, v14  ; pi*8
    v_and_b32 v15, 1, v1             ; g
    v_lshl_add_u32 v14, v15, 5, v14  ; g*32 + pi*8
    v_lshlrev_b32 v12, 11, v3        ; 8*h2*256
    v_mul_u32_u24 v15, 320, v13      ; r*256 + r*64
    v_add3_u32 v12, v12, v15, v14
    v_add_u32 v16, {sBASE}, v12
    v_xor_b32 v17, 64, v16
    v_xor_b32 v18, 128, v16
    v_xor_b32 v19, 192, v16
    v_and_b32 v20, 31, v0            ; q
    v_xor_b32 v21, v3, v2            ; h2 ^ (q&15)
    v_lshlrev_b32 v21, 4, v21
    v_lshl_add_u32 v21, v20, 10, v21
    v_add_u32 v21, {4*SLOT}, v21
    ''')
    vTQ = ['v16', 'v17', 'v18', 'v19']
    vTQ2 = ['v21', 'v22', 'v23', 'v24']
    XF = lambda i: 128 + 4 * i
    QA = lambda blk: 64 + 16 * blk
    BUF = lambda i, blk: 32 + 16 * (i & 1) + 4 * blk
    OA = lambda blk: 128 + 16 * blk
    for m in range(1, 8):
        a(f'v_xor_b32 v{21+m}, {32*m}, v21')
    vKL, vVL, vOL = 'v29', 'v13', 'v9'
    a(f"""
    v_xor_b32 v14, v1, v2
    v_lshlrev_b32 v14, 4, v14
    v_lshl_add_u32 {vKL}, v2, 8, v14
    v_bfe_u32 v14, v0, 2, 4             ; 4g + r
    v_and_b32 v15, 7, v14
    v_lshlrev_b32 v14, 8, v14
    v_lshl_add_u32 v14, v15, 5, v14
    v_and_b32 v15, 3, v0
    v_lshl_add_u32 {vVL}, v15, 3, v14
    v_lshlrev_b32 v14, 4, v2
    v_lshl_add_u32 v14, v3, 10, v14
    v_and_b32 v15, 1, v1
    v_lshl_add_u32 {vOL}, v15, 9, v14
    v_mov_b32 v30, {hex(f32(1.4426950408889634 / 128 ** 0.5))}
    s_mov_b32 {sC}, {hex(f32(cfg.T))}
    s_barrier   ; Bx
    """)
    stamp(1)
    for i in range(32):
        a(f'ds_read_b128 v[{XF(i)}:{XF(i)+3}], v{21 + (i & 7)} offset:{256*(i >> 3)}')
        if i in (14, 22, 30): a('s_waitcnt lgkmcnt(7)')
    a('s_waitcnt lgkmcnt(0)')
    a('s_barrier   ; Bx2')
    a('s_barrier   ; Bw')
    stamp(2)
    if not cfg.wq_both:
        a(f's_cmp_eq_u32 {sGRP}, 0\ns_cbranch_scc1 L_wq1')
        for i in range(cfg.wq_first): wq_issue(i)
        a('L_wq1:')
    for i in range(cfg.wq_first, NQ - 1): wq_issue(i)
    if cfg.wq6:
        a(f'v_add_u32 v21, {sVB}, v12\nv_xor_b32 v22, 64, v21\nv_xor_b32 v23, 128, v21\nv_xor_b32 v24, 192, v21')
    pre = [x.replace('v112', 'v28').replace('v113', 'v14').replace('v114', 'v12').replace('v115', 'v15').replace('v121', 'v12')
           for x in oproj_addr[:7] + oproj_addr[8:20]]
    emit(pre)
    a(f's_lshl_b32 {sT0}, {sWAVE}, 3\ns_xor_b32 {sT0}, {sT0}, {sROT}\ns_lshl_b32 {sT0}, {sT0}, 10\nv_add_u32 v11, {sT0}, {vOL}')
    def q_mfma(i, blk):
        c = '0' if i == 0 else f'v[{QA(blk)}:{QA(blk)+15}]'
        return f'v_mfma_f32_32x32x16_bf16 v[{QA(blk)}:{QA(blk)+15}], v[{BUF(i,blk)}:{BUF(i,blk)+3}], v[{XF(i)}:{XF(i)+3}], {c}'
    for i in range(32):
        a(f's_waitcnt vmcnt({4*(min(31, i + NQ - 2) - i)})')
        if i == 0: stamp(3)
        if i in (4, 8, 16, 24): stamp(40 + i // 4)
        for blk in range(4):
            for u in range(2):
                r = BUF(i, blk) + 2 * u
                a(f'ds_read_b64_tr_b16 v[{r}:{r+1}], {(vTQ if i % NQ < 4 else vTQ2)[blk]} offset:{(i % NQ % 4)*4096 + 1024*u}')
        dma = i + NQ - 1 < 32
        if dma: emit(wq_pre(i + NQ - 1))
        for blk in range(4):
            if 0 < i < 31 or (i == 31 and blk == 0): a(q_mfma(i - 1, blk))
            if dma: a(wq_dma(blk))
            if 18 <= i < 26:
                for z in range(2):
                    a(f'v_mov_b32 v{128 + 8*(i-18) + 2*blk + z}, 0')
        if i + NQ - 1 == 31: a('s_barrier   ; Bk')
        a('s_waitcnt lgkmcnt(0)')
    a('s_barrier   ; Bq')
    a(f"""
    s_mov_b32 {sCNT}, 13
    s_mov_b32 {sBASE}, 0
    s_mov_b32 {sLIM}, {10*SLOT}
    """)
    QF = lambda ks: 32 + 4 * ks
    S = lambda kb: 64 + 16 * kb
    P = lambda i: 96 + 4 * i if i < 2 else 192 + 4 * (i - 2)
    CB = lambda u: 112 + 4 * u
    LA = lambda u: 104 + 4 * u
    ON = 124
    KF = lambda i: 192 + 4 * i
    VF = lambda t: 224 + 4 * t
    OT = lambda t, u: 128 + 8 * t + 4 * u
    vKA = ['v16', 'v17', 'v18', 'v19']
    vVA = ['v%d' % (20 + t) for t in range(8)]
    M16 = lambda d, x, y, c: f'v_mfma_f32_16x16x32_bf16 v[{d}:{d+3}], v[{x}:{x+3}], v[{y}:{y+3}], ' + (f'v[{c}:{c+3}]' if c is not None else '0')
    def qk(sb, j, first=False):
        s_, kt, u = j >> 2, (j >> 1) & 1, j & 1
        d = S(sb) + 8 * u + 4 * kt
        return M16(d, KF(2 * s_ + kt), QF(2 * s_ + u), d if s_ else (None if first else CB(u)))
    pv = lambda t, u, p: M16(OT(t, u), VF(t), P(p), OT(t, u))
    rsum = lambda u, p: M16(LA(u), ON, P(p), LA(u))
    kread = lambda i, kb: f'ds_read_b128 v[{KF(i)}:{KF(i)+3}], {vKA[i >> 1]} offset:{8192*kb + 4096*(i & 1)}'
    vread = lambda j, kb: f'ds_read_b64_tr_b16 v[{VF(j >> 1)+2*(j & 1)}:{VF(j >> 1)+2*(j & 1)+1}], {vVA[j >> 1]} offset:{8192*kb + 4096*(j & 1)}'
    exp = lambda r: f'v_exp_f32 v{r}, v{r}'
    cvt = lambda p, d, r: f'v_cvt_pk_bf16_f32 v{P(p)+d}, v{r}, v{r+1}'
    def maxchain(sb):
        b = S(sb)
        l = [f'v_max3_f32 v14, v{b}, v{b+1}, v{b+2}', f'v_max3_f32 v15, v{b+3}, v{b+8}, v{b+9}',
             f'v_max3_f32 v14, v14, v{b+10}, v{b+11}', f'v_max3_f32 v15, v15, v{b+4}, v{b+5}',
             f'v_max3_f32 v14, v14, v{b+6}, v{b+7}', f'v_max3_f32 v15, v15, v{b+12}, v{b+13}',
             f'v_max3_f32 v14, v14, v{b+14}, v{b+15}', f'v_max_f32 v14, v14, v15']
        return l
    def rowmax(sb, floor):
        l = []
        for u, (x, y) in enumerate((('v14', 'v15'), ('v6', 'v7'))):
            b = S(sb) + 8 * u
            l += [f'v_max3_f32 {x}, v{b}, v{b+1}, v{b+2}', f'v_max3_f32 {y}, v{b+3}, v{b+4}, v{b+5}',
                  f'v_max3_f32 {x}, {x}, v{b+6}, v{b+7}']
        l += ['v_max_f32 v14, v14, v15', 'v_max_f32 v6, v6, v7', 'v_mov_b32 v15, v14', 'v_mov_b32 v7, v6', 's_nop 0',
              'v_permlane32_swap_b32 v14, v15', 'v_permlane32_swap_b32 v6, v7',
              'v_max_f32 v14, v14, v15', 'v_max_f32 v6, v6, v7', 'v_mov_b32 v15, v14', 'v_mov_b32 v7, v6', 's_nop 0',
              'v_permlane16_swap_b32 v14, v15', 'v_permlane16_swap_b32 v6, v7']
        l += ['v_max3_f32 v14, v14, v15, 0', 'v_max3_f32 v6, v6, v7, 0'] if floor else ['v_max_f32 v14, v14, v15', 'v_max_f32 v6, v6, v7']
        return l
    KA = [f'v_add_u32 {vKA[0]}, {sBASE}, {vKL}'] + [f'v_xor_b32 {vKA[i]}, {64*i}, {vKA[0]}' for i in range(1, 4)]
    VA = [f'v_add_u32 {vVA[0]}, {sVB}, {vVL}'] + [f'v_xor_b32 {vVA[t]}, {32*t}, {vVA[0]}' for t in range(1, 8)]
    cmp_ = f'v_cmp_lt_f32 vcc, {sC}, v14'
    def branch(tag):
        a(f's_cbranch_vccnz L_slow{tag}')
        a(f'L_back{tag}:')
    def mini(cur, x, barrier=False, vnext=True):
        nx = cur ^ 1; b = S(cur)
        Rc = {j: vread(j, cur) for j in range(9, 16)}
        Rn = [vread(j, nx) if vnext else None for j in range(9)]
        D = [kread(i, cur) for i in range(8)]
        E = [exp(b + e) for e in range(16)]
        C = [cvt(d >> 2, d & 3, b + 2 * d) for d in range(8)]
        X = maxchain(nx)
        W = lambda n: f's_waitcnt lgkmcnt({n})'
        g = {0: [Rc[9], E[0]], 1: [E[1]], 2: [Rc[10], E[2]], 3: [D[0], E[3]], 4: [Rc[11], E[4]], 5: [D[1], E[5]],
             6: [Rc[12], E[6]], 7: [W(6), E[7]], 8: [D[2], Rc[13], C[0]], 9: [D[3], C[1]], 10: [Rc[14], C[2]], 11: [D[4], C[3]],
             12: [Rc[15], E[8]], 13: [D[5], E[9]], 14: [E[10]], 15: [D[6], E[11]],
             16: [E[12]], 17: [D[7], E[13]], 18: [E[14]], 19: [E[15], W(3)], 20: [C[4], C[5]], 21: [C[6], C[7]],
             22: [X[0]], 23: [X[1]], 's0': [W(0)] + (['s_barrier   ; k(t+2): V(t+1), K(t+2) landed'] if barrier else []),
             24: [Rn[0], X[2]], 25: [Rn[1], X[3]], 26: [Rn[2], X[4]], 27: [Rn[3], X[5]], 28: [Rn[4], X[6]], 29: [Rn[5], X[7]],
             30: [Rn[6], cmp_], 31: [Rn[7]], 's1': [Rn[8]]}
        def G(k): emit([y for y in g[k] if y] + x.get(k, []))
        for j in range(16):
            a(qk(nx, j)); G(j)
        for t in range(8):
            a(pv(t, 0, 0)); G(16 + t)
        a(rsum(0, 0)); G('s0')
        for t in range(8):
            a(pv(t, 1, 1)); G(24 + t)
        a(rsum(1, 1)); G('s1')
    vx = {1: [VA[0]], 9: [VA[1]], 10: [VA[2]], 11: [VA[3]], 14: [VA[4]], 16: [VA[5]], 22: [VA[6]], 23: [VA[7]]}
    def step(tags, last):
        if last:
            mini(0, {1: [f's_add_u32 {sVB}, {sBASE}, {SLOT}']})
        else:
            mini(0, {1: [f's_add_u32 {sVB}, {sBASE}, {SLOT}'], 9: [f's_add_u32 {sBASE}, {sBASE}, {2*SLOT}'],
                     10: [f's_cmp_eq_u32 {sBASE}, {sLIM}'], 11: [f's_cselect_b32 {sBASE}, 0, {sBASE}'],
                     14: [f's_cselect_b32 {sLIM}, {8*SLOT}, {sLIM}'], 22: [f's_sub_u32 {sCNT}, {sCNT}, 1']})
        branch(tags[0])
        if last:
            mini(1, vx, False, False)
        else:
            mini(1, {**vx, 18: [KA[0]], 31: [KA[1]], 's1': [KA[2]], 's0': [], 20: [], 27: [], 26: [], 29: [KA[3]]}, True)
        branch(tags[1])
    class Lds:
        def __init__(s): s.ops = []; s.done = 0
        def rd(s, ins, tag=None): a(ins); s.ops.append(tag)
        def need(s, tag):
            k = s.ops.index(tag) + 1
            if k > s.done:
                a(f's_waitcnt lgkmcnt({len(s.ops) - k})'); s.done = k
    def qscale(ks):
        src = QA(ks >> 1) + 8 * (ks & 1)
        return [f'v_pk_mul_f32 v[{src+2*d}:{src+2*d+1}], v[{src+2*d}:{src+2*d+1}], v[30:31] op_sel_hi:[1,0]' for d in range(4)]
    def qpack(ks):
        src = QA(ks >> 1) + 8 * (ks & 1)
        return [f'v_cvt_pk_bf16_f32 v{QF(ks)+d}, v{src+2*d}, v{src+2*d+1}' for d in range(4)]
    def qswap(s_):
        x, y = QF(2 * s_), QF(2 * s_ + 1)
        return [f'v_permlane32_swap_b32 v{x+d}, v{y+d}' for d in range(4)] + [f'v_permlane16_swap_b32 v{x+d}, v{y+d}' for d in range(4)]
    a(q_mfma(31, 0)); emit(KA)
    a(q_mfma(30, 1)); a(f's_mov_b32 {sVB}, {SLOT}'); emit(VA[:3])
    a(q_mfma(31, 1)); emit(VA[3:6])
    a(q_mfma(30, 2)); emit(qscale(0))
    a(q_mfma(31, 2)); emit(qscale(1))
    a(q_mfma(30, 3)); emit(qscale(2))
    a(q_mfma(31, 3)); emit(qscale(3))
    stamp(4)
    for ks in range(4): emit(qpack(ks))
    a('s_barrier   ; k0')
    stamp(8)
    L = Lds()
    for i in range(8): L.rd(kread(i, 0), ('a', i))
    a(f's_mov_b32 {sBASE}, {2*SLOT}')
    emit(qscale(4) + qscale(5)); emit(qswap(0)); emit(qpack(4) + qpack(5))
    emit(qscale(6) + qscale(7)); emit(qswap(1)); emit(qpack(6) + qpack(7))
    late = VA[6:] + qswap(2) + qswap(3) + [f'v_mov_b32 v{LA(0)+i}, 0' for i in range(8)] + [f'v_mov_b32 v{ON+i}, 0x3f803f80' for i in range(4)]
    for j in range(16):
        L.need(('a', j >> 1))
        a(qk(0, j, True))
        if j & 1: L.rd(kread(j >> 1, 1), ('b', j >> 1))
        emit(late[:2]); del late[:2]
    assert not late
    emit(KA)
    a('s_nop 2')
    rm = rowmax(0, False)
    emit(rm[:10])
    a('s_waitcnt lgkmcnt(0)')
    a('s_barrier   ; k1')
    for j in range(9): a(vread(j, 0))
    emit(rm[11:])
    for u, m in enumerate(('v14', 'v6')):
        emit([f'v_sub_f32 v{CB(u)+i}, 0, {m}' for i in range(4)])
        emit([f'v_sub_f32 v{S(0)+8*u+i}, v{S(0)+8*u+i}, {m}' for i in range(8)])
    if 'l' in cfg.align: a('.p2align 6')
    if 'L' in cfg.align: a('.p2align 6\ns_nop 0')
    if cfg.hs0:
        a(f'''
        s_lshl_b32 {sT0}, {sG}, 3
        v_mov_b32 v30, {sT0}
        v_mov_b32 v5, 8
        s_cmp_eq_u32 {sWAVE}, 0
        s_cbranch_scc0 L_noann
        v_mov_b32 v10, 1
        s_mov_b64 exec, 1
        buffer_atomic_add v10, v30, {DBG_}, 0 offen sc1
        s_mov_b64 exec, -1
        L_noann:
        ''')
    a('L_loop:')
    step('AB', False)
    a('s_cbranch_scc0 L_loop')
    a('L_last:')
    if cfg.hs0:
        a(f's_cmp_eq_u32 {sWAVE}, 0\ns_cbranch_scc0 L_nock\nbuffer_load_dword v5, v30, {DBG_}, 0 offen sc1\nL_nock:')
    step('DE', True)
    a('L_tail:')
    b0, b1 = S(0), S(1)
    vOW = ['v11', 'v16', 'v17', 'v18']
    fill = [f'v_xor_b32 {vOW[h]}, {h << 11}, v11' for h in range(1, 4)] + \
           ['v_mov_b32 v112, v28', 'v_add_u32 v113, 15360, v28', 'v_mov_b32 v114, v12'] + oproj_addr[20:]
    for j in range(16):
        a(qk(1, j)); emit([exp(b0 + j)])
    emit(fill[:7]); del fill[:7]
    def take(n):
        l = fill[:n]; del fill[:n]; return l
    emit(maxchain(1))
    a(cmp_)
    branch('C')
    emit([cvt(0, d, b0 + 2 * d) for d in range(4)])
    a('s_barrier   ; k16: V15 landed')
    stamp(39)
    L = Lds()
    for j in range(14): L.rd(vread(j, 0), ('a', j))
    emit([cvt(1, d, b0 + 8 + 2 * d) for d in range(4)])
    E1 = [exp(b1 + e) for e in range(16)]
    emit(E1[:2])
    for t in range(8):
        if t % 2 == 0: L.need(('a', 2 * t + 3))
        a(pv(t, 0, 0))
        if t < 2: L.rd(vread(14 + t, 0), ('a', 14 + t))
        a(E1[2 + t])
    a(rsum(0, 0)); a(E1[10])
    C2 = [cvt(2, d, b1 + 2 * d) for d in range(4)]; C3 = [cvt(3, d, b1 + 8 + 2 * d) for d in range(4)]
    fl = [[E1[11]], [E1[12]], [E1[13]], [E1[14]], [E1[15]], C2[:2], C2[2:], C3[:2]]
    for t in range(8):
        a(pv(t, 1, 1))
        if t == 7: L.need(('b', 1))
        L.rd(vread(2 * t, 1), ('b', 2 * t)); L.rd(vread(2 * t + 1, 1), ('b', 2 * t + 1))
        emit(fl[t])
    a(rsum(1, 1)); emit(C3[2:])
    a(rsum(0, 2)); emit(take(2))
    a(rsum(1, 3)); emit(take(2))
    def norm(tp, u):
        inv = ('v[14:15]', 'v[6:7]')[u]; dst = 64 + 8 * tp + 4 * u
        l = []
        for k in range(2):
            src = OT(2 * tp + k, u)
            l += [f'v_pk_mul_f32 v[{src+e}:{src+e+1}], v[{src+e}:{src+e+1}], {inv} op_sel_hi:[1,0]' for e in (0, 2)]
        for k in range(2):
            src = OT(2 * tp + k, u)
            l += [f'v_cvt_pk_bf16_f32 v{dst+2*k+d}, v{src+2*d}, v{src+2*d+1}' for d in range(2)]
        return l + [f'ds_write_b128 {vOW[tp]}, v[{dst}:{dst+3}] offset:{OBASE + 256*u}']
    pend = []
    for t in range(8):
        if t % 2 == 0: L.need(('b', 2 * t + 3))
        if t == 2: emit([f'v_rcp_f32 v14, v{LA(0)}', f'v_rcp_f32 v6, v{LA(1)}'])
        if t == 3: pend += norm(0, 0)[:2]
        if t == 4: pend += norm(0, 0)[2:] + norm(0, 1)
        if t == 6: pend += norm(1, 0) + norm(1, 1)
        for u in range(2):
            a(pv(t, u, 2 + u))
            if t < 2: emit(take(1) or ['s_nop 0'])
            emit(pend[:cfg.nrm]); del pend[:cfg.nrm]
    assert not fill
    stamp(5)
    emit(pend)
    for tp in (2, 3):
        emit(norm(tp, 0) + norm(tp, 1))
    if cfg.hs0:
        a(f'''
        s_mov_b32 {sSPIN}, 0
        s_waitcnt vmcnt(0)
        L_chk:
        v_cmp_gt_u32 vcc, 8, v5
        s_cbranch_vccz L_chkd
        s_add_u32 {sSPIN}, {sSPIN}, 1
        s_cmp_gt_u32 {sSPIN}, 0x40000
        s_cbranch_scc1 L_chkd
        buffer_load_dword v5, v30, {DBG_}, 0 offen sc1
        s_waitcnt vmcnt(0)
        s_branch L_chk
        L_chkd:
        ''')
    if 'c' in cfg.align: a('.p2align 6')
    if 'C' in cfg.align: a('.p2align 6\ns_nop 0')
    a('s_waitcnt lgkmcnt(0)')
    a('s_barrier   ; Bo')
    stamp(6)
    AF = lambda i, nb: (32, 40, 96)[i % 3] + 4 * nb
    BF = lambda i: 48 + 4 * (i & 3)
    PA = lambda nb: 64 + 16 * nb
    PK = lambda idx, nb: 128 + 8 * idx + 4 * nb
    sWO = sCNT
    def w_pre(m):
        return [f's_add_u32 m0, {sWL}, {WSLOT[m % 8]*SLOT}', f's_xor_b32 {sWO}, {sWX}, {woff(m)}']
    def w_dma(hf, so=sT0):
        return f'buffer_load_dwordx4 {vWD[hf]}, {WO_}, {so} offen offset:{1024*hf}{cfg.wo_pol} lds'
    def o_mfma(idx, nb, areg, first=False):
        c = '0' if first else f'v[{PA(nb)}:{PA(nb)+15}]'
        return f'v_mfma_f32_32x32x16_bf16 v[{PA(nb)}:{PA(nb)+15}], v[{areg}:{areg+3}], v[{BF(idx)}:{BF(idx)+3}], {c}'
    bread = lambda idx: f'ds_read_b128 v[{BF(idx)}:{BF(idx)+3}], {vOA} offset:{1024*idx}'
    def areads(idx, m):
        sl = WSLOT[m % 8]
        return [f'ds_read_b64_tr_b16 v[{AF(idx,nb)+2*u}:{AF(idx,nb)+2*u+1}], {vWA(sl // 4, nb)} offset:{(sl % 4)*SLOT + 1024*u}'
                for nb in range(2) for u in range(2)]
    if cfg.cprio: a(f's_setprio {cfg.cprio}')
    emit(w_pre(7))
    emit([bread(0)] + areads(0, 0))
    emit([w_dma(0, sWO), w_dma(1, sWO)])
    emit([bread(1)] + areads(1, 1))
    for m in range(32):
        if m in (4, 8, 12, 16, 20, 24, 28): stamp(47 + m // 4)
        if m + 2 < 32:
            if m + 2 >= 7: a(f's_waitcnt vmcnt({2*(min(31, m + 7) - (m + 2))})')
            emit([bread(m + 2)] + areads(m + 2, m + 2))
        dma = m + 8 < 32
        if dma: emit(w_pre(m + 8))
        a(f's_waitcnt lgkmcnt({5 * min(2, 31 - m)})')
        a(o_mfma(m, 0, AF(m, 0), m == 0))
        if dma: a(w_dma(0, sWO))
        a(o_mfma(m, 1, AF(m, 1), m == 0))
        if dma: a(w_dma(1, sWO))
    a('s_branch L_pub')

    a('L_helper:')
    issued = []
    R0 = 4 if cfg.wq6 else 6
    RB = lambda j, jj: 128 + 16 * (j - R0) + 4 * jj
    def kv_issue(j, inreg=False):
        if not inreg: a(f's_add_u32 m0, {sBASE}, {slot_of(j)*SLOT}')
        if cfg.kvrot:
            a(f's_add_u32 {sT0}, s86, {(j//2)*SLOT}')
            a(f's_and_b32 {sT0}, {sT0}, 0x3ffff')
        else:
            a(f's_add_u32 {sT0}, {sBASE}, {(j//2)*SLOT}')
        for jj in range(4):
            va, srd = (vKD[jj], K_) if j % 2 == 0 else (vVD[jj & 1], V_)
            if inreg:
                a(f'buffer_load_dwordx4 v[{RB(j,jj)}:{RB(j,jj)+3}], {va}, {srd}, {sT0} offen offset:{1024*jj}{cfg.kv_pol}')
            else:
                a(f'buffer_load_dwordx4 {va}, {srd}, {sT0} offen offset:{1024*jj}{cfg.kv_pol} lds')
        issued.append((('kv', j), 4))
    def rb_write(j):
        for jj in range(4):
            a(f'ds_write_b128 {("v13", "v11", "v10")[slot_of(j) // 4]}, v[{RB(j,jj)}:{RB(j,jj)+3}] offset:{(slot_of(j) % 4)*SLOT + 1024*jj}')
    def warm(lab0, lab1, tagn):
        if not cfg.warm: return
        lab = a.label('L_pc')
        a(f'''
        s_getpc_b64 s[80:81]
        {lab}:
        s_lshl_b32 {sT0}, {sB}, 2
        s_add_u32 {sT0}, {sT0}, {sHW}
        s_mul_i32 {sT0}, {sT0}, ((({lab1} - {lab0}) / 64 + 63) / 64) * 64
        v_lshl_add_u32 v32, v0, 6, {sT0}
        v_min_u32 v32, {lab1} - {lab0} - 4, v32
        s_add_u32 s80, s80, {lab0} - {lab}
        s_addc_u32 s81, s81, -1
        v_mov_b32 v33, s81
        v_add_co_u32 v32, vcc, s80, v32
        s_nop 1
        v_addc_co_u32 v33, vcc, 0, v33, vcc
        v_cmp_gt_u32 vcc, (({lab1} - {lab0}) / 64 + 63) / 64, v0
        s_and_saveexec_b64 s[82:83], vcc
        global_load_dword v34, v[32:33], off
        s_mov_b64 exec, s[82:83]
        ''')
        issued.append((('warm', tagn), 1))
    def w_resident(i):
        for own in range(2):
            a(f's_xor_b32 {sT0}, {sWX}, {woff(i + NP * own)}')
            a(f's_add_u32 m0, {sWL}, {WSLOT[i]*SLOT - (0 if own else 4 * 2048)}')
            a(f's_sub_u32 {sT0}, {sT0}, {0 if own else 512}')
            emit([w_dma(0), w_dma(1)])
        issued.append((('w', i), 4))
    def pw_issue(g):
        for j in range(2):
            a(f's_add_u32 m0, {sBASE}, {(8 + (g & 1))*SLOT + 2048*j}')
            a(f's_xor_b32 {sT0}, {sWX}, {woff(2*g + j)}')
            emit([w_dma(0), w_dma(1)])
        issued.append((('pw', g), 4))
    def pw_read(g):
        for j in range(2):
            for nb in range(2):
                for u in range(2):
                    r = PK(2 * g + j, nb) + 2 * u
                    a(f'ds_read_b64_tr_b16 v[{r}:{r+1}], v{122 + nb} offset:{(g & 1)*SLOT + 2048*j + 1024*u}')
    def smem_pref(lo, hi):
        if lo >= hi: return
        if lo == 0:
            a(f's_lshl_b32 {sT0}, {sROT}, 14\ns_lshl_b32 {sT1}, {sHW}, 13\ns_add_u32 {sT0}, {sT0}, {sT1}')
            a(f's_add_u32 s88, s52, {sT0}\ns_addc_u32 s89, s53, 0')
        for i in range(lo, hi):
            a(f's_load_dword s{90 + i % 8}, s[88:89], {(i >> 3) * 1024 + 512 + (i & 7) * 64}')
    def wait_for(*items):
        names = [x[0] for x in issued]
        k = max(names.index(it) for it in items)
        a(f's_waitcnt vmcnt({sum(x[1] for x in issued[k+1:])})')
    warm('L_start', 'L_end', 0)
    if not cfg.hs0:
        a(f'''
        s_mov_b32 {sC}, 99
        s_mov_b32 {sCHK}, 99
        s_lshl_b32 {sT0}, {sG}, 3
        v_mov_b32 v30, {sT0}
        v_mov_b32 v29, 8
        s_cmp_eq_u32 {sWAVE}, 4
        s_cbranch_scc0 L_noclear
        s_add_u32 {sT0}, {sT0}, {sHKV}
        s_lshl_b32 {sT0}, {sT0}, 7
        s_add_u32 {sT0}, {sT0}, {FLAG_OFF}
        s_and_b32 {sC}, {sB}, 3
        s_add_u32 {sC}, {sC}, 1
        s_add_u32 {sCHK}, {sC}, 9
        v_mov_b32 v27, 0
        v_mov_b32 v28, 1
        v_lshlrev_b32 v26, 2, v0
        s_mov_b64 exec, 0xff
        buffer_store_dword v27, v26, {WS_}, {sT0} offen sc1
        s_mov_b64 exec, -1
        L_noclear:
        ''')
    if cfg.hprio != 1: a(f's_setprio {cfg.hprio}')
    need = lambda k: 0 if k == 0 else min(31, 2 * k)
    free_at = lambda it: it // 2 + 1 if it % 2 == 0 else it // 2 + 2
    slot_free = lambda j: 0 if j < 10 else free_at(j - 10 if j < 18 else j - 8)
    MERGE = 17
    base_issued = list(issued)
    late_addr = oproj_addr + [f'v_add_u32 v13, {sBASE}, v4', f'v_add_u32 v11, {sBASE}, v4', f'v_add_u32 v10, {8*SLOT}, v11', f'v_add_u32 v11, {4*SLOT}, v11',
                              f'v_add_u32 v122, {sBASE}, v121', f'v_add_u32 v122, {8*SLOT}, v122', 'v_xor_b32 v123, 64, v122']
    a(f's_cmp_eq_u32 {sGRP}, 0\ns_cbranch_scc0 L_hkv')
    EP_ = [(16, 20), (104, 108), (24, 124), (8, 12)]
    def fly(grp, k):
        l = cfg.g1_list if grp else cfg.g0_list
        if l: return int(l[min(k, len(l) - 1)])
        return cfg.g1_fly if grp else cfg.g0_fly if k < cfg.g0_sw else cfg.g0_fly2 if k < cfg.g0_sw2 else 4
    def barrier_step(k, grp, st):
        gp = k - 2 - cfg.park0
        if 0 <= gp < cfg.park:
            wait_for(('kv', need(k)), ('pw', gp))
            pw_read(gp)
            a('s_waitcnt lgkmcnt(0)')
        else:
            wait_for(('kv', need(k)))
        if grp == 1 and 1 <= k <= 5: a('s_waitcnt lgkmcnt(0)')
        a(f's_barrier   ; k{k}')
        stamp(8 + k)
        if 2 <= k <= 15: cstamp(23 + k)
        if grp == 1 and k == 0:
            a('s_setprio 0')
            for j in range(R0 + cfg.rb_pre, min(10, cfg.g1_pre)): rb_write(j)
            a(f's_setprio {cfg.hprio}')
        late_w = [j for j in range(10, cfg.g1_pre) if grp == 1 and max(slot_free(j), j - 9) == k]
        if 0 <= k - cfg.park0 < cfg.park: pw_issue(k - cfg.park0)
        if k and k == cfg.wtouch[grp]:
            for i in range(2):
                a(f's_xor_b32 {sT0}, {sWX}, {woff(i)}')
                a(f's_sub_u32 {sT0}, {sT0}, 512')
                for hf in range(2):
                    r = 32 + 8 * i + 4 * hf
                    a(f'buffer_load_dwordx4 v[{r}:{r+3}], {vWD[hf]}, {WO_}, {sT0} offen offset:{1024*hf}{cfg.wo_pol}')
            issued.append((('wt', 0), 4))
        while st['nxt'] < 32:
            j = st['nxt']
            if slot_free(j) > k or j > need(k + 1) + fly(grp, k): break
            kv_issue(j); st['nxt'] += 1
        if k == 16:
            wait_for(('w', 3))
            for i in range(4):
                emit([f'ds_read_b64_tr_b16 v[{EP_[i][nb]+2*u}:{EP_[i][nb]+2*u+1}], {vWA(WSLOT[i] // 4, nb)} offset:{(WSLOT[i] % 4)*SLOT + 1024*u}'
                      for nb in range(2) for u in range(2)])
                if i == 2: a('s_waitcnt lgkmcnt(8)')
        if late_w:
            a('s_setprio 0')
            for j in late_w: rb_write(j)
            a(f's_setprio {cfg.hprio}')
        for wi, at in enumerate(cfg.w_at if grp or not cfg.w_at0 else cfg.w_at0):
            if at == k: w_resident(wi)
        if k == 16:
            a('s_waitcnt lgkmcnt(0)')
        if grp == 0 and k < 4: smem_pref(min(cfg.smem[0], 32 + 8 * k), min(cfg.smem[0], 40 + 8 * k))
        if k == 11: warm('L_last', 'L_end', 1)
        if 1 <= k <= 4 and not cfg.hs0:
            lab = a.label('L_na')
            a(f's_cmp_eq_u32 {sC}, {k}\ns_cbranch_scc0 {lab}\ns_mov_b64 exec, 1')
            a(f'buffer_atomic_add v28, v30, {DBG_}, 0 offen sc1\ns_mov_b64 exec, -1\n{lab}:')
        if 10 <= k <= 13 and not cfg.hs0:
            lab = a.label('L_nc')
            a(f's_cmp_eq_u32 {sCHK}, {k}\ns_cbranch_scc0 {lab}')
            a(f'buffer_load_dword v29, v30, {DBG_}, 0 offen sc1\n{lab}:')
    states = []
    for grp in (0, 1):
        issued[:] = base_issued
        st = {}
        if grp == 0:
            for j in range(cfg.g0_pre): kv_issue(j)
            emit(late_addr)
            a(f's_waitcnt vmcnt({sum(x[1] for x in issued)})')
            a('s_barrier   ; Bx')
            stamp(1)
            a('s_barrier   ; Bx2')
            a('s_barrier   ; Bw')
            smem_pref(0, min(32, cfg.smem[0]))
            a('s_barrier   ; Bk')
            top = min(6, max(5, cfg.g0_pre + 4))
            for j in range(cfg.g0_pre, min(top, cfg.g0_pre + 3)): kv_issue(j)
            a('s_barrier   ; Bq')
            for j in range(cfg.g0_pre + 3, top): kv_issue(j)
            st['nxt'] = top
            stamp(2)
        else:
            a('L_hkv:')
            if cfg.near_kv:
                issued[:] = [(('kv', j), 4) for j in range(cfg.g1_first)] + base_issued
            else:
                for j in range(cfg.g1_first): kv_issue(j)
            emit(late_addr)
            a(f's_waitcnt vmcnt({sum(x[1] for x in issued)})')
            a('s_barrier   ; Bx')
            stamp(1)
            for j in range(cfg.g1_first, 4): kv_issue(j)
            a('s_barrier   ; Bx2')
            for j in range(4, cfg.g1_pre): kv_issue(j, j >= R0)
            stamp(2)
            a('s_barrier   ; Bw')
            smem_pref(0, cfg.smem[1])
            a('s_barrier   ; Bk')
            a('s_waitcnt vmcnt(0)')
            a('s_barrier   ; Bq')
            for j in range(R0, min(R0 + cfg.rb_pre, cfg.g1_pre)): rb_write(j)
            st['nxt'] = cfg.g1_pre
        for k in range(MERGE):
            barrier_step(k, grp, st)
        assert st['nxt'] == 32
        if grp == 0: a('s_branch L_hmerge')
    a('L_hmerge:')
    for k in range(MERGE, 17):
        barrier_step(k, 1, st)
    EP = [(16, 20), (104, 108), (24, 124), (8, 12)]
    def wread(dst, slot):
        return [f'ds_read_b64_tr_b16 v[{dst[nb]+2*u}:{dst[nb]+2*u+1}], {vWA(slot // 4, nb)} offset:{(slot % 4)*SLOT + 1024*u}'
                for nb in range(2) for u in range(2)]
    def own_refill(slot, idx):
        return [f's_add_u32 m0, {sWL}, {slot*SLOT}', f's_xor_b32 {sWO}, {sWX}, {woff(idx)}', w_dma(0, sWO), w_dma(1, sWO)]
    assert NP == 16 and cfg.early
    for i in range(4): emit(own_refill(WSLOT[i], 23 + i))
    def hs_check(cnt):
        a(f"""
        s_mov_b32 {sSPIN}, 0
        s_waitcnt vmcnt({cnt})
        L_chk:
        v_cmp_gt_u32 vcc, 8, v29
        s_cbranch_vccz L_chkd
        s_add_u32 {sSPIN}, {sSPIN}, 1
        s_cmp_gt_u32 {sSPIN}, 0x40000
        s_cbranch_scc1 L_chkd
        buffer_load_dword v29, v30, {DBG_}, 0 offen sc1
        s_waitcnt vmcnt(0)
        s_branch L_chk
        L_chkd:
        """)
    if cfg.hs0: a('s_waitcnt vmcnt(8)')
    else: hs_check(8)
    a('s_barrier   ; Bo')
    stamp(6)
    W = WSLOT
    seq = [(20, W[4]), (21, W[5]), (22, W[6]), (23, W[0])] + [(i, None) for i in range(20)] + \
          [(24, W[1]), (25, W[2]), (26, W[3]), (27, W[7]), (28, W[4]), (29, W[5]), (30, W[6]), (31, W[0])]
    HE = cfg.hearly
    he = max(HE, 0)
    seq = seq[:he] + seq[4:24] + seq[he:4] + seq[24:]
    refills = [(27, W[7]), (28, W[4]), (29, W[5]), (30, W[6]), (31, W[0])]
    vm_order = [23, 24, 25, 26]
    BFs = lambda n: 48 + 4 * (n & 3)
    AFs = lambda n: ((32, 36), (40, 44), (96, 100))[n % 3]
    def reads(n):
        idx, slot = seq[n]
        l = []
        if idx >= 23:
            l.append(f's_waitcnt vmcnt({2*(len(vm_order) - 1 - vm_order.index(idx))})')
        l.append(f'ds_read_b128 v[{BFs(n)}:{BFs(n)+3}], {vOA} offset:{1024*idx}')
        if slot is not None: l += wread(AFs(n), slot)
        return l
    def refill1():
        i2, sl = refills.pop(0)
        emit(own_refill(sl, i2)); vm_order.append(i2)
    cnt = lambda n: 0 if n >= 32 else (5 if seq[n][1] is not None else 1)
    if HE < 0: a('s_setprio 0')
    emit(reads(0)); emit(reads(1))
    if HE >= 0: refill1()
    if HE == 0: a('s_setprio 0')
    for n in range(32):
        idx, slot = seq[n]
        if n in (4, 8, 12, 16, 20, 24, 28): stamp(47 + n // 4)
        if n + 2 < 32: emit(reads(n + 2))
        a(f's_waitcnt lgkmcnt({cnt(n + 1) + cnt(n + 2)})')
        for nb in range(2):
            areg = AFs(n)[nb] if slot is not None else (PK(idx, nb) if idx < 16 else EP[idx - 16][nb])
            c = '0' if n == 0 else f'v[{PA(nb)}:{PA(nb)+15}]'
            a(f'v_mfma_f32_32x32x16_bf16 v[{PA(nb)}:{PA(nb)+15}], v[{areg}:{areg+3}], v[{BFs(n)}:{BFs(n)+3}], {c}')
        if n < he: refill1()
        if n == he - 1: a('s_setprio 0')
        if n == cfg.hburst:
            assert 23 <= n <= 24
            while refills: refill1()

    a('L_pub:')
    stamp(7)
    if cfg.bf16p:
        a(f"""
        s_lshl_b32 {sT0}, {sG}, 3
        s_add_u32 {sT1}, {sT0}, {sWAVE}
        s_lshl_b32 {sT2}, {sT1}, 3
        s_add_u32 {sT2}, {sT2}, {sHKV}
        s_lshl_b32 {sT2}, {sT2}, 12
        s_lshl_b32 {sT1}, {sT1}, 7
        s_add_u32 {sT1}, {sT1}, {FLAG_OFF}
        s_lshl_b32 {sC}, {sHKV}, 2
        s_add_u32 {sT1}, {sT1}, {sC}
        s_add_u32 {sT0}, {sT0}, {sHKV}        ; g*8 + own
        v_mov_b32 v10, 1
        v_mov_b32 v11, 0
        """)
        for pc in range(4):
            for d in range(4):
                a(f'v_cvt_pk_bf16_f32 v{96+4*pc+d}, v{64+8*pc+2*d}, v{65+8*pc+2*d}')
            a(f'buffer_store_dwordx4 v[{96+4*pc}:{99+4*pc}], v4, {WS_}, {sT2} offen offset:{1024*pc} sc1')
        a(f"""
        v_lshlrev_b32 v12, 2, v0
        s_lshl_b32 {sCHK}, {sT0}, 7
        s_add_u32 {sCHK}, {sCHK}, {FLAG_OFF}
        s_lshl_b32 {sT0}, {sT0}, 15
        s_lshr_b32 {sC}, {sWAVE}, 1
        s_lshl_b32 {sT2}, {sC}, 10
        s_add_u32 {sT0}, {sT0}, {sT2}
        s_and_b32 {sT2}, {sWAVE}, 1
        s_lshl_b32 {sCNT}, {sT2}, 8
        s_add_u32 {sT0}, {sT0}, {sCNT}
        v_bfe_u32 v14, v0, 4, 1
        v_lshlrev_b32 v15, 4, v2
        v_lshl_add_u32 v15, v14, 9, v15
        v_lshl_add_u32 v15, v3, 12, v15
        v_lshlrev_b32 v20, 11, v2
        v_lshl_add_u32 v20, v14, 4, v20
        v_lshl_add_u32 v20, v3, 3, v20
        s_lshl_b32 {sC}, {sC}, 5
        s_lshl_b32 {sT2}, {sT2}, 15
        s_add_u32 {sC}, {sC}, {sT2}
        s_waitcnt vmcnt(0)
        s_mov_b64 exec, 1
        buffer_store_dword v10, v11, {WS_}, {sT1} offen sc1
        s_mov_b64 exec, 0xff
        s_mov_b32 {sSPIN}, 0
        """)
        stamp(56)
        if cfg.poll2:
            a(f"""
            buffer_load_dword v13, v12, {WS_}, {sCHK} offen sc1
            L_poll:
            buffer_load_dword v16, v12, {WS_}, {sCHK} offen sc1
            s_waitcnt vmcnt(1)
            v_cmp_ne_u32 vcc, 1, v13
            s_cbranch_vccz L_polled
            buffer_load_dword v13, v12, {WS_}, {sCHK} offen sc1
            s_add_u32 {sSPIN}, {sSPIN}, 1
            s_cmp_gt_u32 {sSPIN}, 0x40000
            s_cbranch_scc1 L_polled
            s_waitcnt vmcnt(1)
            v_cmp_ne_u32 vcc, 1, v16
            s_cbranch_vccnz L_poll
            L_polled:
            s_mov_b64 exec, -1
            """)
        else:
            if cfg.poll1 >= 0: a(f's_cmp_eq_u32 {sWAVE}, {cfg.poll1}\ns_cbranch_scc0 L_polled')
            a(f"""
            L_poll:
            buffer_load_dword v13, v12, {WS_}, {sCHK} offen sc1
            s_add_u32 {sSPIN}, {sSPIN}, 1
            s_cmp_gt_u32 {sSPIN}, 0x40000
            s_cbranch_scc1 L_polled
            s_waitcnt vmcnt(0)
            v_cmp_ne_u32 vcc, 1, v13
            """)
            if cfg.psleep:
                a(f's_cbranch_vccz L_polled\ns_sleep {cfg.psleep}\ns_branch L_poll')
            else:
                a('s_cbranch_vccnz L_poll')
            a('L_polled:\ns_mov_b64 exec, -1')
            if cfg.poll1 >= 0: a('s_barrier')
        stamp(57)
        for p in range(4):
            a(f'buffer_load_dwordx4 v[{96+4*p}:{99+4*p}], v15, {WS_}, {sT0} offen sc1')
            if p < 3: a(f's_add_u32 {sT0}, {sT0}, 8192')
        a(f's_mov_b32 {sT1}, 0xffff0000')
        for p in range(4):
            a(f's_waitcnt vmcnt({3-p})')
            for d in range(4):
                lo, hi = (64 + 2 * d, 65 + 2 * d) if p == 0 else (72 + 2 * d, 73 + 2 * d)
                a(f'v_lshlrev_b32 v{lo}, 16, v{96+4*p+d}')
                a(f'v_and_b32 v{hi}, {sT1}, v{96+4*p+d}')
            if p:
                for e in range(8):
                    a(f'v_add_f32 v{64+e}, v{64+e}, v{72+e}')
        a('s_nop 0')
        for e in range(4):
            a(f'v_permlane32_swap_b32 v{64+e}, v{68+e}')
        for e in range(4):
            a(f'v_add_f32 v{64+e}, v{64+e}, v{68+e}')
        a(f"""
        v_cvt_pk_bf16_f32 v96, v64, v65
        v_cvt_pk_bf16_f32 v97, v66, v67
        buffer_store_dwordx2 v[96:97], v20, {OUT_}, {sC} offen{cfg.out_pol}
        """)
    else:
        a(f'''
        s_lshl_b32 {sT0}, {sG}, 3
        s_add_u32 {sT1}, {sT0}, {sWAVE}
        s_lshl_b32 {sT2}, {sT1}, 3
        s_add_u32 {sT2}, {sT2}, {sHKV}
        s_lshl_b32 {sT2}, {sT2}, 13
        s_add_u32 {sCNT}, {sT2}, 4096
        s_lshl_b32 {sT1}, {sT1}, 7
        s_add_u32 {sT1}, {sT1}, {FLAG_OFF}
        s_lshl_b32 {sC}, {sHKV}, 2
        s_add_u32 {sT1}, {sT1}, {sC}
        s_add_u32 {sT0}, {sT0}, {sHKV}        ; g*8 + own
        v_mov_b32 v10, 1
        v_mov_b32 v11, 0
        v_lshlrev_b32 v12, 2, v0
        ''')
        for pc in range(8):
            so = sT2 if pc < 4 else sCNT
            a(f'buffer_store_dwordx4 v[{64+4*pc}:{67+4*pc}], v4, {WS_}, {so} offen offset:{1024*(pc % 4)} sc1')
        a(f'''
        s_lshl_b32 {sCHK}, {sT0}, 7
        s_add_u32 {sCHK}, {sCHK}, {FLAG_OFF}
        s_lshl_b32 {sT0}, {sT0}, 16
        s_lshl_b32 {sC}, {sWAVE}, 10
        s_add_u32 {sT0}, {sT0}, {sC}
        s_waitcnt vmcnt(0)
        s_mov_b64 exec, 1
        buffer_store_dword v10, v11, {WS_}, {sT1} offen sc1
        s_mov_b64 exec, 0xff
        s_mov_b32 {sSPIN}, 0
        ''')
        stamp(56)
        a(f'''
        L_poll:
        buffer_load_dword v13, v12, {WS_}, {sCHK} offen sc1
        s_add_u32 {sSPIN}, {sSPIN}, 1
        s_cmp_gt_u32 {sSPIN}, 0x40000
        s_cbranch_scc1 L_polled
        s_waitcnt vmcnt(0)
        v_cmp_ne_u32 vcc, 1, v13
        s_cbranch_vccnz L_poll
        L_polled:
        s_mov_b64 exec, -1
        ''')
        stamp(57)
        for p in range(8):
            a(f'buffer_load_dwordx4 v[{96+4*p}:{99+4*p}], v4, {WS_}, {sT0} offen sc1')
            if p < 7: a(f's_add_u32 {sT0}, {sT0}, 8192')
        a(f'''
        v_and_b32 v20, 31, v0
        v_lshlrev_b32 v20, 11, v20
        v_lshl_add_u32 v20, v3, 4, v20
        s_lshr_b32 {sT1}, {sWAVE}, 1
        s_lshl_b32 {sT1}, {sT1}, 5
        s_and_b32 {sT2}, {sWAVE}, 1
        s_lshl_b32 {sT2}, {sT2}, 3
        s_add_u32 {sT1}, {sT1}, {sT2}
        ''')
        for p in range(1, 8):
            a(f's_waitcnt vmcnt({7-p})')
            for d in range(4):
                a(f'v_add_f32 v{96+d}, v{96+d}, v{96+4*p+d}')
        a(f'''
        v_cvt_pk_bf16_f32 v96, v96, v97
        v_cvt_pk_bf16_f32 v97, v98, v99
        buffer_store_dwordx2 v[96:97], v20, {OUT_}, {sT1} offen
        ''')
    if cfg.stamps:
        stamp(58)
        a('s_waitcnt vmcnt(0)')
        stamp(59); cstamp(61)
        a(f'''
        s_add_u32 s28, s28, {STAMP_OFF}
        s_addc_u32 s29, s29, 0
        s_lshl_b32 {sT0}, s2, 3
        s_add_u32 {sT0}, {sT0}, {sWAVE}
        s_lshl_b32 {sT0}, {sT0}, 8
        v_lshl_add_u32 v13, v0, 2, {sT0}
        global_store_dword v13, {vSTAMP}, s[28:29]
        ''')
    a('L_end:')
    a('s_endpgm')
    for tag, sb in (('A', 1), ('B', 0), ('D', 1), ('E', 0), ('C', 1)):
        a(f'L_slow{tag}:')
        emit(rowmax(sb, True))
        a('v_exp_f32 v15, -v14')
        a('v_exp_f32 v7, -v6')
        for u, (d, al) in enumerate((('v14', 'v15'), ('v6', 'v7'))):
            emit([f'v_sub_f32 v{S(sb)+8*u+r}, v{S(sb)+8*u+r}, {d}' for r in range(8)])
            if tag != 'C': emit([f'v_sub_f32 v{CB(u)+r}, v{CB(u)+r}, {d}' for r in range(4)])
            a(f'v_mul_f32 v{LA(u)}, v{LA(u)}, {al}')
            if tag == 'C':
                emit([f'v_mul_f32 v{S(0)+8*u+r}, v{S(0)+8*u+r}, {al}' for r in range(8)])
            for t in range(8):
                emit([f'v_mul_f32 v{OT(t,u)+r}, v{OT(t,u)+r}, {al}' for r in range(4)])
        a('s_nop 0')
        a(f's_branch L_back{tag}')

    return header([f'; @launch grid=(256,1,1) block=(512,1,1) lds={10*SLOT}']) + kernel_open(kn) + a.text() + descriptor(kn, 256, 102)

if __name__ == '__main__':
    out = sys.argv[1]
    cfg = Cfg()
    for kv in sys.argv[2:]:
        k, v = kv.split('=', 1)
        assert hasattr(cfg, k), k
        setattr(cfg, k, eval(v))
    t = gen(cfg)
    if cfg.nomfma:
        i0 = t.index('L_loop:'); i1 = t.index('L_tail:')
        t = t[:i0] + '\n'.join(('    s_nop 7' if 'v_mfma_f32_32' in l else l) for l in t[i0:i1].split('\n')) + t[i1:]
    n = hazard.check(t)
    open(out, 'w').write(t)
    print(out, 'hazards:', n, 'lines:', t.count('\n'))
```

```python
NAME = 'concat_heads__gqa_block_cached__gqa_block_cached__near_ridge'

class Asm:
    def __init__(self):
        self.lines = []
        self.nlab = 0
    def __call__(self, s):
        for l in s.strip('\n').split('\n'):
            l = l.strip()
            if not l:
                continue
            if l.endswith(':'):
                self.lines.append(l)
            else:
                self.lines.append('    ' + l)
    def label(self, base='L'):
        self.nlab += 1
        return f'{base}_{self.nlab}'
    def text(self):
        return '\n'.join(self.lines) + '\n'

DESCR = """;
; Written by a generator script (hand-scheduled instruction lists)."""

def header(launch_lines):
    ref = open('cdna_kernels/' + NAME + '.s.ref').read().split('\n')
    hdr = [l for l in ref if l.startswith(';') and '@launch' not in l and 'Override launch' not in l and 'grid=ceil' not in l]
    return '\n'.join(hdr + DESCR.split('\n') + launch_lines) + '\n.amdgcn_target "amdgcn-amd-amdhsa--gfx950"\n.text\n'

def kernel_open(name):
    return f'.globl {name}\n.p2align 8\n.type {name},@function\n{name}:\n'

def descriptor(name, vgpr=256, sgpr=102, accum=None):
    if accum is None:
        accum = min(256, (vgpr + 3) // 4 * 4)
    return f'''.section .rodata,"a"
.p2align 6
.amdhsa_kernel {name}
  .amdhsa_next_free_vgpr {vgpr}
  .amdhsa_next_free_sgpr {sgpr}
  .amdhsa_accum_offset {accum}
  .amdhsa_group_segment_fixed_size 0
  .amdhsa_kernarg_size 104
  .amdhsa_user_sgpr_count 2
  .amdhsa_user_sgpr_kernarg_segment_ptr 1
  .amdhsa_system_sgpr_workgroup_id_x 1
.end_amdhsa_kernel
'''
```

```python
import sys, struct
from asmlib import *
import hazard

def f32(x):
    return struct.unpack('<I', struct.pack('<f', x))[0]

SLOT = 16384
FLAG_OFF = 16 * 1024 * 1024
STAMP_OFF = 128 * 1024 * 1024
OBASE = 3 * SLOT
WSLOT = [8, 9, 6, 7, 0, 1, 2, 5]

def slot_of(j):
    return j if j < 10 else (j - 10) % 8

class Cfg:
    stamps = 0
    wq_pol = ''
    wo_pol = ''
    x_pol = ''
    kv_pol = ' nt'
    w_at = (13, 14, 15, 15, 16, 16, 16)
    warm = False
    wq_first = 3
    stagger = 1
    g0_fly = 4
    g0_fly2 = 1
    g0_sw = 5
    g0_list = '3333311'
    g1_list = ''
    g0_sw2 = 99
    w_at0 = None
    g0_pre = 0
    g1_pre = 11
    hprio = 1
    park = 8
    poll2 = False
    hearly = 0
    fin2 = True
    lay = 'abcd'
    hup = 99
    defer = 2
    wtouch = (0, 0)
    hs0 = True
    hburst = 24
    hbp = 0
    poll1 = 0
    psleep = 0
    align = ''
    oprio = 3
    cprio = 0
    nrm = 4
    smem = (0, 0)
    wq6 = False
    rb_pre = 2
    out_pol = ''
    near_kv = True
    early = True
    park0 = 5
    T = 8.0
    kvrot = ''
    nomfma = False
    h_ahead = 4
    h_start = 5
    wq_both = False
    g1_first = 2
    g1_fly = 5
    bf16p = True

woff = lambda idx: ((idx >> 1) << 15) | ((idx & 1) << 13)

def gen(cfg):
    a = Asm()
    kn = NAME + '_kernel'
    def emit(l):
        for x in l: a(x)
    sWAVE, sHKV, sBR, sB, sG, sROT = 's30', 's31', 's32', 's33', 's34', 's35'
    K_, V_, X_, WQ_, WO_, WS_, OUT_, DBG_ = ['s[%d:%d]' % (36 + 4 * i, 39 + 4 * i) for i in range(8)]
    sT0, sT1, sT2, sCNT, sBASE, sLIM, sC, sCHK, sHW = 's68', 's69', 's70', 's71', 's72', 's73', 's74', 's75', 's76'
    sSPIN, sVB, sGRP, sWL, sWG, sWX = 's77', 's78', 's79', 's84', 's85', 's87'
    vSTAMP = 'v31'
    NP = 2 * cfg.park
    def stamp(i):
        if not cfg.stamps or (cfg.stamps == 2 and i not in (0, 59)) or (cfg.stamps == 3 and i not in (0, 8, 24, 6, 7, 56, 57, 58, 59)) or (cfg.stamps == 4 and i not in (0, 21, 22, 23, 24, 6, 59, 30, 31, 32, 33, 34, 35, 38)): return
        a('s_memrealtime s[100:101]')
        a('s_waitcnt lgkmcnt(0)')
        a(f'v_writelane_b32 {vSTAMP}, s100, {i}')
    def cstamp(i):
        if cfg.stamps != 1: return
        a('s_memtime s[100:101]')
        a('s_waitcnt lgkmcnt(0)')
        a(f'v_writelane_b32 {vSTAMP}, s100, {i}')

    LATE1 = f'''s_mov_b32 s54, 524288
    s_mov_b32 s55, 0x20000
    s_mov_b32 s58, {FLAG_OFF + 32768}
    s_mov_b32 s59, 0x20000
    s_mov_b32 s63, 0x20000
    s_mov_b32 s66, 256
    s_mov_b32 s67, 0x20000'''
    a(f'''
    L_start:
    {'s_memrealtime s[98:99]' if cfg.stamps else ''}
    s_cmp_ge_u32 s2, 256
    s_cbranch_scc1 L_end
    s_load_dwordx16 s[4:19], s[0:1], 0
    s_load_dwordx8 s[20:27], s[0:1], 64
    s_load_dwordx2 s[28:29], s[0:1], 96
    v_lshrrev_b32 v1, 6, v0
    v_and_b32 v0, 63, v0
    v_readfirstlane_b32 {sWAVE}, v1
    s_and_b32 {sHKV}, s2, 3
    s_lshl_b32 {sHKV}, {sHKV}, 1
    s_bfe_u32 {sBR}, s2, 0x10003
    s_add_u32 {sHKV}, {sHKV}, {sBR}
    s_bfe_u32 {sBR}, s2, 0x10002
    s_lshr_b32 {sB}, s2, 4
    s_lshl_b32 {sG}, {sBR}, 4
    s_add_u32 {sG}, {sG}, {sB}
    s_lshl_b32 {sROT}, {sB}, 1
    ''')
    a({0: f's_mov_b32 {sGRP}, 0', 1: f's_and_b32 {sGRP}, {sHKV}, 1', 2: f's_mov_b32 {sGRP}, 1'}[cfg.stagger])
    if cfg.stamps:
        a(f'v_mov_b32 {vSTAMP}, 0')
    a(f'''
    v_lshrrev_b32 v1, 4, v0          ; lane>>4
    v_and_b32 v2, 15, v0             ; lane&15
    v_lshrrev_b32 v3, 5, v0          ; h2
    v_lshlrev_b32 v4, 4, v0          ; lane*16
    s_lshl_b32 {sT0}, {sB}, 3
    s_add_u32 {sT0}, {sT0}, {sHKV}
    s_lshl_b32 {sT0}, {sT0}, 18
    s_lshl_b32 {sT1}, {sB}, 15
    s_lshl_b32 {sT2}, {sHKV}, 10
    s_mov_b32 s38, 262144
    s_mov_b32 s39, 0x20000
    s_mov_b32 s42, 262144
    s_mov_b32 s43, 0x20000
    s_mov_b32 s46, 32768
    s_mov_b32 s47, 0x20000
    s_sub_u32 s50, 0x400000, {sT2}
    s_mov_b32 s51, 0x20000
    {LATE1 if cfg.defer == 2 else ''}
    s_lshl_b32 {sWL}, {sWAVE}, 11
    s_lshl_b32 {sWG}, {sWAVE}, 7
    s_lshl_b32 {sWX}, {sROT}, 14
    s_add_u32 {sWX}, {sWX}, {sWG}
    s_waitcnt lgkmcnt(0)
    ''')
    if cfg.stamps: a(f'v_writelane_b32 {vSTAMP}, s98, 0')
    cstamp(60)
    a(f'''
    s_cmp_eq_u32 {sBR}, 0
    s_cselect_b32 s36, s6, s16
    s_cselect_b32 s37, s7, s17
    s_cselect_b32 s40, s8, s18
    s_cselect_b32 s41, s9, s19
    s_cselect_b32 s44, s4, s14
    s_cselect_b32 s45, s5, s15
    s_cselect_b32 s48, s10, s20
    s_cselect_b32 s49, s11, s21
    s_cselect_b32 s52, s12, s22
    s_cselect_b32 s53, s13, s23
    s_add_u32 s36, s36, {sT0}
    s_addc_u32 s37, s37, 0
    s_add_u32 s40, s40, {sT0}
    s_addc_u32 s41, s41, 0
    s_add_u32 s44, s44, {sT1}
    s_addc_u32 s45, s45, 0
    s_add_u32 s48, s48, {sT2}
    s_addc_u32 s49, s49, 0
    ''')
    late_srd = f'''
    s_mov_b32 s54, 524288
    s_mov_b32 s55, 0x20000
    s_mov_b32 s58, {FLAG_OFF + 32768}
    s_mov_b32 s59, 0x20000
    s_mov_b32 s63, 0x20000
    s_mov_b32 s66, 256
    s_mov_b32 s67, 0x20000
    s_lshl_b32 {sT0}, {sHKV}, 19
    s_add_u32 s52, s52, {sT0}
    s_addc_u32 s53, s53, 0
    s_mov_b32 s56, s28
    s_mov_b32 s57, s29
    s_lshl_b32 {sT0}, {sBR}, 10
    s_lshl_b32 {sT1}, {sHKV}, 7
    s_add_u32 {sT0}, {sT0}, {sT1}
    s_sub_u32 s62, 65536, {sT0}
    s_lshl_b32 {sT1}, {sB}, 16
    s_add_u32 {sT0}, {sT0}, {sT1}
    s_add_u32 s60, s24, {sT0}
    s_addc_u32 s61, s25, 0
    s_mov_b32 s64, s26
    s_mov_b32 s65, s27
    '''
    if cfg.defer == 2: late_srd = late_srd.split('s_mov_b32 s67, 0x20000')[1]
    if cfg.defer in (0, 2): a(late_srd)
    a(f'''
    s_cmp_lt_u32 {sWAVE}, 4
    s_cbranch_scc1 L_compute
    ''')
    a('s_setprio 1')
    vKD = ['v5', 'v6', 'v7', 'v8']; vVD = ['v9', 'v12']
    if 'a' in cfg.lay:
        a(f'''
        s_sub_u32 {sHW}, {sWAVE}, 4
        s_and_b32 {sT0}, {sHW}, 1
        s_lshl_b32 {sT0}, {sT0}, 2
        s_xor_b32 {sT0}, {sT0}, {sROT}
        s_lshl_b32 {sT0}, {sT0}, 5
        v_xor_b32 v16, {sT0}, v4
        s_lshl_b32 {sT1}, {sHW}, 13
        s_add_u32 m0, {sT1}, {4*SLOT}
        ''')
        for jq in range(8):
            if jq == 4: a(f's_add_u32 m0, {sT1}, {4*SLOT + 4096}\ns_add_u32 {sT1}, {sT1}, 4096')
            if jq < 7: a(f'v_xor_b32 v{17+jq}, {16*(jq+1)}, v16')
            a(f'buffer_load_dwordx4 v{16+jq}, {X_}, {sT1} offen offset:{1024*(jq % 4)}{cfg.x_pol} lds')
    else:
        a(f'''
        s_sub_u32 {sHW}, {sWAVE}, 4
        s_lshl_b32 {sT1}, {sROT}, 1
        s_lshl_b32 {sT2}, {sHW}, 3
        ''')
        for jq in range(8):
            a(f'''
            s_add_u32 {sT0}, {sT2}, {jq}
            s_and_b32 {sCNT}, {sT0}, 15
            v_xor_b32 v{16+jq}, {sCNT}, v0
            v_add_u32 v{16+jq}, {sT1}, v{16+jq}
            s_lshl_b32 {sT0}, {sT0}, 10
            v_and_b32 v{16+jq}, 63, v{16+jq}
            s_add_u32 m0, {sT0}, {4*SLOT}
            v_lshlrev_b32 v{16+jq}, 4, v{16+jq}
            buffer_load_dwordx4 v{16+jq}, {X_}, {sT0} offen{cfg.x_pol} lds
            ''')
    a(f'''
    v_xor_b32 v10, v2, v1
    v_lshlrev_b32 v10, 4, v10
    v_lshl_add_u32 v5, v1, 8, v10
    v_xor_b32 v6, 64, v5
    v_xor_b32 v7, 128, v5
    v_xor_b32 v8, 192, v5
    v_lshlrev_b32 v10, 1, v1
    v_xor_b32 v10, v10, v2
    v_lshlrev_b32 v10, 4, v10
    v_lshl_add_u32 v9, v1, 8, v10
    v_xor_b32 v12, 128, v9
    s_lshl_b32 {sBASE}, {sHW}, 12
    ''')
    if cfg.kvrot:
        a(cfg.kvrot.replace('B', sB).replace('H', sHKV).replace('R', sBR).replace(';', '\n'))
        a(f's_and_b32 s86, s86, 15\ns_lshl_b32 s86, s86, 14\ns_add_u32 s86, s86, {sBASE}')
    if cfg.near_kv:
        a(f's_cmp_eq_u32 {sGRP}, 0\ns_cbranch_scc1 L_helper')
        for j in range(cfg.g1_first):
            a(f's_add_u32 m0, {sBASE}, {j*SLOT}')
            a(f's_add_u32 {sT0}, {sBASE}, {(j//2)*SLOT}')
            for jj in range(4):
                va, srd = (vKD[jj], K_) if j % 2 == 0 else (vVD[jj & 1], V_)
                a(f'buffer_load_dwordx4 {va}, {srd}, {sT0} offen offset:{1024*jj}{cfg.kv_pol} lds')
    a('s_branch L_hkv' if 'b' in cfg.lay else 's_branch L_helper')
    a('L_compute:')

    vWD = ['v112', 'v113']
    vWA = lambda region, nb: f'v{114 + 2 * region + nb}'
    vOA, vPA0 = 'v120', 121
    oproj_addr = f'''
    v_lshrrev_b32 v112, 3, v0
    v_and_b32 v113, 7, v0
    v_bfe_u32 v114, v0, 4, 1
    v_lshlrev_b32 v114, 2, v114
    v_xor_b32 v113, v113, v114
    v_lshlrev_b32 v113, 4, v113
    v_lshl_add_u32 v112, v112, 10, v113
    v_add_u32 v113, 15360, v112
    v_and_b32 v114, 1, v0
    v_bfe_u32 v115, v0, 1, 1
    v_lshlrev_b32 v114, 4, v114
    v_lshl_add_u32 v114, v115, 3, v114  ; pi*8
    v_and_b32 v115, 1, v1
    v_lshl_add_u32 v114, v115, 5, v114  ; + g*32
    v_lshl_add_u32 v114, v3, 9, v114    ; + h2*512
    v_bfe_u32 v115, v0, 2, 2
    v_lshl_add_u32 v114, v115, 7, v114  ; + r*128
    v_bfe_u32 v115, v0, 3, 1
    v_lshl_add_u32 v121, v115, 6, v114  ; + (r>>1)*64
    v_add_u32 v114, {sWL}, v121
    v_xor_b32 v115, 64, v114
    v_add_u32 v116, {4*SLOT}, v114
    v_add_u32 v117, {4*SLOT}, v115
    v_add_u32 v118, {8*SLOT}, v114
    v_add_u32 v119, {8*SLOT}, v115
    v_add_u32 v120, {OBASE}, v4
    '''.strip().split('\n')

    vWQ = ['v5', 'v6', 'v7', 'v8']
    a(f'''
    v_lshlrev_b32 v9, 2, v1
    v_xor_b32 v9, v9, v2
    v_lshlrev_b32 v9, 4, v9
    v_lshl_add_u32 v9, v1, 13, v9
    s_lshl_b32 {sT0}, {sWAVE}, 8
    v_add_u32 v5, {sT0}, v9
    v_add_u32 v6, {31744}, v5
    v_add_u32 v7, {2*31744}, v5
    v_add_u32 v8, {3*31744}, v5
    s_add_u32 {sBASE}, {sWAVE}, 6
    s_lshl_b32 {sBASE}, {sBASE}, 14
    ''')
    NQ = 6 if cfg.wq6 else 4
    if 'a' in cfg.lay: a(f's_lshl_b32 {sLIM}, {sROT}, 17')
    a(f's_lshl_b32 {sVB}, {sWAVE}, 13\ns_add_u32 {sVB}, {sVB}, {4*SLOT}')
    def wq_pre(i):
        if 'a' in cfg.lay:
            return [(f's_add_u32 m0, {sBASE}, {(i % NQ) * 4096}' if i % NQ < 4 else f's_add_u32 m0, {sVB}, {(i % NQ - 4) * 4096}'),
                    f's_xor_b32 {sT0}, {sLIM}, {i << 17}']
        return [f's_add_u32 {sT0}, {sROT}, {i}', f's_and_b32 {sT0}, {sT0}, 31',
                (f's_add_u32 m0, {sBASE}, {(i % NQ) * 4096}' if i % NQ < 4 else f's_add_u32 m0, {sVB}, {(i % NQ - 4) * 4096}'),
                f's_lshl_b32 {sT0}, {sT0}, 17']
    def wq_dma(j):
        return f'buffer_load_dwordx4 {vWQ[j]}, {WQ_}, {sT0} offen offset:{1024*j}{cfg.wq_pol} lds'
    def wq_issue(i):
        emit(wq_pre(i)); emit([wq_dma(j) for j in range(4)])
    if not cfg.wq_both: a(f's_cmp_eq_u32 {sGRP}, 0\ns_cbranch_scc0 L_nowq0')
    for i in range(cfg.wq_first): wq_issue(i)
    a('L_nowq0:')
    if cfg.defer == 1: a(late_srd)
    if cfg.hs0:
        a(f'''
        s_cmp_eq_u32 {sWAVE}, 0
        s_cbranch_scc0 L_noclear
        s_lshl_b32 {sT0}, {sG}, 3
        s_add_u32 {sT0}, {sT0}, {sHKV}
        s_lshl_b32 {sT0}, {sT0}, 7
        s_add_u32 {sT0}, {sT0}, {FLAG_OFF}
        v_mov_b32 v10, 0
        v_lshlrev_b32 v11, 2, v0
        s_mov_b64 exec, 0xff
        buffer_store_dword v10, v11, {WS_}, {sT0} offen sc1
        s_mov_b64 exec, -1
        L_noclear:
        ''')
    a(f'''
    v_bfe_u32 v13, v0, 2, 2          ; r
    v_and_b32 v14, 1, v0
    v_bfe_u32 v15, v0, 1, 1
    v_lshlrev_b32 v14, 4, v14
    v_lshl_add_u32 v14, v15, 3, v14  ; pi*8
    v_and_b32 v15, 1, v1             ; g
    v_lshl_add_u32 v14, v15, 5, v14  ; g*32 + pi*8
    v_lshlrev_b32 v12, 11, v3        ; 8*h2*256
    v_mul_u32_u24 v15, 320, v13      ; r*256 + r*64
    v_add3_u32 v12, v12, v15, v14
    v_add_u32 v16, {sBASE}, v12
    v_xor_b32 v17, 64, v16
    v_xor_b32 v18, 128, v16
    v_xor_b32 v19, 192, v16
    v_and_b32 v20, 31, v0            ; q
    v_xor_b32 v21, v3, v2            ; h2 ^ (q&15)
    v_lshlrev_b32 v21, 4, v21
    v_lshl_add_u32 v21, v20, 10, v21
    v_add_u32 v21, {4*SLOT}, v21
    ''')
    vTQ = ['v16', 'v17', 'v18', 'v19']
    vTQ2 = ['v21', 'v22', 'v23', 'v24']
    XF = lambda i: 128 + 4 * i
    QA = lambda blk: 64 + 16 * blk
    BUF = lambda i, blk: 32 + 16 * (i & 1) + 4 * blk
    OA = lambda blk: 128 + 16 * blk
    for m in range(1, 8):
        a(f'v_xor_b32 v{21+m}, {32*m}, v21')
    vKL, vVL, vOL = 'v29', 'v13', 'v9'
    a(f"""
    v_xor_b32 v14, v1, v2
    v_lshlrev_b32 v14, 4, v14
    v_lshl_add_u32 {vKL}, v2, 8, v14
    v_bfe_u32 v14, v0, 2, 4             ; 4g + r
    v_and_b32 v15, 7, v14
    v_lshlrev_b32 v14, 8, v14
    v_lshl_add_u32 v14, v15, 5, v14
    v_and_b32 v15, 3, v0
    v_lshl_add_u32 {vVL}, v15, 3, v14
    v_lshlrev_b32 v14, 4, v2
    v_lshl_add_u32 v14, v3, 10, v14
    v_and_b32 v15, 1, v1
    v_lshl_add_u32 {vOL}, v15, 9, v14
    v_mov_b32 v30, {hex(f32(1.4426950408889634 / 128 ** 0.5))}
    s_mov_b32 {sC}, {hex(f32(cfg.T))}
    s_barrier   ; Bx
    """)
    stamp(1)
    for i in range(32):
        a(f'ds_read_b128 v[{XF(i)}:{XF(i)+3}], v{21 + (i & 7)} offset:{256*(i >> 3)}')
        if i in (14, 22, 30): a('s_waitcnt lgkmcnt(7)')
    a('s_waitcnt lgkmcnt(0)')
    a('s_barrier   ; Bx2')
    a('s_barrier   ; Bw')
    stamp(2)
    if not cfg.wq_both:
        a(f's_cmp_eq_u32 {sGRP}, 0\ns_cbranch_scc1 L_wq1')
        for i in range(cfg.wq_first): wq_issue(i)
        a('L_wq1:')
    for i in range(cfg.wq_first, NQ - 1): wq_issue(i)
    if cfg.wq6:
        a(f'v_add_u32 v21, {sVB}, v12\nv_xor_b32 v22, 64, v21\nv_xor_b32 v23, 128, v21\nv_xor_b32 v24, 192, v21')
    pre = [x.replace('v112', 'v28').replace('v113', 'v14').replace('v114', 'v12').replace('v115', 'v15').replace('v121', 'v12')
           for x in oproj_addr[:7] + oproj_addr[8:20]]
    emit(pre)
    a(f's_lshl_b32 {sT0}, {sWAVE}, 3\ns_xor_b32 {sT0}, {sT0}, {sROT}\ns_lshl_b32 {sT0}, {sT0}, 10\nv_add_u32 v11, {sT0}, {vOL}')
    def q_mfma(i, blk):
        c = '0' if i == 0 else f'v[{QA(blk)}:{QA(blk)+15}]'
        return f'v_mfma_f32_32x32x16_bf16 v[{QA(blk)}:{QA(blk)+15}], v[{BUF(i,blk)}:{BUF(i,blk)+3}], v[{XF(i)}:{XF(i)+3}], {c}'
    for i in range(32):
        a(f's_waitcnt vmcnt({4*(min(31, i + NQ - 2) - i)})')
        if i == 0: stamp(3)
        if i in (4, 8, 16, 24): stamp(40 + i // 4)
        for blk in range(4):
            for u in range(2):
                r = BUF(i, blk) + 2 * u
                a(f'ds_read_b64_tr_b16 v[{r}:{r+1}], {(vTQ if i % NQ < 4 else vTQ2)[blk]} offset:{(i % NQ % 4)*4096 + 1024*u}')
        dma = i + NQ - 1 < 32
        if dma: emit(wq_pre(i + NQ - 1))
        for blk in range(4):
            if 0 < i < 31 or (i == 31 and blk == 0): a(q_mfma(i - 1, blk))
            if dma: a(wq_dma(blk))
            if 18 <= i < 26:
                for z in range(2):
                    a(f'v_mov_b32 v{128 + 8*(i-18) + 2*blk + z}, 0')
        if i + NQ - 1 == 31: a('s_barrier   ; Bk')
        a('s_waitcnt lgkmcnt(0)')
    a('s_barrier   ; Bq')
    a(f"""
    s_mov_b32 {sCNT}, {14 if cfg.fin2 else 13}
    s_mov_b32 {sBASE}, 0
    s_mov_b32 {sLIM}, {10*SLOT}
    """)
    QF = lambda ks: 32 + 4 * ks
    S = lambda kb: 64 + 16 * kb
    P = lambda i: 96 + 4 * i if i < 2 else 192 + 4 * (i - 2)
    CB = lambda u: 112 + 4 * u
    LA = lambda u: 104 + 4 * u
    ON = 124
    KF = lambda i: 192 + 4 * i
    VF = lambda t: 224 + 4 * t
    OT = lambda t, u: 128 + 8 * t + 4 * u
    vKA = ['v16', 'v17', 'v18', 'v19']
    vVA = ['v%d' % (20 + t) for t in range(8)]
    M16 = lambda d, x, y, c: f'v_mfma_f32_16x16x32_bf16 v[{d}:{d+3}], v[{x}:{x+3}], v[{y}:{y+3}], ' + (f'v[{c}:{c+3}]' if c is not None else '0')
    def qk(sb, j, first=False):
        s_, kt, u = j >> 2, (j >> 1) & 1, j & 1
        d = S(sb) + 8 * u + 4 * kt
        return M16(d, KF(2 * s_ + kt), QF(2 * s_ + u), d if s_ else (None if first else CB(u)))
    pv = lambda t, u, p: M16(OT(t, u), VF(t), P(p), OT(t, u))
    rsum = lambda u, p: M16(LA(u), ON, P(p), LA(u))
    kread = lambda i, kb: f'ds_read_b128 v[{KF(i)}:{KF(i)+3}], {vKA[i >> 1]} offset:{8192*kb + 4096*(i & 1)}'
    vread = lambda j, kb: f'ds_read_b64_tr_b16 v[{VF(j >> 1)+2*(j & 1)}:{VF(j >> 1)+2*(j & 1)+1}], {vVA[j >> 1]} offset:{8192*kb + 4096*(j & 1)}'
    exp = lambda r: f'v_exp_f32 v{r}, v{r}'
    cvt = lambda p, d, r: f'v_cvt_pk_bf16_f32 v{P(p)+d}, v{r}, v{r+1}'
    def maxchain(sb):
        b = S(sb)
        l = [f'v_max3_f32 v14, v{b}, v{b+1}, v{b+2}', f'v_max3_f32 v15, v{b+3}, v{b+8}, v{b+9}',
             f'v_max3_f32 v14, v14, v{b+10}, v{b+11}', f'v_max3_f32 v15, v15, v{b+4}, v{b+5}',
             f'v_max3_f32 v14, v14, v{b+6}, v{b+7}', f'v_max3_f32 v15, v15, v{b+12}, v{b+13}',
             f'v_max3_f32 v14, v14, v{b+14}, v{b+15}', f'v_max_f32 v14, v14, v15']
        return l
    def rowmax(sb, floor):
        l = []
        for u, (x, y) in enumerate((('v14', 'v15'), ('v6', 'v7'))):
            b = S(sb) + 8 * u
            l += [f'v_max3_f32 {x}, v{b}, v{b+1}, v{b+2}', f'v_max3_f32 {y}, v{b+3}, v{b+4}, v{b+5}',
                  f'v_max3_f32 {x}, {x}, v{b+6}, v{b+7}']
        l += ['v_max_f32 v14, v14, v15', 'v_max_f32 v6, v6, v7', 'v_mov_b32 v15, v14', 'v_mov_b32 v7, v6', 's_nop 0',
              'v_permlane32_swap_b32 v14, v15', 'v_permlane32_swap_b32 v6, v7',
              'v_max_f32 v14, v14, v15', 'v_max_f32 v6, v6, v7', 'v_mov_b32 v15, v14', 'v_mov_b32 v7, v6', 's_nop 0',
              'v_permlane16_swap_b32 v14, v15', 'v_permlane16_swap_b32 v6, v7']
        l += ['v_max3_f32 v14, v14, v15, 0', 'v_max3_f32 v6, v6, v7, 0'] if floor else ['v_max_f32 v14, v14, v15', 'v_max_f32 v6, v6, v7']
        return l
    KA = [f'v_add_u32 {vKA[0]}, {sBASE}, {vKL}'] + [f'v_xor_b32 {vKA[i]}, {64*i}, {vKA[0]}' for i in range(1, 4)]
    VA = [f'v_add_u32 {vVA[0]}, {sVB}, {vVL}'] + [f'v_xor_b32 {vVA[t]}, {32*t}, {vVA[0]}' for t in range(1, 8)]
    cmp_ = f'v_cmp_lt_f32 vcc, {sC}, v14'
    def branch(tag):
        a(f's_cbranch_vccnz L_slow{tag}')
        a(f'L_back{tag}:')
    def mini(cur, x, barrier=False, vnext=True, kreads=True):
        nx = cur ^ 1; b = S(cur)
        Rc = {j: vread(j, cur) for j in range(9, 16)}
        Rn = [vread(j, nx) if vnext else None for j in range(9)]
        D = [kread(i, cur) if kreads else None for i in range(8)]
        E = [exp(b + e) for e in range(16)]
        C = [cvt(d >> 2, d & 3, b + 2 * d) for d in range(8)]
        X = maxchain(nx)
        W = lambda n: f's_waitcnt lgkmcnt({n})'
        g = {0: [Rc[9], E[0]], 1: [E[1]], 2: [Rc[10], E[2]], 3: [D[0], E[3]], 4: [Rc[11], E[4]], 5: [D[1], E[5]],
             6: [Rc[12], E[6]], 7: [W(6 if kreads else 4), E[7]], 8: [D[2], Rc[13], C[0]], 9: [D[3], C[1]], 10: [Rc[14], C[2]], 11: [D[4], C[3]],
             12: [Rc[15], E[8]], 13: [D[5], E[9]], 14: [E[10]], 15: [D[6], E[11]],
             16: [E[12]], 17: [D[7], E[13]], 18: [E[14]], 19: [E[15], W(3 if kreads else 0)], 20: [C[4], C[5]], 21: [C[6], C[7]],
             22: [X[0]], 23: [X[1]], 's0': ([W(0)] if kreads else []) + (['s_barrier   ; k(t+2): V(t+1), K(t+2) landed'] if barrier else []),
             24: [Rn[0], X[2]], 25: [Rn[1], X[3]], 26: [Rn[2], X[4]], 27: [Rn[3], X[5]], 28: [Rn[4], X[6]], 29: [Rn[5], X[7]],
             30: [Rn[6], cmp_], 31: [Rn[7]], 's1': [Rn[8]]}
        def G(k): emit([y for y in g[k] if y] + x.get(k, []))
        for j in range(16):
            a(qk(nx, j)); G(j)
        for t in range(8):
            a(pv(t, 0, 0)); G(16 + t)
        a(rsum(0, 0)); G('s0')
        for t in range(8):
            a(pv(t, 1, 1)); G(24 + t)
        a(rsum(1, 1)); G('s1')
    vx = {1: [VA[0]], 9: [VA[1]], 10: [VA[2]], 11: [VA[3]], 14: [VA[4]], 16: [VA[5]], 22: [VA[6]], 23: [VA[7]]}
    def step(tags, last):
        if last:
            mini(0, {1: [f's_add_u32 {sVB}, {sBASE}, {SLOT}']})
        else:
            mini(0, {1: [f's_add_u32 {sVB}, {sBASE}, {SLOT}'], 9: [f's_add_u32 {sBASE}, {sBASE}, {2*SLOT}'],
                     10: [f's_cmp_eq_u32 {sBASE}, {sLIM}'], 11: [f's_cselect_b32 {sBASE}, 0, {sBASE}'],
                     14: [f's_cselect_b32 {sLIM}, {8*SLOT}, {sLIM}'],
                     16: [f's_cmp_eq_u32 {sCNT}, {sCHK}', 's_cbranch_scc0 L_nock', f'buffer_load_dword v5, v30, {DBG_}, 0 offen sc1', 'L_nock:'] if cfg.fin2 else [], 22: [f's_sub_u32 {sCNT}, {sCNT}, 1']})
        branch(tags[0])
        if last:
            mini(1, vx, False, False)
        else:
            mini(1, {**vx, 18: [KA[0]], 31: [KA[1]], 's1': [KA[2]], 's0': [], 20: [], 27: [], 26: [], 29: [KA[3]]}, True)
        branch(tags[1])
    class Lds:
        def __init__(s): s.ops = []; s.done = 0
        def rd(s, ins, tag=None): a(ins); s.ops.append(tag)
        def need(s, tag):
            k = s.ops.index(tag) + 1
            if k > s.done:
                a(f's_waitcnt lgkmcnt({len(s.ops) - k})'); s.done = k
    def qscale(ks):
        src = QA(ks >> 1) + 8 * (ks & 1)
        return [f'v_pk_mul_f32 v[{src+2*d}:{src+2*d+1}], v[{src+2*d}:{src+2*d+1}], v[30:31] op_sel_hi:[1,0]' for d in range(4)]
    def qpack(ks):
        src = QA(ks >> 1) + 8 * (ks & 1)
        return [f'v_cvt_pk_bf16_f32 v{QF(ks)+d}, v{src+2*d}, v{src+2*d+1}' for d in range(4)]
    def qswap(s_):
        x, y = QF(2 * s_), QF(2 * s_ + 1)
        return [f'v_permlane32_swap_b32 v{x+d}, v{y+d}' for d in range(4)] + [f'v_permlane16_swap_b32 v{x+d}, v{y+d}' for d in range(4)]
    a(q_mfma(31, 0)); emit(KA)
    a(q_mfma(30, 1)); a(f's_mov_b32 {sVB}, {SLOT}'); emit(VA[:3])
    a(q_mfma(31, 1)); emit(VA[3:6])
    a(q_mfma(30, 2)); emit(qscale(0))
    a(q_mfma(31, 2)); emit(qscale(1))
    a(q_mfma(30, 3)); emit(qscale(2))
    a(q_mfma(31, 3)); emit(qscale(3))
    stamp(4)
    for ks in range(4): emit(qpack(ks))
    a('s_barrier   ; k0')
    stamp(8)
    L = Lds()
    for i in range(8): L.rd(kread(i, 0), ('a', i))
    a(f's_mov_b32 {sBASE}, {2*SLOT}')
    emit(qscale(4) + qscale(5)); emit(qswap(0)); emit(qpack(4) + qpack(5))
    emit(qscale(6) + qscale(7)); emit(qswap(1)); emit(qpack(6) + qpack(7))
    late = VA[6:] + qswap(2) + qswap(3) + [f'v_mov_b32 v{LA(0)+i}, 0' for i in range(8)] + [f'v_mov_b32 v{ON+i}, 0x3f803f80' for i in range(4)]
    for j in range(16):
        L.need(('a', j >> 1))
        a(qk(0, j, True))
        if j & 1: L.rd(kread(j >> 1, 1), ('b', j >> 1))
        emit(late[:2]); del late[:2]
    assert not late
    emit(KA)
    a('s_nop 2')
    rm = rowmax(0, False)
    emit(rm[:10])
    a('s_waitcnt lgkmcnt(0)')
    a('s_barrier   ; k1')
    for j in range(9): a(vread(j, 0))
    emit(rm[11:])
    for u, m in enumerate(('v14', 'v6')):
        emit([f'v_sub_f32 v{CB(u)+i}, 0, {m}' for i in range(4)])
        emit([f'v_sub_f32 v{S(0)+8*u+i}, v{S(0)+8*u+i}, {m}' for i in range(8)])
    if 'l' in cfg.align: a('.p2align 6')
    if 'L' in cfg.align: a('.p2align 6\ns_nop 0')
    if cfg.hs0:
        a(f'''
        s_lshl_b32 {sT0}, {sG}, 3
        v_mov_b32 v30, {sT0}
        v_mov_b32 v5, 8
        s_mov_b32 {sCHK}, 99
        s_cmp_eq_u32 {sWAVE}, 0
        s_cbranch_scc0 L_noann
        s_mov_b32 {sCHK}, 1
        v_mov_b32 v10, 1
        s_mov_b64 exec, 1
        buffer_atomic_add v10, v30, {DBG_}, 0 offen sc1
        s_mov_b64 exec, -1
        L_noann:
        ''')
    a('L_loop:')
    step('AB', False)
    a('s_cbranch_scc0 L_loop')
    def norm(tp, u):
        inv = ('v[14:15]', 'v[6:7]')[u]; dst = 64 + 8 * tp + 4 * u
        l = []
        for k in range(2):
            src = OT(2 * tp + k, u)
            l += [f'v_pk_mul_f32 v[{src+e}:{src+e+1}], v[{src+e}:{src+e+1}], {inv} op_sel_hi:[1,0]' for e in (0, 2)]
        for k in range(2):
            src = OT(2 * tp + k, u)
            l += [f'v_cvt_pk_bf16_f32 v{dst+2*k+d}, v{src+2*d}, v{src+2*d+1}' for d in range(2)]
        return l + [f'ds_write_b128 {vOW[tp]}, v[{dst}:{dst+3}] offset:{OBASE + 256*u}']
    vOW = ['v11', 'v16', 'v17', 'v18']
    if cfg.fin2:
        a('L_last:')
        a('L_tail:')
        assert cfg.hs0
        fill = [f'v_xor_b32 {vOW[h]}, {h << 11}, v11' for h in range(1, 4)] + \
               ['v_mov_b32 v112, v28', 'v_add_u32 v113, 7168 + 8192, v28', 'v_mov_b32 v114, v12'] + oproj_addr[20:]
        slots = [3, 5, 8, 9, 11, 13, 14, 15, 16, 17, 18, 22]
        assert len(fill) == len(slots)
        mini(0, {g_: [f_] for g_, f_ in zip(slots, fill)}, False, True, False)
        branch('C')
        stamp(39)
        b1 = S(1)
        E1 = [exp(b1 + e) for e in range(16)]
        C1 = [cvt(d >> 2, d & 3, b1 + 2 * d) for d in range(8)]
        for e in range(8):
            a(E1[e])
            if e < 7: a(vread(9 + e, 1))
            if e == 5: a('s_waitcnt lgkmcnt(6)')
        emit(C1[:4])
        emit([E1[8], E1[9]])
        a(rsum(0, 0))
        for t in range(8):
            if t == 4: a('s_waitcnt lgkmcnt(0)')
            a(pv(t, 0, 0))
            if t < 6: a(E1[10 + t])
            if t == 6: emit(C1[4:6])
            if t == 7: emit(C1[6:])
        a(f'v_rcp_f32 v14, v{LA(0)}')
        a('s_nop 0')
        a(rsum(1, 1))
        pend = sum([norm(tp, 0) for tp in range(4)], [])
        for t in range(8):
            a(pv(t, 1, 1))
            if t == 4: a(f'v_rcp_f32 v6, v{LA(1)}')
            emit(pend[:cfg.nrm]); del pend[:cfg.nrm]
        stamp(5)
        emit(pend)
        for tp in range(4): emit(norm(tp, 1))
    else:
        a('L_last:')
        if cfg.hs0:
            a(f's_cmp_eq_u32 {sWAVE}, 0\ns_cbranch_scc0 L_nock\nbuffer_load_dword v5, v30, {DBG_}, 0 offen sc1\nL_nock:')
        step('DE', True)
        a('L_tail:')
        b0, b1 = S(0), S(1)
        vOW = ['v11', 'v16', 'v17', 'v18']
        fill = [f'v_xor_b32 {vOW[h]}, {h << 11}, v11' for h in range(1, 4)] + \
               ['v_mov_b32 v112, v28', 'v_add_u32 v113, 15360, v28', 'v_mov_b32 v114, v12'] + oproj_addr[20:]
        for j in range(16):
            a(qk(1, j)); emit([exp(b0 + j)])
        emit(fill[:7]); del fill[:7]
        def take(n):
            l = fill[:n]; del fill[:n]; return l
        emit(maxchain(1))
        a(cmp_)
        branch('C')
        emit([cvt(0, d, b0 + 2 * d) for d in range(4)])
        stamp(38)
        a('s_barrier   ; k16: V15 landed')
        stamp(39)
        L = Lds()
        for j in range(14): L.rd(vread(j, 0), ('a', j))
        emit([cvt(1, d, b0 + 8 + 2 * d) for d in range(4)])
        E1 = [exp(b1 + e) for e in range(16)]
        emit(E1[:2])
        for t in range(8):
            if t % 2 == 0: L.need(('a', 2 * t + 3))
            a(pv(t, 0, 0))
            if t < 2: L.rd(vread(14 + t, 0), ('a', 14 + t))
            a(E1[2 + t])
        a(rsum(0, 0)); a(E1[10])
        C2 = [cvt(2, d, b1 + 2 * d) for d in range(4)]; C3 = [cvt(3, d, b1 + 8 + 2 * d) for d in range(4)]
        fl = [[E1[11]], [E1[12]], [E1[13]], [E1[14]], [E1[15]], C2[:2], C2[2:], C3[:2]]
        for t in range(8):
            a(pv(t, 1, 1))
            if t == 7: L.need(('b', 1))
            L.rd(vread(2 * t, 1), ('b', 2 * t)); L.rd(vread(2 * t + 1, 1), ('b', 2 * t + 1))
            emit(fl[t])
        a(rsum(1, 1)); emit(C3[2:])
        a(rsum(0, 2)); emit(take(2))
        a(rsum(1, 3)); emit(take(2))
        def norm(tp, u):
            inv = ('v[14:15]', 'v[6:7]')[u]; dst = 64 + 8 * tp + 4 * u
            l = []
            for k in range(2):
                src = OT(2 * tp + k, u)
                l += [f'v_pk_mul_f32 v[{src+e}:{src+e+1}], v[{src+e}:{src+e+1}], {inv} op_sel_hi:[1,0]' for e in (0, 2)]
            for k in range(2):
                src = OT(2 * tp + k, u)
                l += [f'v_cvt_pk_bf16_f32 v{dst+2*k+d}, v{src+2*d}, v{src+2*d+1}' for d in range(2)]
            return l + [f'ds_write_b128 {vOW[tp]}, v[{dst}:{dst+3}] offset:{OBASE + 256*u}']
        pend = []
        for t in range(8):
            if t % 2 == 0: L.need(('b', 2 * t + 3))
            if t == 2: emit([f'v_rcp_f32 v14, v{LA(0)}', f'v_rcp_f32 v6, v{LA(1)}'])
            if t == 3: pend += norm(0, 0)[:2]
            if t == 4: pend += norm(0, 0)[2:] + norm(0, 1)
            if t == 6: pend += norm(1, 0) + norm(1, 1)
            for u in range(2):
                a(pv(t, u, 2 + u))
                if t < 2: emit(take(1) or ['s_nop 0'])
                emit(pend[:cfg.nrm]); del pend[:cfg.nrm]
        assert not fill
        stamp(5)
        emit(pend)
        for tp in (2, 3):
            emit(norm(tp, 0) + norm(tp, 1))
    if cfg.hs0:
        a(f'''
        s_mov_b32 {sSPIN}, 0
        s_waitcnt vmcnt(0)
        L_chk:
        v_cmp_gt_u32 vcc, 8, v5
        s_cbranch_vccz L_chkd
        s_add_u32 {sSPIN}, {sSPIN}, 1
        s_cmp_gt_u32 {sSPIN}, 0x40000
        s_cbranch_scc1 L_chkd
        buffer_load_dword v5, v30, {DBG_}, 0 offen sc1
        s_waitcnt vmcnt(0)
        s_branch L_chk
        L_chkd:
        ''')
    if 'c' in cfg.align: a('.p2align 6')
    if 'C' in cfg.align: a('.p2align 6\ns_nop 0')
    a('s_waitcnt lgkmcnt(0)')
    a('s_barrier   ; Bo')
    stamp(6)
    AF = lambda i, nb: (32, 40, 96)[i % 3] + 4 * nb
    BF = lambda i: 48 + 4 * (i & 3)
    PA = lambda nb: 64 + 16 * nb
    PK = lambda idx, nb: 128 + 8 * idx + 4 * nb
    sWO = sCNT
    def w_pre(m):
        return [f's_add_u32 m0, {sWL}, {WSLOT[m % 8]*SLOT}', f's_xor_b32 {sWO}, {sWX}, {woff(m)}']
    def w_dma(hf, so=sT0):
        return f'buffer_load_dwordx4 {vWD[hf]}, {WO_}, {so} offen offset:{1024*hf}{cfg.wo_pol} lds'
    def o_mfma(idx, nb, areg, first=False):
        c = '0' if first else f'v[{PA(nb)}:{PA(nb)+15}]'
        return f'v_mfma_f32_32x32x16_bf16 v[{PA(nb)}:{PA(nb)+15}], v[{areg}:{areg+3}], v[{BF(idx)}:{BF(idx)+3}], {c}'
    bread = lambda idx: f'ds_read_b128 v[{BF(idx)}:{BF(idx)+3}], {vOA} offset:{1024*idx}'
    def areads(idx, m):
        sl = WSLOT[m % 8]
        return [f'ds_read_b64_tr_b16 v[{AF(idx,nb)+2*u}:{AF(idx,nb)+2*u+1}], {vWA(sl // 4, nb)} offset:{(sl % 4)*SLOT + 1024*u}'
                for nb in range(2) for u in range(2)]
    if cfg.cprio: a(f's_setprio {cfg.cprio}')
    emit(w_pre(7))
    emit([bread(0)] + areads(0, 0))
    emit([w_dma(0, sWO), w_dma(1, sWO)])
    emit([bread(1)] + areads(1, 1))
    for m in range(32):
        if m in (4, 8, 12, 16, 20, 24, 28): stamp(47 + m // 4)
        if m + 2 < 32:
            if m + 2 >= 7: a(f's_waitcnt vmcnt({2*(min(31, m + 7) - (m + 2))})')
            emit([bread(m + 2)] + areads(m + 2, m + 2))
        dma = m + 8 < 32
        if dma: emit(w_pre(m + 8))
        a(f's_waitcnt lgkmcnt({5 * min(2, 31 - m)})')
        a(o_mfma(m, 0, AF(m, 0), m == 0))
        if dma: a(w_dma(0, sWO))
        a(o_mfma(m, 1, AF(m, 1), m == 0))
        if dma: a(w_dma(1, sWO))
    def handoff(tg):
        a(f'L_pub{tg}:')
        stamp(7)
        if cfg.bf16p:
            a(f"""
            s_lshl_b32 {sT0}, {sG}, 3
            s_add_u32 {sT1}, {sT0}, {sWAVE}
            s_lshl_b32 {sT2}, {sT1}, 3
            s_add_u32 {sT2}, {sT2}, {sHKV}
            s_lshl_b32 {sT2}, {sT2}, 12
            s_lshl_b32 {sT1}, {sT1}, 7
            s_add_u32 {sT1}, {sT1}, {FLAG_OFF}
            s_lshl_b32 {sC}, {sHKV}, 2
            s_add_u32 {sT1}, {sT1}, {sC}
            s_add_u32 {sT0}, {sT0}, {sHKV}        ; g*8 + own
            v_mov_b32 v10, 1
            v_mov_b32 v11, 0
            """)
            for pc in range(4):
                for d in range(4):
                    a(f'v_cvt_pk_bf16_f32 v{96+4*pc+d}, v{64+8*pc+2*d}, v{65+8*pc+2*d}')
                a(f'buffer_store_dwordx4 v[{96+4*pc}:{99+4*pc}], v4, {WS_}, {sT2} offen offset:{1024*pc} sc1')
            a(f"""
            v_lshlrev_b32 v12, 2, v0
            s_lshl_b32 {sCHK}, {sT0}, 7
            s_add_u32 {sCHK}, {sCHK}, {FLAG_OFF}
            s_lshl_b32 {sT0}, {sT0}, 15
            s_lshr_b32 {sC}, {sWAVE}, 1
            s_lshl_b32 {sT2}, {sC}, 10
            s_add_u32 {sT0}, {sT0}, {sT2}
            s_and_b32 {sT2}, {sWAVE}, 1
            s_lshl_b32 {sCNT}, {sT2}, 8
            s_add_u32 {sT0}, {sT0}, {sCNT}
            v_bfe_u32 v14, v0, 4, 1
            v_lshlrev_b32 v15, 4, v2
            v_lshl_add_u32 v15, v14, 9, v15
            v_lshl_add_u32 v15, v3, 12, v15
            v_lshlrev_b32 v20, 11, v2
            v_lshl_add_u32 v20, v14, 4, v20
            v_lshl_add_u32 v20, v3, 3, v20
            s_lshl_b32 {sC}, {sC}, 5
            s_lshl_b32 {sT2}, {sT2}, 15
            s_add_u32 {sC}, {sC}, {sT2}
            s_waitcnt vmcnt(0)
            s_mov_b64 exec, 1
            buffer_store_dword v10, v11, {WS_}, {sT1} offen sc1
            s_mov_b64 exec, 0xff
            s_mov_b32 {sSPIN}, 0
            """)
            stamp(56)
            if cfg.poll2:
                a(f"""
                buffer_load_dword v13, v12, {WS_}, {sCHK} offen sc1
                L_poll{tg}:
                buffer_load_dword v16, v12, {WS_}, {sCHK} offen sc1
                s_waitcnt vmcnt(1)
                v_cmp_ne_u32 vcc, 1, v13
                s_cbranch_vccz L_polled{tg}
                buffer_load_dword v13, v12, {WS_}, {sCHK} offen sc1
                s_add_u32 {sSPIN}, {sSPIN}, 1
                s_cmp_gt_u32 {sSPIN}, 0x40000
                s_cbranch_scc1 L_polled{tg}
                s_waitcnt vmcnt(1)
                v_cmp_ne_u32 vcc, 1, v16
                s_cbranch_vccnz L_poll{tg}
                L_polled{tg}:
                s_mov_b64 exec, -1
                """)
            else:
                if cfg.poll1 >= 0: a(f's_cmp_eq_u32 {sWAVE}, {cfg.poll1}\ns_cbranch_scc0 L_polled{tg}')
                a(f"""
                L_poll{tg}:
                buffer_load_dword v13, v12, {WS_}, {sCHK} offen sc1
                s_add_u32 {sSPIN}, {sSPIN}, 1
                s_cmp_gt_u32 {sSPIN}, 0x40000
                s_cbranch_scc1 L_polled{tg}
                s_waitcnt vmcnt(0)
                v_cmp_ne_u32 vcc, 1, v13
                """)
                if cfg.psleep:
                    a(f's_cbranch_vccz L_polled{tg}\ns_sleep {cfg.psleep}\ns_branch L_poll{tg}')
                else:
                    a(f's_cbranch_vccnz L_poll{tg}')
                a(f'L_polled{tg}:\ns_mov_b64 exec, -1')
                if cfg.poll1 >= 0: a('s_barrier')
            stamp(57)
            for p in range(4):
                a(f'buffer_load_dwordx4 v[{96+4*p}:{99+4*p}], v15, {WS_}, {sT0} offen sc1')
                if p < 3: a(f's_add_u32 {sT0}, {sT0}, 8192')
            a(f's_mov_b32 {sT1}, 0xffff0000')
            for p in range(4):
                a(f's_waitcnt vmcnt({3-p})')
                for d in range(4):
                    lo, hi = (64 + 2 * d, 65 + 2 * d) if p == 0 else (72 + 2 * d, 73 + 2 * d)
                    a(f'v_lshlrev_b32 v{lo}, 16, v{96+4*p+d}')
                    a(f'v_and_b32 v{hi}, {sT1}, v{96+4*p+d}')
                if p:
                    for e in range(8):
                        a(f'v_add_f32 v{64+e}, v{64+e}, v{72+e}')
            a('s_nop 0')
            for e in range(4):
                a(f'v_permlane32_swap_b32 v{64+e}, v{68+e}')
            for e in range(4):
                a(f'v_add_f32 v{64+e}, v{64+e}, v{68+e}')
            a(f"""
            v_cvt_pk_bf16_f32 v96, v64, v65
            v_cvt_pk_bf16_f32 v97, v66, v67
            buffer_store_dwordx2 v[96:97], v20, {OUT_}, {sC} offen{cfg.out_pol}
            """)
        else:
            a(f'''
            s_lshl_b32 {sT0}, {sG}, 3
            s_add_u32 {sT1}, {sT0}, {sWAVE}
            s_lshl_b32 {sT2}, {sT1}, 3
            s_add_u32 {sT2}, {sT2}, {sHKV}
            s_lshl_b32 {sT2}, {sT2}, 13
            s_add_u32 {sCNT}, {sT2}, 4096
            s_lshl_b32 {sT1}, {sT1}, 7
            s_add_u32 {sT1}, {sT1}, {FLAG_OFF}
            s_lshl_b32 {sC}, {sHKV}, 2
            s_add_u32 {sT1}, {sT1}, {sC}
            s_add_u32 {sT0}, {sT0}, {sHKV}        ; g*8 + own
            v_mov_b32 v10, 1
            v_mov_b32 v11, 0
            v_lshlrev_b32 v12, 2, v0
            ''')
            for pc in range(8):
                so = sT2 if pc < 4 else sCNT
                a(f'buffer_store_dwordx4 v[{64+4*pc}:{67+4*pc}], v4, {WS_}, {so} offen offset:{1024*(pc % 4)} sc1')
            a(f'''
            s_lshl_b32 {sCHK}, {sT0}, 7
            s_add_u32 {sCHK}, {sCHK}, {FLAG_OFF}
            s_lshl_b32 {sT0}, {sT0}, 16
            s_lshl_b32 {sC}, {sWAVE}, 10
            s_add_u32 {sT0}, {sT0}, {sC}
            s_waitcnt vmcnt(0)
            s_mov_b64 exec, 1
            buffer_store_dword v10, v11, {WS_}, {sT1} offen sc1
            s_mov_b64 exec, 0xff
            s_mov_b32 {sSPIN}, 0
            ''')
            stamp(56)
            a(f'''
            L_poll{tg}:
            buffer_load_dword v13, v12, {WS_}, {sCHK} offen sc1
            s_add_u32 {sSPIN}, {sSPIN}, 1
            s_cmp_gt_u32 {sSPIN}, 0x40000
            s_cbranch_scc1 L_polled{tg}
            s_waitcnt vmcnt(0)
            v_cmp_ne_u32 vcc, 1, v13
            s_cbranch_vccnz L_poll{tg}
            L_polled{tg}:
            s_mov_b64 exec, -1
            ''')
            stamp(57)
            for p in range(8):
                a(f'buffer_load_dwordx4 v[{96+4*p}:{99+4*p}], v4, {WS_}, {sT0} offen sc1')
                if p < 7: a(f's_add_u32 {sT0}, {sT0}, 8192')
            a(f'''
            v_and_b32 v20, 31, v0
            v_lshlrev_b32 v20, 11, v20
            v_lshl_add_u32 v20, v3, 4, v20
            s_lshr_b32 {sT1}, {sWAVE}, 1
            s_lshl_b32 {sT1}, {sT1}, 5
            s_and_b32 {sT2}, {sWAVE}, 1
            s_lshl_b32 {sT2}, {sT2}, 3
            s_add_u32 {sT1}, {sT1}, {sT2}
            ''')
            for p in range(1, 8):
                a(f's_waitcnt vmcnt({7-p})')
                for d in range(4):
                    a(f'v_add_f32 v{96+d}, v{96+d}, v{96+4*p+d}')
            a(f'''
            v_cvt_pk_bf16_f32 v96, v96, v97
            v_cvt_pk_bf16_f32 v97, v98, v99
            buffer_store_dwordx2 v[96:97], v20, {OUT_}, {sT1} offen
            ''')
        if cfg.stamps:
            stamp(58)
            a('s_waitcnt vmcnt(0)')
            stamp(59); cstamp(61)
            a(f'''
            s_add_u32 s28, s28, {STAMP_OFF}
            s_addc_u32 s29, s29, 0
            s_lshl_b32 {sT0}, s2, 3
            s_add_u32 {sT0}, {sT0}, {sWAVE}
            s_lshl_b32 {sT0}, {sT0}, 8
            v_lshl_add_u32 v13, v0, 2, {sT0}
            global_store_dword v13, {vSTAMP}, s[28:29]
            ''')
    if 'd' in cfg.lay:
        handoff('C')
        a('s_endpgm')
    else:
        a('s_branch L_pub')

    a('L_helper:')
    if cfg.defer == 1: a(late_srd)
    issued = []
    R0 = 4 if cfg.wq6 else 6
    RB = lambda j, jj: 128 + 16 * (j - R0) + 4 * jj
    def kv_issue(j, inreg=False):
        if not inreg: a(f's_add_u32 m0, {sBASE}, {slot_of(j)*SLOT}')
        if cfg.kvrot:
            a(f's_add_u32 {sT0}, s86, {(j//2)*SLOT}')
            a(f's_and_b32 {sT0}, {sT0}, 0x3ffff')
        else:
            a(f's_add_u32 {sT0}, {sBASE}, {(j//2)*SLOT}')
        for jj in range(4):
            va, srd = (vKD[jj], K_) if j % 2 == 0 else (vVD[jj & 1], V_)
            if inreg:
                a(f'buffer_load_dwordx4 v[{RB(j,jj)}:{RB(j,jj)+3}], {va}, {srd}, {sT0} offen offset:{1024*jj}{cfg.kv_pol}')
            else:
                a(f'buffer_load_dwordx4 {va}, {srd}, {sT0} offen offset:{1024*jj}{cfg.kv_pol} lds')
        issued.append((('kv', j), 4))
    def rb_write(j):
        for jj in range(4):
            a(f'ds_write_b128 {("v13", "v11", "v10")[slot_of(j) // 4]}, v[{RB(j,jj)}:{RB(j,jj)+3}] offset:{(slot_of(j) % 4)*SLOT + 1024*jj}')
    def warm(lab0, lab1, tagn):
        if not cfg.warm: return
        lab = a.label('L_pc')
        a(f'''
        s_getpc_b64 s[80:81]
        {lab}:
        s_lshl_b32 {sT0}, {sB}, 2
        s_add_u32 {sT0}, {sT0}, {sHW}
        s_mul_i32 {sT0}, {sT0}, ((({lab1} - {lab0}) / 64 + 63) / 64) * 64
        v_lshl_add_u32 v32, v0, 6, {sT0}
        v_min_u32 v32, {lab1} - {lab0} - 4, v32
        s_add_u32 s80, s80, {lab0} - {lab}
        s_addc_u32 s81, s81, -1
        v_mov_b32 v33, s81
        v_add_co_u32 v32, vcc, s80, v32
        s_nop 1
        v_addc_co_u32 v33, vcc, 0, v33, vcc
        v_cmp_gt_u32 vcc, (({lab1} - {lab0}) / 64 + 63) / 64, v0
        s_and_saveexec_b64 s[82:83], vcc
        global_load_dword v34, v[32:33], off
        s_mov_b64 exec, s[82:83]
        ''')
        issued.append((('warm', tagn), 1))
    def w_resident(i):
        for own in range(2):
            a(f's_xor_b32 {sT0}, {sWX}, {woff(i + NP * own)}')
            a(f's_add_u32 m0, {sWL}, {WSLOT[i]*SLOT - (0 if own else 4 * 2048)}')
            a(f's_sub_u32 {sT0}, {sT0}, {0 if own else 512}')
            emit([w_dma(0), w_dma(1)])
        issued.append((('w', i), 4))
    def pw_issue(g):
        for j in range(2):
            a(f's_add_u32 m0, {sBASE}, {(8 + (g & 1))*SLOT + 2048*j}')
            a(f's_xor_b32 {sT0}, {sWX}, {woff(2*g + j)}')
            emit([w_dma(0), w_dma(1)])
        issued.append((('pw', g), 4))
    def pw_read(g):
        for j in range(2):
            for nb in range(2):
                for u in range(2):
                    r = PK(2 * g + j, nb) + 2 * u
                    a(f'ds_read_b64_tr_b16 v[{r}:{r+1}], v{122 + nb} offset:{(g & 1)*SLOT + 2048*j + 1024*u}')
    def smem_pref(lo, hi):
        if lo >= hi: return
        if lo == 0:
            a(f's_lshl_b32 {sT0}, {sROT}, 14\ns_lshl_b32 {sT1}, {sHW}, 13\ns_add_u32 {sT0}, {sT0}, {sT1}')
            a(f's_add_u32 s88, s52, {sT0}\ns_addc_u32 s89, s53, 0')
        for i in range(lo, hi):
            a(f's_load_dword s{90 + i % 8}, s[88:89], {(i >> 3) * 1024 + 512 + (i & 7) * 64}')
    def wait_for(*items):
        names = [x[0] for x in issued]
        k = max(names.index(it) for it in items)
        a(f's_waitcnt vmcnt({sum(x[1] for x in issued[k+1:])})')
    warm('L_start', 'L_end', 0)
    if not cfg.hs0:
        a(f'''
        s_mov_b32 {sC}, 99
        s_mov_b32 {sCHK}, 99
        s_lshl_b32 {sT0}, {sG}, 3
        v_mov_b32 v30, {sT0}
        v_mov_b32 v29, 8
        s_cmp_eq_u32 {sWAVE}, 4
        s_cbranch_scc0 L_noclear
        s_add_u32 {sT0}, {sT0}, {sHKV}
        s_lshl_b32 {sT0}, {sT0}, 7
        s_add_u32 {sT0}, {sT0}, {FLAG_OFF}
        s_and_b32 {sC}, {sB}, 3
        s_add_u32 {sC}, {sC}, 1
        s_add_u32 {sCHK}, {sC}, 9
        v_mov_b32 v27, 0
        v_mov_b32 v28, 1
        v_lshlrev_b32 v26, 2, v0
        s_mov_b64 exec, 0xff
        buffer_store_dword v27, v26, {WS_}, {sT0} offen sc1
        s_mov_b64 exec, -1
        L_noclear:
        ''')
    if cfg.hprio != 1: a(f's_setprio {cfg.hprio}')
    need = lambda k: 0 if k == 0 else min(31, 2 * k)
    free_at = lambda it: it // 2 + 1 if it % 2 == 0 else it // 2 + 2
    slot_free = lambda j: 0 if j < 10 else free_at(j - 10 if j < 18 else j - 8)
    MERGE = 17
    base_issued = list(issued)
    late_addr = oproj_addr + [f'v_add_u32 v13, {sBASE}, v4', f'v_add_u32 v11, {sBASE}, v4', f'v_add_u32 v10, {8*SLOT}, v11', f'v_add_u32 v11, {4*SLOT}, v11',
                              f'v_add_u32 v122, {sBASE}, v121', f'v_add_u32 v122, {8*SLOT}, v122', 'v_xor_b32 v123, 64, v122']
    if 'b' not in cfg.lay: a(f's_cmp_eq_u32 {sGRP}, 0\ns_cbranch_scc0 L_hkv')
    else: assert cfg.near_kv and cfg.hs0 and cfg.hprio == 1 and not cfg.warm
    EP_ = [(16, 20), (104, 108), (24, 124), (8, 12)]
    def fly(grp, k):
        l = cfg.g1_list if grp else cfg.g0_list
        if l: return int(l[min(k, len(l) - 1)])
        return cfg.g1_fly if grp else cfg.g0_fly if k < cfg.g0_sw else cfg.g0_fly2 if k < cfg.g0_sw2 else 4
    def barrier_step(k, grp, st):
        gp = k - 2 - cfg.park0
        if 0 <= gp < cfg.park:
            wait_for(('kv', need(k)), ('pw', gp))
            pw_read(gp)
            a('s_waitcnt lgkmcnt(0)')
        else:
            wait_for(('kv', need(k)))
        if grp == 1 and 1 <= k <= 5: a('s_waitcnt lgkmcnt(0)')
        if cfg.stamps == 4 and k in (14, 15, 16): stamp(33 + k - 14)
        if k == 16 and 'c' in cfg.lay:
            names = [x[0] for x in issued]
            w3 = sum(x[1] for x in issued[names.index(('w', 3)) + 1:])
            st['w3'] = w3
            assert max(cfg.w_at[:4]) < 16 and not cfg.w_at0
            if grp == 0:
                a('s_branch L_hmerge'); return
            a('L_hmerge:')
        a(f's_barrier   ; k{k}')
        stamp(8 + k)
        if 2 <= k <= 15: cstamp(23 + k)
        if grp == 1 and k == 0:
            a('s_setprio 0')
            for j in range(R0 + cfg.rb_pre, min(10, cfg.g1_pre)): rb_write(j)
            a(f's_setprio {cfg.hprio}')
        late_w = [j for j in range(10, cfg.g1_pre) if grp == 1 and max(slot_free(j), j - 9) == k]
        if 0 <= k - cfg.park0 < cfg.park: pw_issue(k - cfg.park0)
        if k and k == cfg.wtouch[grp]:
            for i in range(2):
                a(f's_xor_b32 {sT0}, {sWX}, {woff(i)}')
                a(f's_sub_u32 {sT0}, {sT0}, 512')
                for hf in range(2):
                    r = 32 + 8 * i + 4 * hf
                    a(f'buffer_load_dwordx4 v[{r}:{r+3}], {vWD[hf]}, {WO_}, {sT0} offen offset:{1024*hf}{cfg.wo_pol}')
            issued.append((('wt', 0), 4))
        while st['nxt'] < 32:
            j = st['nxt']
            if slot_free(j) > k or j > need(k + 1) + fly(grp, k): break
            kv_issue(j); st['nxt'] += 1
        if k == 16:
            if 'c' in cfg.lay: a(f's_waitcnt vmcnt({min(st["w3"], w3g0[0])})')
            else: wait_for(('w', 3))
            for i in range(4):
                emit([f'ds_read_b64_tr_b16 v[{EP_[i][nb]+2*u}:{EP_[i][nb]+2*u+1}], {vWA(WSLOT[i] // 4, nb)} offset:{(WSLOT[i] % 4)*SLOT + 1024*u}'
                      for nb in range(2) for u in range(2)])
                if i == 2: a('s_waitcnt lgkmcnt(8)')
        if late_w:
            a('s_setprio 0')
            for j in late_w: rb_write(j)
            a(f's_setprio {cfg.hprio}')
        for wi, at in enumerate(cfg.w_at if grp or not cfg.w_at0 else cfg.w_at0):
            if at == k: w_resident(wi)
        if cfg.stamps == 4 and k in (13, 14, 15): stamp(30 + k - 13)
        if k == 16:
            a('s_waitcnt lgkmcnt(0)')
        if grp == 0 and k < 4: smem_pref(min(cfg.smem[0], 32 + 8 * k), min(cfg.smem[0], 40 + 8 * k))
        if k == 11: warm('L_last', 'L_end', 1)
        if 1 <= k <= 4 and not cfg.hs0:
            lab = a.label('L_na')
            a(f's_cmp_eq_u32 {sC}, {k}\ns_cbranch_scc0 {lab}\ns_mov_b64 exec, 1')
            a(f'buffer_atomic_add v28, v30, {DBG_}, 0 offen sc1\ns_mov_b64 exec, -1\n{lab}:')
        if 10 <= k <= 13 and not cfg.hs0:
            lab = a.label('L_nc')
            a(f's_cmp_eq_u32 {sCHK}, {k}\ns_cbranch_scc0 {lab}')
            a(f'buffer_load_dword v29, v30, {DBG_}, 0 offen sc1\n{lab}:')
    states = []; w3g0 = []
    for grp in (0, 1):
        issued[:] = base_issued
        st = {}
        if grp == 0:
            for j in range(cfg.g0_pre): kv_issue(j)
            emit(late_addr)
            a(f's_waitcnt vmcnt({sum(x[1] for x in issued)})')
            a('s_barrier   ; Bx')
            stamp(1)
            a('s_barrier   ; Bx2')
            a('s_barrier   ; Bw')
            smem_pref(0, min(32, cfg.smem[0]))
            a('s_barrier   ; Bk')
            top = min(6, max(5, cfg.g0_pre + 4))
            for j in range(cfg.g0_pre, min(top, cfg.g0_pre + 3)): kv_issue(j)
            a('s_barrier   ; Bq')
            for j in range(cfg.g0_pre + 3, top): kv_issue(j)
            st['nxt'] = top
            stamp(2)
        else:
            a('L_hkv:')
            if 'b' in cfg.lay and cfg.defer == 1: a(late_srd)
            if cfg.near_kv:
                issued[:] = [(('kv', j), 4) for j in range(cfg.g1_first)] + base_issued
            else:
                for j in range(cfg.g1_first): kv_issue(j)
            emit(late_addr)
            a(f's_waitcnt vmcnt({sum(x[1] for x in issued)})')
            a('s_barrier   ; Bx')
            stamp(1)
            for j in range(cfg.g1_first, 4): kv_issue(j)
            a('s_barrier   ; Bx2')
            for j in range(4, cfg.g1_pre): kv_issue(j, j >= R0)
            stamp(2)
            a('s_barrier   ; Bw')
            smem_pref(0, cfg.smem[1])
            a('s_barrier   ; Bk')
            a('s_waitcnt vmcnt(0)')
            a('s_barrier   ; Bq')
            for j in range(R0, min(R0 + cfg.rb_pre, cfg.g1_pre)): rb_write(j)
            st['nxt'] = cfg.g1_pre
        for k in range(MERGE):
            barrier_step(k, grp, st)
        assert st['nxt'] == 32
        if 'c' in cfg.lay:
            if grp == 0: w3g0.append(st['w3'])
        elif grp == 0: a('s_branch L_hmerge')
    if 'c' not in cfg.lay: a('L_hmerge:')
    for k in range(MERGE, 17):
        barrier_step(k, 1, st)
    EP = [(16, 20), (104, 108), (24, 124), (8, 12)]
    def wread(dst, slot):
        return [f'ds_read_b64_tr_b16 v[{dst[nb]+2*u}:{dst[nb]+2*u+1}], {vWA(slot // 4, nb)} offset:{(slot % 4)*SLOT + 1024*u}'
                for nb in range(2) for u in range(2)]
    def own_refill(slot, idx):
        return [f's_add_u32 m0, {sWL}, {slot*SLOT}', f's_xor_b32 {sWO}, {sWX}, {woff(idx)}', w_dma(0, sWO), w_dma(1, sWO)]
    assert NP == 16 and cfg.early
    for i in range(4): emit(own_refill(WSLOT[i], 23 + i))
    def hs_check(cnt):
        a(f"""
        s_mov_b32 {sSPIN}, 0
        s_waitcnt vmcnt({cnt})
        L_chk:
        v_cmp_gt_u32 vcc, 8, v29
        s_cbranch_vccz L_chkd
        s_add_u32 {sSPIN}, {sSPIN}, 1
        s_cmp_gt_u32 {sSPIN}, 0x40000
        s_cbranch_scc1 L_chkd
        buffer_load_dword v29, v30, {DBG_}, 0 offen sc1
        s_waitcnt vmcnt(0)
        s_branch L_chk
        L_chkd:
        """)
    if cfg.hs0: a('s_waitcnt vmcnt(8)')
    else: hs_check(8)
    a('s_barrier   ; Bo')
    stamp(6)
    W = WSLOT
    seq = [(20, W[4]), (21, W[5]), (22, W[6]), (23, W[0])] + [(i, None) for i in range(20)] + \
          [(24, W[1]), (25, W[2]), (26, W[3]), (27, W[7]), (28, W[4]), (29, W[5]), (30, W[6]), (31, W[0])]
    HE = cfg.hearly
    he = max(HE, 0)
    seq = seq[:he] + seq[4:24] + seq[he:4] + seq[24:]
    refills = [(27, W[7]), (28, W[4]), (29, W[5]), (30, W[6]), (31, W[0])]
    vm_order = [23, 24, 25, 26]
    BFs = lambda n: 48 + 4 * (n & 3)
    AFs = lambda n: ((32, 36), (40, 44), (96, 100))[n % 3]
    def reads(n):
        idx, slot = seq[n]
        l = []
        if idx >= 23:
            l.append(f's_waitcnt vmcnt({2*(len(vm_order) - 1 - vm_order.index(idx))})')
        l.append(f'ds_read_b128 v[{BFs(n)}:{BFs(n)+3}], {vOA} offset:{1024*idx}')
        if slot is not None: l += wread(AFs(n), slot)
        return l
    def refill1():
        i2, sl = refills.pop(0)
        emit(own_refill(sl, i2)); vm_order.append(i2)
    cnt = lambda n: 0 if n >= 32 else (5 if seq[n][1] is not None else 1)
    if HE < 0: a('s_setprio 0')
    emit(reads(0)); emit(reads(1))
    if HE >= 0: refill1()
    if HE == 0: a('s_setprio 0')
    for n in range(32):
        idx, slot = seq[n]
        if n in (4, 8, 12, 16, 20, 24, 28): stamp(47 + n // 4)
        if n + 2 < 32: emit(reads(n + 2))
        a(f's_waitcnt lgkmcnt({cnt(n + 1) + cnt(n + 2)})')
        for nb in range(2):
            areg = AFs(n)[nb] if slot is not None else (PK(idx, nb) if idx < 16 else EP[idx - 16][nb])
            c = '0' if n == 0 else f'v[{PA(nb)}:{PA(nb)+15}]'
            a(f'v_mfma_f32_32x32x16_bf16 v[{PA(nb)}:{PA(nb)+15}], v[{areg}:{areg+3}], v[{BFs(n)}:{BFs(n)+3}], {c}')
        if n < he: refill1()
        if n == he - 1: a('s_setprio 0')
        if n == cfg.hup: a('s_setprio 1')
        if n == cfg.hburst:
            assert 23 <= n <= 24
            while refills: refill1()

    handoff('')
    a('L_end:')
    a('s_endpgm')
    for tag, sb in (('A', 1), ('B', 0), ('C', 1)) if cfg.fin2 else (('A', 1), ('B', 0), ('D', 1), ('E', 0), ('C', 1)):
        a(f'L_slow{tag}:')
        emit(rowmax(sb, True))
        a('v_exp_f32 v15, -v14')
        a('v_exp_f32 v7, -v6')
        for u, (d, al) in enumerate((('v14', 'v15'), ('v6', 'v7'))):
            emit([f'v_sub_f32 v{S(sb)+8*u+r}, v{S(sb)+8*u+r}, {d}' for r in range(8)])
            if tag != 'C': emit([f'v_sub_f32 v{CB(u)+r}, v{CB(u)+r}, {d}' for r in range(4)])
            a(f'v_mul_f32 v{LA(u)}, v{LA(u)}, {al}')
            if tag == 'C' and not cfg.fin2:
                emit([f'v_mul_f32 v{S(0)+8*u+r}, v{S(0)+8*u+r}, {al}' for r in range(8)])
            for t in range(8):
                emit([f'v_mul_f32 v{OT(t,u)+r}, v{OT(t,u)+r}, {al}' for r in range(4)])
        a('s_nop 0')
        a(f's_branch L_back{tag}')

    return header([f'; @launch grid=(256,1,1) block=(512,1,1) lds={10*SLOT}']) + kernel_open(kn) + a.text() + descriptor(kn, 256, 102)

if __name__ == '__main__':
    out = sys.argv[1]
    cfg = Cfg()
    for kv in sys.argv[2:]:
        k, v = kv.split('=', 1)
        assert hasattr(cfg, k), k
        setattr(cfg, k, eval(v))
    t = gen(cfg)
    if cfg.nomfma:
        i0 = t.index('L_loop:'); i1 = t.index('L_tail:')
        t = t[:i0] + '\n'.join(('    s_nop 7' if 'v_mfma_f32_32' in l else l) for l in t[i0:i1].split('\n')) + t[i1:]
    n = hazard.check(t)
    open(out, 'w').write(t)
    print(out, 'hazards:', n, 'lines:', t.count('\n'))
```

```python
import sys, struct
from asmlib import *
import hazard

def f32(x):
    return struct.unpack('<I', struct.pack('<f', x))[0]

SLOT = 16384
FLAG_OFF = 16 * 1024 * 1024
STAMP_OFF = 128 * 1024 * 1024
OBASE = 3 * SLOT
WSLOT = [8, 9, 6, 7, 0, 1, 2, 5]

def slot_of(j):
    return j if j < 10 else (j - 10) % 8

class Cfg:
    stamps = 0
    wq_pol = ''
    wo_pol = ''
    x_pol = ''
    kv_pol = ' nt'
    w_at = (13, 14, 15, 15, 16, 16, 16)
    warm = False
    wq_first = 3
    stagger = 1
    g0_fly = 4
    g0_fly2 = 1
    g0_sw = 5
    g0_list = '3333311'
    g1_list = ''
    g0_sw2 = 99
    w_at0 = None
    g0_pre = 0
    g1_pre = 11
    hprio = 1
    park = 8
    poll2 = False
    hearly = 0
    rlate = 4
    fin2 = True
    lay = 'abcd'
    hup = 99
    defer = 2
    wtouch = (0, 0)
    hs0 = True
    hburst = 24
    hbp = 0
    poll1 = 0
    psleep = 0
    align = ''
    oprio = 3
    cprio = 0
    nrm = 4
    smem = (0, 0)
    wq6 = False
    rb_pre = 2
    out_pol = ''
    near_kv = True
    early = True
    park0 = 5
    T = 8.0
    kvrot = ''
    nomfma = False
    h_ahead = 4
    h_start = 5
    wq_both = False
    g1_first = 2
    g1_fly = 5
    bf16p = True

woff = lambda idx: ((idx >> 1) << 15) | ((idx & 1) << 13)

def gen(cfg):
    a = Asm()
    kn = NAME + '_kernel'
    def emit(l):
        for x in l: a(x)
    sWAVE, sHKV, sBR, sB, sG, sROT = 's30', 's31', 's32', 's33', 's34', 's35'
    K_, V_, X_, WQ_, WO_, WS_, OUT_, DBG_ = ['s[%d:%d]' % (36 + 4 * i, 39 + 4 * i) for i in range(8)]
    sT0, sT1, sT2, sCNT, sBASE, sLIM, sC, sCHK, sHW = 's68', 's69', 's70', 's71', 's72', 's73', 's74', 's75', 's76'
    sSPIN, sVB, sGRP, sWL, sWG, sWX = 's77', 's78', 's79', 's84', 's85', 's87'
    vSTAMP = 'v31'
    NP = 2 * cfg.park
    def stamp(i):
        if not cfg.stamps or (cfg.stamps == 2 and i not in (0, 59)) or (cfg.stamps == 3 and i not in (0, 8, 24, 6, 7, 56, 57, 58, 59)) or (cfg.stamps == 4 and i not in (0, 21, 22, 23, 24, 6, 59, 30, 31, 32, 33, 34, 35, 38)): return
        a('s_memrealtime s[100:101]')
        a('s_waitcnt lgkmcnt(0)')
        a(f'v_writelane_b32 {vSTAMP}, s100, {i}')
    def cstamp(i):
        if cfg.stamps != 1: return
        a('s_memtime s[100:101]')
        a('s_waitcnt lgkmcnt(0)')
        a(f'v_writelane_b32 {vSTAMP}, s100, {i}')

    LATE1 = f'''s_mov_b32 s54, 524288
    s_mov_b32 s55, 0x20000
    s_mov_b32 s58, {FLAG_OFF + 32768}
    s_mov_b32 s59, 0x20000
    s_mov_b32 s63, 0x20000
    s_mov_b32 s66, 256
    s_mov_b32 s67, 0x20000'''
    a(f'''
    L_start:
    {'s_memrealtime s[98:99]' if cfg.stamps else ''}
    s_cmp_ge_u32 s2, 256
    s_cbranch_scc1 L_end
    s_load_dwordx16 s[4:19], s[0:1], 0
    s_load_dwordx8 s[20:27], s[0:1], 64
    s_load_dwordx2 s[28:29], s[0:1], 96
    v_lshrrev_b32 v1, 6, v0
    v_and_b32 v0, 63, v0
    v_readfirstlane_b32 {sWAVE}, v1
    s_and_b32 {sHKV}, s2, 3
    s_lshl_b32 {sHKV}, {sHKV}, 1
    s_bfe_u32 {sBR}, s2, 0x10003
    s_add_u32 {sHKV}, {sHKV}, {sBR}
    s_bfe_u32 {sBR}, s2, 0x10002
    s_lshr_b32 {sB}, s2, 4
    s_lshl_b32 {sG}, {sBR}, 4
    s_add_u32 {sG}, {sG}, {sB}
    s_lshl_b32 {sROT}, {sB}, 1
    ''')
    a({0: f's_mov_b32 {sGRP}, 0', 1: f's_and_b32 {sGRP}, {sHKV}, 1', 2: f's_mov_b32 {sGRP}, 1'}[cfg.stagger])
    if cfg.stamps:
        a(f'v_mov_b32 {vSTAMP}, 0')
    a(f'''
    v_lshrrev_b32 v1, 4, v0          ; lane>>4
    v_and_b32 v2, 15, v0             ; lane&15
    v_lshrrev_b32 v3, 5, v0          ; h2
    v_lshlrev_b32 v4, 4, v0          ; lane*16
    s_lshl_b32 {sT0}, {sB}, 3
    s_add_u32 {sT0}, {sT0}, {sHKV}
    s_lshl_b32 {sT0}, {sT0}, 18
    s_lshl_b32 {sT1}, {sB}, 15
    s_lshl_b32 {sT2}, {sHKV}, 10
    s_mov_b32 s38, 262144
    s_mov_b32 s39, 0x20000
    s_mov_b32 s42, 262144
    s_mov_b32 s43, 0x20000
    s_mov_b32 s46, 32768
    s_mov_b32 s47, 0x20000
    s_sub_u32 s50, 0x400000, {sT2}
    s_mov_b32 s51, 0x20000
    {LATE1 if cfg.defer == 2 else ''}
    s_lshl_b32 {sWL}, {sWAVE}, 11
    s_lshl_b32 {sWG}, {sWAVE}, 7
    s_lshl_b32 {sWX}, {sROT}, 14
    s_add_u32 {sWX}, {sWX}, {sWG}
    s_waitcnt lgkmcnt(0)
    ''')
    if cfg.stamps: a(f'v_writelane_b32 {vSTAMP}, s98, 0')
    cstamp(60)
    a(f'''
    s_cmp_eq_u32 {sBR}, 0
    s_cselect_b32 s36, s6, s16
    s_cselect_b32 s37, s7, s17
    s_cselect_b32 s40, s8, s18
    s_cselect_b32 s41, s9, s19
    s_cselect_b32 s44, s4, s14
    s_cselect_b32 s45, s5, s15
    s_cselect_b32 s48, s10, s20
    s_cselect_b32 s49, s11, s21
    s_cselect_b32 s52, s12, s22
    s_cselect_b32 s53, s13, s23
    s_add_u32 s36, s36, {sT0}
    s_addc_u32 s37, s37, 0
    s_add_u32 s40, s40, {sT0}
    s_addc_u32 s41, s41, 0
    s_add_u32 s44, s44, {sT1}
    s_addc_u32 s45, s45, 0
    s_add_u32 s48, s48, {sT2}
    s_addc_u32 s49, s49, 0
    ''')
    late_srd = f'''
    s_mov_b32 s54, 524288
    s_mov_b32 s55, 0x20000
    s_mov_b32 s58, {FLAG_OFF + 32768}
    s_mov_b32 s59, 0x20000
    s_mov_b32 s63, 0x20000
    s_mov_b32 s66, 256
    s_mov_b32 s67, 0x20000
    s_lshl_b32 {sT0}, {sHKV}, 19
    s_add_u32 s52, s52, {sT0}
    s_addc_u32 s53, s53, 0
    s_mov_b32 s56, s28
    s_mov_b32 s57, s29
    s_lshl_b32 {sT0}, {sBR}, 10
    s_lshl_b32 {sT1}, {sHKV}, 7
    s_add_u32 {sT0}, {sT0}, {sT1}
    s_sub_u32 s62, 65536, {sT0}
    s_lshl_b32 {sT1}, {sB}, 16
    s_add_u32 {sT0}, {sT0}, {sT1}
    s_add_u32 s60, s24, {sT0}
    s_addc_u32 s61, s25, 0
    s_mov_b32 s64, s26
    s_mov_b32 s65, s27
    '''
    if cfg.defer == 2: late_srd = late_srd.split('s_mov_b32 s67, 0x20000')[1]
    if cfg.defer in (0, 2): a(late_srd)
    a(f'''
    s_cmp_lt_u32 {sWAVE}, 4
    s_cbranch_scc1 L_compute
    ''')
    a('s_setprio 1')
    vKD = ['v5', 'v6', 'v7', 'v8']; vVD = ['v9', 'v12']
    if 'a' in cfg.lay:
        a(f'''
        s_sub_u32 {sHW}, {sWAVE}, 4
        s_and_b32 {sT0}, {sHW}, 1
        s_lshl_b32 {sT0}, {sT0}, 2
        s_xor_b32 {sT0}, {sT0}, {sROT}
        s_lshl_b32 {sT0}, {sT0}, 5
        v_xor_b32 v16, {sT0}, v4
        s_lshl_b32 {sT1}, {sHW}, 13
        s_add_u32 m0, {sT1}, {4*SLOT}
        ''')
        for jq in range(8):
            if jq == 4: a(f's_add_u32 m0, {sT1}, {4*SLOT + 4096}\ns_add_u32 {sT1}, {sT1}, 4096')
            if jq < 7: a(f'v_xor_b32 v{17+jq}, {16*(jq+1)}, v16')
            a(f'buffer_load_dwordx4 v{16+jq}, {X_}, {sT1} offen offset:{1024*(jq % 4)}{cfg.x_pol} lds')
    else:
        a(f'''
        s_sub_u32 {sHW}, {sWAVE}, 4
        s_lshl_b32 {sT1}, {sROT}, 1
        s_lshl_b32 {sT2}, {sHW}, 3
        ''')
        for jq in range(8):
            a(f'''
            s_add_u32 {sT0}, {sT2}, {jq}
            s_and_b32 {sCNT}, {sT0}, 15
            v_xor_b32 v{16+jq}, {sCNT}, v0
            v_add_u32 v{16+jq}, {sT1}, v{16+jq}
            s_lshl_b32 {sT0}, {sT0}, 10
            v_and_b32 v{16+jq}, 63, v{16+jq}
            s_add_u32 m0, {sT0}, {4*SLOT}
            v_lshlrev_b32 v{16+jq}, 4, v{16+jq}
            buffer_load_dwordx4 v{16+jq}, {X_}, {sT0} offen{cfg.x_pol} lds
            ''')
    a(f'''
    v_xor_b32 v10, v2, v1
    v_lshlrev_b32 v10, 4, v10
    v_lshl_add_u32 v5, v1, 8, v10
    v_xor_b32 v6, 64, v5
    v_xor_b32 v7, 128, v5
    v_xor_b32 v8, 192, v5
    v_lshlrev_b32 v10, 1, v1
    v_xor_b32 v10, v10, v2
    v_lshlrev_b32 v10, 4, v10
    v_lshl_add_u32 v9, v1, 8, v10
    v_xor_b32 v12, 128, v9
    s_lshl_b32 {sBASE}, {sHW}, 12
    ''')
    if cfg.kvrot:
        a(cfg.kvrot.replace('B', sB).replace('H', sHKV).replace('R', sBR).replace(';', '\n'))
        a(f's_and_b32 s86, s86, 15\ns_lshl_b32 s86, s86, 14\ns_add_u32 s86, s86, {sBASE}')
    if cfg.near_kv:
        a(f's_cmp_eq_u32 {sGRP}, 0\ns_cbranch_scc1 L_helper')
        for j in range(cfg.g1_first):
            a(f's_add_u32 m0, {sBASE}, {j*SLOT}')
            a(f's_add_u32 {sT0}, {sBASE}, {(j//2)*SLOT}')
            for jj in range(4):
                va, srd = (vKD[jj], K_) if j % 2 == 0 else (vVD[jj & 1], V_)
                a(f'buffer_load_dwordx4 {va}, {srd}, {sT0} offen offset:{1024*jj}{cfg.kv_pol} lds')
    a('s_branch L_hkv' if 'b' in cfg.lay else 's_branch L_helper')
    a('L_compute:')

    vWD = ['v112', 'v113']
    vWA = lambda region, nb: f'v{114 + 2 * region + nb}'
    vOA, vPA0 = 'v120', 121
    oproj_addr = f'''
    v_lshrrev_b32 v112, 3, v0
    v_and_b32 v113, 7, v0
    v_bfe_u32 v114, v0, 4, 1
    v_lshlrev_b32 v114, 2, v114
    v_xor_b32 v113, v113, v114
    v_lshlrev_b32 v113, 4, v113
    v_lshl_add_u32 v112, v112, 10, v113
    v_add_u32 v113, 15360, v112
    v_and_b32 v114, 1, v0
    v_bfe_u32 v115, v0, 1, 1
    v_lshlrev_b32 v114, 4, v114
    v_lshl_add_u32 v114, v115, 3, v114  ; pi*8
    v_and_b32 v115, 1, v1
    v_lshl_add_u32 v114, v115, 5, v114  ; + g*32
    v_lshl_add_u32 v114, v3, 9, v114    ; + h2*512
    v_bfe_u32 v115, v0, 2, 2
    v_lshl_add_u32 v114, v115, 7, v114  ; + r*128
    v_bfe_u32 v115, v0, 3, 1
    v_lshl_add_u32 v121, v115, 6, v114  ; + (r>>1)*64
    v_add_u32 v114, {sWL}, v121
    v_xor_b32 v115, 64, v114
    v_add_u32 v116, {4*SLOT}, v114
    v_add_u32 v117, {4*SLOT}, v115
    v_add_u32 v118, {8*SLOT}, v114
    v_add_u32 v119, {8*SLOT}, v115
    v_add_u32 v120, {OBASE}, v4
    '''.strip().split('\n')

    vWQ = ['v5', 'v6', 'v7', 'v8']
    a(f'''
    v_lshlrev_b32 v9, 2, v1
    v_xor_b32 v9, v9, v2
    v_lshlrev_b32 v9, 4, v9
    v_lshl_add_u32 v9, v1, 13, v9
    s_lshl_b32 {sT0}, {sWAVE}, 8
    v_add_u32 v5, {sT0}, v9
    v_add_u32 v6, {31744}, v5
    v_add_u32 v7, {2*31744}, v5
    v_add_u32 v8, {3*31744}, v5
    s_add_u32 {sBASE}, {sWAVE}, 6
    s_lshl_b32 {sBASE}, {sBASE}, 14
    ''')
    NQ = 6 if cfg.wq6 else 4
    if 'a' in cfg.lay: a(f's_lshl_b32 {sLIM}, {sROT}, 17')
    a(f's_lshl_b32 {sVB}, {sWAVE}, 13\ns_add_u32 {sVB}, {sVB}, {4*SLOT}')
    def wq_pre(i):
        if 'a' in cfg.lay:
            return [(f's_add_u32 m0, {sBASE}, {(i % NQ) * 4096}' if i % NQ < 4 else f's_add_u32 m0, {sVB}, {(i % NQ - 4) * 4096}'),
                    f's_xor_b32 {sT0}, {sLIM}, {i << 17}']
        return [f's_add_u32 {sT0}, {sROT}, {i}', f's_and_b32 {sT0}, {sT0}, 31',
                (f's_add_u32 m0, {sBASE}, {(i % NQ) * 4096}' if i % NQ < 4 else f's_add_u32 m0, {sVB}, {(i % NQ - 4) * 4096}'),
                f's_lshl_b32 {sT0}, {sT0}, 17']
    def wq_dma(j):
        return f'buffer_load_dwordx4 {vWQ[j]}, {WQ_}, {sT0} offen offset:{1024*j}{cfg.wq_pol} lds'
    def wq_issue(i):
        emit(wq_pre(i)); emit([wq_dma(j) for j in range(4)])
    if not cfg.wq_both: a(f's_cmp_eq_u32 {sGRP}, 0\ns_cbranch_scc0 L_nowq0')
    for i in range(cfg.wq_first): wq_issue(i)
    a('L_nowq0:')
    if cfg.defer == 1: a(late_srd)
    if cfg.hs0:
        a(f'''
        s_cmp_eq_u32 {sWAVE}, 0
        s_cbranch_scc0 L_noclear
        s_lshl_b32 {sT0}, {sG}, 3
        s_add_u32 {sT0}, {sT0}, {sHKV}
        s_lshl_b32 {sT0}, {sT0}, 7
        s_add_u32 {sT0}, {sT0}, {FLAG_OFF}
        v_mov_b32 v10, 0
        v_lshlrev_b32 v11, 2, v0
        s_mov_b64 exec, 0xff
        buffer_store_dword v10, v11, {WS_}, {sT0} offen sc1
        s_mov_b64 exec, -1
        L_noclear:
        ''')
    a(f'''
    v_bfe_u32 v13, v0, 2, 2          ; r
    v_and_b32 v14, 1, v0
    v_bfe_u32 v15, v0, 1, 1
    v_lshlrev_b32 v14, 4, v14
    v_lshl_add_u32 v14, v15, 3, v14  ; pi*8
    v_and_b32 v15, 1, v1             ; g
    v_lshl_add_u32 v14, v15, 5, v14  ; g*32 + pi*8
    v_lshlrev_b32 v12, 11, v3        ; 8*h2*256
    v_mul_u32_u24 v15, 320, v13      ; r*256 + r*64
    v_add3_u32 v12, v12, v15, v14
    v_add_u32 v16, {sBASE}, v12
    v_xor_b32 v17, 64, v16
    v_xor_b32 v18, 128, v16
    v_xor_b32 v19, 192, v16
    v_and_b32 v20, 31, v0            ; q
    v_xor_b32 v21, v3, v2            ; h2 ^ (q&15)
    v_lshlrev_b32 v21, 4, v21
    v_lshl_add_u32 v21, v20, 10, v21
    v_add_u32 v21, {4*SLOT}, v21
    ''')
    vTQ = ['v16', 'v17', 'v18', 'v19']
    vTQ2 = ['v21', 'v22', 'v23', 'v24']
    XF = lambda i: 128 + 4 * i
    QA = lambda blk: 64 + 16 * blk
    BUF = lambda i, blk: 32 + 16 * (i & 1) + 4 * blk
    OA = lambda blk: 128 + 16 * blk
    for m in range(1, 8):
        a(f'v_xor_b32 v{21+m}, {32*m}, v21')
    vKL, vVL, vOL = 'v29', 'v13', 'v9'
    a(f"""
    v_xor_b32 v14, v1, v2
    v_lshlrev_b32 v14, 4, v14
    v_lshl_add_u32 {vKL}, v2, 8, v14
    v_bfe_u32 v14, v0, 2, 4             ; 4g + r
    v_and_b32 v15, 7, v14
    v_lshlrev_b32 v14, 8, v14
    v_lshl_add_u32 v14, v15, 5, v14
    v_and_b32 v15, 3, v0
    v_lshl_add_u32 {vVL}, v15, 3, v14
    v_lshlrev_b32 v14, 4, v2
    v_lshl_add_u32 v14, v3, 10, v14
    v_and_b32 v15, 1, v1
    v_lshl_add_u32 {vOL}, v15, 9, v14
    v_mov_b32 v30, {hex(f32(1.4426950408889634 / 128 ** 0.5))}
    s_mov_b32 {sC}, {hex(f32(cfg.T))}
    s_barrier   ; Bx
    """)
    stamp(1)
    for i in range(32):
        a(f'ds_read_b128 v[{XF(i)}:{XF(i)+3}], v{21 + (i & 7)} offset:{256*(i >> 3)}')
        if i in (14, 22, 30): a('s_waitcnt lgkmcnt(7)')
    a('s_waitcnt lgkmcnt(0)')
    a('s_barrier   ; Bx2')
    a('s_barrier   ; Bw')
    stamp(2)
    if not cfg.wq_both:
        a(f's_cmp_eq_u32 {sGRP}, 0\ns_cbranch_scc1 L_wq1')
        for i in range(cfg.wq_first): wq_issue(i)
        a('L_wq1:')
    for i in range(cfg.wq_first, NQ - 1): wq_issue(i)
    if cfg.wq6:
        a(f'v_add_u32 v21, {sVB}, v12\nv_xor_b32 v22, 64, v21\nv_xor_b32 v23, 128, v21\nv_xor_b32 v24, 192, v21')
    pre = [x.replace('v112', 'v28').replace('v113', 'v14').replace('v114', 'v12').replace('v115', 'v15').replace('v121', 'v12')
           for x in oproj_addr[:7] + oproj_addr[8:20]]
    emit(pre)
    a(f's_lshl_b32 {sT0}, {sWAVE}, 3\ns_xor_b32 {sT0}, {sT0}, {sROT}\ns_lshl_b32 {sT0}, {sT0}, 10\nv_add_u32 v11, {sT0}, {vOL}')
    def q_mfma(i, blk):
        c = '0' if i == 0 else f'v[{QA(blk)}:{QA(blk)+15}]'
        return f'v_mfma_f32_32x32x16_bf16 v[{QA(blk)}:{QA(blk)+15}], v[{BUF(i,blk)}:{BUF(i,blk)+3}], v[{XF(i)}:{XF(i)+3}], {c}'
    for i in range(32):
        a(f's_waitcnt vmcnt({4*(min(31, i + NQ - 2) - i)})')
        if i == 0: stamp(3)
        if i in (4, 8, 16, 24): stamp(40 + i // 4)
        for blk in range(4):
            for u in range(2):
                r = BUF(i, blk) + 2 * u
                a(f'ds_read_b64_tr_b16 v[{r}:{r+1}], {(vTQ if i % NQ < 4 else vTQ2)[blk]} offset:{(i % NQ % 4)*4096 + 1024*u}')
        dma = i + NQ - 1 < 32
        if dma: emit(wq_pre(i + NQ - 1))
        for blk in range(4):
            if 0 < i < 31 or (i == 31 and blk == 0): a(q_mfma(i - 1, blk))
            if dma: a(wq_dma(blk))
            if 18 <= i < 26:
                for z in range(2):
                    a(f'v_mov_b32 v{128 + 8*(i-18) + 2*blk + z}, 0')
        if i + NQ - 1 == 31: a('s_barrier   ; Bk')
        a('s_waitcnt lgkmcnt(0)')
    a('s_barrier   ; Bq')
    a(f"""
    s_mov_b32 {sCNT}, {14 if cfg.fin2 else 13}
    s_mov_b32 {sBASE}, 0
    s_mov_b32 {sLIM}, {10*SLOT}
    """)
    QF = lambda ks: 32 + 4 * ks
    S = lambda kb: 64 + 16 * kb
    P = lambda i: 96 + 4 * i if i < 2 else 192 + 4 * (i - 2)
    CB = lambda u: 112 + 4 * u
    LA = lambda u: 104 + 4 * u
    ON = 124
    KF = lambda i: 192 + 4 * i
    VF = lambda t: 224 + 4 * t
    OT = lambda t, u: 128 + 8 * t + 4 * u
    vKA = ['v16', 'v17', 'v18', 'v19']
    vVA = ['v%d' % (20 + t) for t in range(8)]
    M16 = lambda d, x, y, c: f'v_mfma_f32_16x16x32_bf16 v[{d}:{d+3}], v[{x}:{x+3}], v[{y}:{y+3}], ' + (f'v[{c}:{c+3}]' if c is not None else '0')
    def qk(sb, j, first=False):
        s_, kt, u = j >> 2, (j >> 1) & 1, j & 1
        d = S(sb) + 8 * u + 4 * kt
        return M16(d, KF(2 * s_ + kt), QF(2 * s_ + u), d if s_ else (None if first else CB(u)))
    pv = lambda t, u, p: M16(OT(t, u), VF(t), P(p), OT(t, u))
    rsum = lambda u, p: M16(LA(u), ON, P(p), LA(u))
    kread = lambda i, kb: f'ds_read_b128 v[{KF(i)}:{KF(i)+3}], {vKA[i >> 1]} offset:{8192*kb + 4096*(i & 1)}'
    vread = lambda j, kb: f'ds_read_b64_tr_b16 v[{VF(j >> 1)+2*(j & 1)}:{VF(j >> 1)+2*(j & 1)+1}], {vVA[j >> 1]} offset:{8192*kb + 4096*(j & 1)}'
    exp = lambda r: f'v_exp_f32 v{r}, v{r}'
    cvt = lambda p, d, r: f'v_cvt_pk_bf16_f32 v{P(p)+d}, v{r}, v{r+1}'
    def maxchain(sb):
        b = S(sb)
        l = [f'v_max3_f32 v14, v{b}, v{b+1}, v{b+2}', f'v_max3_f32 v15, v{b+3}, v{b+8}, v{b+9}',
             f'v_max3_f32 v14, v14, v{b+10}, v{b+11}', f'v_max3_f32 v15, v15, v{b+4}, v{b+5}',
             f'v_max3_f32 v14, v14, v{b+6}, v{b+7}', f'v_max3_f32 v15, v15, v{b+12}, v{b+13}',
             f'v_max3_f32 v14, v14, v{b+14}, v{b+15}', f'v_max_f32 v14, v14, v15']
        return l
    def rowmax(sb, floor):
        l = []
        for u, (x, y) in enumerate((('v14', 'v15'), ('v6', 'v7'))):
            b = S(sb) + 8 * u
            l += [f'v_max3_f32 {x}, v{b}, v{b+1}, v{b+2}', f'v_max3_f32 {y}, v{b+3}, v{b+4}, v{b+5}',
                  f'v_max3_f32 {x}, {x}, v{b+6}, v{b+7}']
        l += ['v_max_f32 v14, v14, v15', 'v_max_f32 v6, v6, v7', 'v_mov_b32 v15, v14', 'v_mov_b32 v7, v6', 's_nop 0',
              'v_permlane32_swap_b32 v14, v15', 'v_permlane32_swap_b32 v6, v7',
              'v_max_f32 v14, v14, v15', 'v_max_f32 v6, v6, v7', 'v_mov_b32 v15, v14', 'v_mov_b32 v7, v6', 's_nop 0',
              'v_permlane16_swap_b32 v14, v15', 'v_permlane16_swap_b32 v6, v7']
        l += ['v_max3_f32 v14, v14, v15, 0', 'v_max3_f32 v6, v6, v7, 0'] if floor else ['v_max_f32 v14, v14, v15', 'v_max_f32 v6, v6, v7']
        return l
    KA = [f'v_add_u32 {vKA[0]}, {sBASE}, {vKL}'] + [f'v_xor_b32 {vKA[i]}, {64*i}, {vKA[0]}' for i in range(1, 4)]
    VA = [f'v_add_u32 {vVA[0]}, {sVB}, {vVL}'] + [f'v_xor_b32 {vVA[t]}, {32*t}, {vVA[0]}' for t in range(1, 8)]
    cmp_ = f'v_cmp_lt_f32 vcc, {sC}, v14'
    def branch(tag):
        a(f's_cbranch_vccnz L_slow{tag}')
        a(f'L_back{tag}:')
    def mini(cur, x, barrier=False, vnext=True, kreads=True):
        nx = cur ^ 1; b = S(cur)
        Rc = {j: vread(j, cur) for j in range(9, 16)}
        Rn = [vread(j, nx) if vnext else None for j in range(9)]
        D = [kread(i, cur) if kreads else None for i in range(8)]
        E = [exp(b + e) for e in range(16)]
        C = [cvt(d >> 2, d & 3, b + 2 * d) for d in range(8)]
        X = maxchain(nx)
        W = lambda n: f's_waitcnt lgkmcnt({n})'
        g = {0: [Rc[9], E[0]], 1: [E[1]], 2: [Rc[10], E[2]], 3: [D[0], E[3]], 4: [Rc[11], E[4]], 5: [D[1], E[5]],
             6: [Rc[12], E[6]], 7: [W(6 if kreads else 4), E[7]], 8: [D[2], Rc[13], C[0]], 9: [D[3], C[1]], 10: [Rc[14], C[2]], 11: [D[4], C[3]],
             12: [Rc[15], E[8]], 13: [D[5], E[9]], 14: [E[10]], 15: [D[6], E[11]],
             16: [E[12]], 17: [D[7], E[13]], 18: [E[14]], 19: [E[15], W(3 if kreads else 0)], 20: [C[4], C[5]], 21: [C[6], C[7]],
             22: [X[0]], 23: [X[1]], 's0': ([W(0)] if kreads else []) + (['s_barrier   ; k(t+2): V(t+1), K(t+2) landed'] if barrier else []),
             24: [Rn[0], X[2]], 25: [Rn[1], X[3]], 26: [Rn[2], X[4]], 27: [Rn[3], X[5]], 28: [Rn[4], X[6]], 29: [Rn[5], X[7]],
             30: [Rn[6], cmp_], 31: [Rn[7]], 's1': [Rn[8]]}
        def G(k): emit([y for y in g[k] if y] + x.get(k, []))
        for j in range(16):
            a(qk(nx, j)); G(j)
        for t in range(8):
            a(pv(t, 0, 0)); G(16 + t)
        a(rsum(0, 0)); G('s0')
        for t in range(8):
            a(pv(t, 1, 1)); G(24 + t)
        a(rsum(1, 1)); G('s1')
    vx = {1: [VA[0]], 9: [VA[1]], 10: [VA[2]], 11: [VA[3]], 14: [VA[4]], 16: [VA[5]], 22: [VA[6]], 23: [VA[7]]}
    def step(tags, last):
        if last:
            mini(0, {1: [f's_add_u32 {sVB}, {sBASE}, {SLOT}']})
        else:
            mini(0, {1: [f's_add_u32 {sVB}, {sBASE}, {SLOT}'], 9: [f's_add_u32 {sBASE}, {sBASE}, {2*SLOT}'],
                     10: [f's_cmp_eq_u32 {sBASE}, {sLIM}'], 11: [f's_cselect_b32 {sBASE}, 0, {sBASE}'],
                     14: [f's_cselect_b32 {sLIM}, {8*SLOT}, {sLIM}'],
                     16: [f's_cmp_eq_u32 {sCNT}, {sCHK}', 's_cbranch_scc0 L_nock', f'buffer_load_dword v5, v30, {DBG_}, 0 offen sc1', 'L_nock:'] if cfg.fin2 else [], 22: [f's_sub_u32 {sCNT}, {sCNT}, 1']})
        branch(tags[0])
        if last:
            mini(1, vx, False, False)
        else:
            mini(1, {**vx, 18: [KA[0]], 31: [KA[1]], 's1': [KA[2]], 's0': [], 20: [], 27: [], 26: [], 29: [KA[3]]}, True)
        branch(tags[1])
    class Lds:
        def __init__(s): s.ops = []; s.done = 0
        def rd(s, ins, tag=None): a(ins); s.ops.append(tag)
        def need(s, tag):
            k = s.ops.index(tag) + 1
            if k > s.done:
                a(f's_waitcnt lgkmcnt({len(s.ops) - k})'); s.done = k
    def qscale(ks):
        src = QA(ks >> 1) + 8 * (ks & 1)
        return [f'v_pk_mul_f32 v[{src+2*d}:{src+2*d+1}], v[{src+2*d}:{src+2*d+1}], v[30:31] op_sel_hi:[1,0]' for d in range(4)]
    def qpack(ks):
        src = QA(ks >> 1) + 8 * (ks & 1)
        return [f'v_cvt_pk_bf16_f32 v{QF(ks)+d}, v{src+2*d}, v{src+2*d+1}' for d in range(4)]
    def qswap(s_):
        x, y = QF(2 * s_), QF(2 * s_ + 1)
        return [f'v_permlane32_swap_b32 v{x+d}, v{y+d}' for d in range(4)] + [f'v_permlane16_swap_b32 v{x+d}, v{y+d}' for d in range(4)]
    a(q_mfma(31, 0)); emit(KA)
    a(q_mfma(30, 1)); a(f's_mov_b32 {sVB}, {SLOT}'); emit(VA[:3])
    a(q_mfma(31, 1)); emit(VA[3:6])
    a(q_mfma(30, 2)); emit(qscale(0))
    a(q_mfma(31, 2)); emit(qscale(1))
    a(q_mfma(30, 3)); emit(qscale(2))
    a(q_mfma(31, 3)); emit(qscale(3))
    stamp(4)
    for ks in range(4): emit(qpack(ks))
    a('s_barrier   ; k0')
    stamp(8)
    L = Lds()
    for i in range(8): L.rd(kread(i, 0), ('a', i))
    a(f's_mov_b32 {sBASE}, {2*SLOT}')
    emit(qscale(4) + qscale(5)); emit(qswap(0)); emit(qpack(4) + qpack(5))
    emit(qscale(6) + qscale(7)); emit(qswap(1)); emit(qpack(6) + qpack(7))
    late = VA[6:] + qswap(2) + qswap(3) + [f'v_mov_b32 v{LA(0)+i}, 0' for i in range(8)] + [f'v_mov_b32 v{ON+i}, 0x3f803f80' for i in range(4)]
    for j in range(16):
        L.need(('a', j >> 1))
        a(qk(0, j, True))
        if j & 1: L.rd(kread(j >> 1, 1), ('b', j >> 1))
        emit(late[:2]); del late[:2]
    assert not late
    emit(KA)
    a('s_nop 2')
    rm = rowmax(0, False)
    emit(rm[:10])
    a('s_waitcnt lgkmcnt(0)')
    a('s_barrier   ; k1')
    for j in range(9): a(vread(j, 0))
    emit(rm[11:])
    for u, m in enumerate(('v14', 'v6')):
        emit([f'v_sub_f32 v{CB(u)+i}, 0, {m}' for i in range(4)])
        emit([f'v_sub_f32 v{S(0)+8*u+i}, v{S(0)+8*u+i}, {m}' for i in range(8)])
    if 'l' in cfg.align: a('.p2align 6')
    if 'L' in cfg.align: a('.p2align 6\ns_nop 0')
    if cfg.hs0:
        a(f'''
        s_lshl_b32 {sT0}, {sG}, 3
        v_mov_b32 v30, {sT0}
        v_mov_b32 v5, 8
        s_mov_b32 {sCHK}, 99
        s_cmp_eq_u32 {sWAVE}, 0
        s_cbranch_scc0 L_noann
        s_mov_b32 {sCHK}, 1
        v_mov_b32 v10, 1
        s_mov_b64 exec, 1
        buffer_atomic_add v10, v30, {DBG_}, 0 offen sc1
        s_mov_b64 exec, -1
        L_noann:
        ''')
    a('L_loop:')
    step('AB', False)
    a('s_cbranch_scc0 L_loop')
    def norm(tp, u):
        inv = ('v[14:15]', 'v[6:7]')[u]; dst = 64 + 8 * tp + 4 * u
        l = []
        for k in range(2):
            src = OT(2 * tp + k, u)
            l += [f'v_pk_mul_f32 v[{src+e}:{src+e+1}], v[{src+e}:{src+e+1}], {inv} op_sel_hi:[1,0]' for e in (0, 2)]
        for k in range(2):
            src = OT(2 * tp + k, u)
            l += [f'v_cvt_pk_bf16_f32 v{dst+2*k+d}, v{src+2*d}, v{src+2*d+1}' for d in range(2)]
        return l + [f'ds_write_b128 {vOW[tp]}, v[{dst}:{dst+3}] offset:{OBASE + 256*u}']
    vOW = ['v11', 'v16', 'v17', 'v18']
    if cfg.fin2:
        a('L_last:')
        a('L_tail:')
        assert cfg.hs0
        fill = [f'v_xor_b32 {vOW[h]}, {h << 11}, v11' for h in range(1, 4)] + \
               ['v_mov_b32 v112, v28', 'v_add_u32 v113, 7168 + 8192, v28', 'v_mov_b32 v114, v12'] + oproj_addr[20:]
        slots = [3, 5, 8, 9, 11, 13, 14, 15, 16, 17, 18, 22]
        assert len(fill) == len(slots)
        mini(0, {g_: [f_] for g_, f_ in zip(slots, fill)}, False, True, False)
        branch('C')
        stamp(39)
        b1 = S(1)
        E1 = [exp(b1 + e) for e in range(16)]
        C1 = [cvt(d >> 2, d & 3, b1 + 2 * d) for d in range(8)]
        for e in range(8):
            a(E1[e])
            if e < 7: a(vread(9 + e, 1))
            if e == 5: a('s_waitcnt lgkmcnt(6)')
        emit(C1[:4])
        emit([E1[8], E1[9]])
        a(rsum(0, 0))
        for t in range(8):
            if t == 4: a('s_waitcnt lgkmcnt(0)')
            a(pv(t, 0, 0))
            if t < 6: a(E1[10 + t])
            if t == 6: emit(C1[4:6])
            if t == 7: emit(C1[6:])
        a(f'v_rcp_f32 v14, v{LA(0)}')
        a('s_nop 0')
        a(rsum(1, 1))
        pend = sum([norm(tp, 0) for tp in range(4)], [])
        for t in range(8):
            a(pv(t, 1, 1))
            if t == 4: a(f'v_rcp_f32 v6, v{LA(1)}')
            emit(pend[:cfg.nrm]); del pend[:cfg.nrm]
        stamp(5)
        emit(pend)
        for tp in range(4): emit(norm(tp, 1))
    else:
        a('L_last:')
        if cfg.hs0:
            a(f's_cmp_eq_u32 {sWAVE}, 0\ns_cbranch_scc0 L_nock\nbuffer_load_dword v5, v30, {DBG_}, 0 offen sc1\nL_nock:')
        step('DE', True)
        a('L_tail:')
        b0, b1 = S(0), S(1)
        vOW = ['v11', 'v16', 'v17', 'v18']
        fill = [f'v_xor_b32 {vOW[h]}, {h << 11}, v11' for h in range(1, 4)] + \
               ['v_mov_b32 v112, v28', 'v_add_u32 v113, 15360, v28', 'v_mov_b32 v114, v12'] + oproj_addr[20:]
        for j in range(16):
            a(qk(1, j)); emit([exp(b0 + j)])
        emit(fill[:7]); del fill[:7]
        def take(n):
            l = fill[:n]; del fill[:n]; return l
        emit(maxchain(1))
        a(cmp_)
        branch('C')
        emit([cvt(0, d, b0 + 2 * d) for d in range(4)])
        stamp(38)
        a('s_barrier   ; k16: V15 landed')
        stamp(39)
        L = Lds()
        for j in range(14): L.rd(vread(j, 0), ('a', j))
        emit([cvt(1, d, b0 + 8 + 2 * d) for d in range(4)])
        E1 = [exp(b1 + e) for e in range(16)]
        emit(E1[:2])
        for t in range(8):
            if t % 2 == 0: L.need(('a', 2 * t + 3))
            a(pv(t, 0, 0))
            if t < 2: L.rd(vread(14 + t, 0), ('a', 14 + t))
            a(E1[2 + t])
        a(rsum(0, 0)); a(E1[10])
        C2 = [cvt(2, d, b1 + 2 * d) for d in range(4)]; C3 = [cvt(3, d, b1 + 8 + 2 * d) for d in range(4)]
        fl = [[E1[11]], [E1[12]], [E1[13]], [E1[14]], [E1[15]], C2[:2], C2[2:], C3[:2]]
        for t in range(8):
            a(pv(t, 1, 1))
            if t == 7: L.need(('b', 1))
            L.rd(vread(2 * t, 1), ('b', 2 * t)); L.rd(vread(2 * t + 1, 1), ('b', 2 * t + 1))
            emit(fl[t])
        a(rsum(1, 1)); emit(C3[2:])
        a(rsum(0, 2)); emit(take(2))
        a(rsum(1, 3)); emit(take(2))
        def norm(tp, u):
            inv = ('v[14:15]', 'v[6:7]')[u]; dst = 64 + 8 * tp + 4 * u
            l = []
            for k in range(2):
                src = OT(2 * tp + k, u)
                l += [f'v_pk_mul_f32 v[{src+e}:{src+e+1}], v[{src+e}:{src+e+1}], {inv} op_sel_hi:[1,0]' for e in (0, 2)]
            for k in range(2):
                src = OT(2 * tp + k, u)
                l += [f'v_cvt_pk_bf16_f32 v{dst+2*k+d}, v{src+2*d}, v{src+2*d+1}' for d in range(2)]
            return l + [f'ds_write_b128 {vOW[tp]}, v[{dst}:{dst+3}] offset:{OBASE + 256*u}']
        pend = []
        for t in range(8):
            if t % 2 == 0: L.need(('b', 2 * t + 3))
            if t == 2: emit([f'v_rcp_f32 v14, v{LA(0)}', f'v_rcp_f32 v6, v{LA(1)}'])
            if t == 3: pend += norm(0, 0)[:2]
            if t == 4: pend += norm(0, 0)[2:] + norm(0, 1)
            if t == 6: pend += norm(1, 0) + norm(1, 1)
            for u in range(2):
                a(pv(t, u, 2 + u))
                if t < 2: emit(take(1) or ['s_nop 0'])
                emit(pend[:cfg.nrm]); del pend[:cfg.nrm]
        assert not fill
        stamp(5)
        emit(pend)
        for tp in (2, 3):
            emit(norm(tp, 0) + norm(tp, 1))
    if cfg.hs0:
        a(f'''
        s_mov_b32 {sSPIN}, 0
        s_waitcnt vmcnt(0)
        L_chk:
        v_cmp_gt_u32 vcc, 8, v5
        s_cbranch_vccz L_chkd
        s_add_u32 {sSPIN}, {sSPIN}, 1
        s_cmp_gt_u32 {sSPIN}, 0x40000
        s_cbranch_scc1 L_chkd
        buffer_load_dword v5, v30, {DBG_}, 0 offen sc1
        s_waitcnt vmcnt(0)
        s_branch L_chk
        L_chkd:
        ''')
    if 'c' in cfg.align: a('.p2align 6')
    if 'C' in cfg.align: a('.p2align 6\ns_nop 0')
    a('s_waitcnt lgkmcnt(0)')
    a('s_barrier   ; Bo')
    stamp(6)
    AF = lambda i, nb: (32, 40, 96)[i % 3] + 4 * nb
    BF = lambda i: 48 + 4 * (i & 3)
    PA = lambda nb: 64 + 16 * nb
    PK = lambda idx, nb: 128 + 8 * idx + 4 * nb
    sWO = sCNT
    def w_pre(m):
        return [f's_add_u32 m0, {sWL}, {WSLOT[m % 8]*SLOT}', f's_xor_b32 {sWO}, {sWX}, {woff(m)}']
    def w_dma(hf, so=sT0):
        return f'buffer_load_dwordx4 {vWD[hf]}, {WO_}, {so} offen offset:{1024*hf}{cfg.wo_pol} lds'
    def o_mfma(idx, nb, areg, first=False):
        c = '0' if first else f'v[{PA(nb)}:{PA(nb)+15}]'
        return f'v_mfma_f32_32x32x16_bf16 v[{PA(nb)}:{PA(nb)+15}], v[{areg}:{areg+3}], v[{BF(idx)}:{BF(idx)+3}], {c}'
    bread = lambda idx: f'ds_read_b128 v[{BF(idx)}:{BF(idx)+3}], {vOA} offset:{1024*idx}'
    def areads(idx, m):
        sl = WSLOT[m % 8]
        return [f'ds_read_b64_tr_b16 v[{AF(idx,nb)+2*u}:{AF(idx,nb)+2*u+1}], {vWA(sl // 4, nb)} offset:{(sl % 4)*SLOT + 1024*u}'
                for nb in range(2) for u in range(2)]
    if cfg.cprio: a(f's_setprio {cfg.cprio}')
    emit(w_pre(7))
    emit([bread(0)] + areads(0, 0))
    emit([w_dma(0, sWO), w_dma(1, sWO)])
    emit([bread(1)] + areads(1, 1))
    for m in range(32):
        if m in (4, 8, 12, 16, 20, 24, 28): stamp(47 + m // 4)
        if m + 2 < 32:
            if m + 2 >= 7: a(f's_waitcnt vmcnt({2*(min(31, m + 7) - (m + 2))})')
            emit([bread(m + 2)] + areads(m + 2, m + 2))
        dma = m + 8 < 32
        if dma: emit(w_pre(m + 8))
        a(f's_waitcnt lgkmcnt({5 * min(2, 31 - m)})')
        a(o_mfma(m, 0, AF(m, 0), m == 0))
        if dma: a(w_dma(0, sWO))
        a(o_mfma(m, 1, AF(m, 1), m == 0))
        if dma: a(w_dma(1, sWO))
    def handoff(tg):
        a(f'L_pub{tg}:')
        stamp(7)
        if cfg.bf16p:
            a(f"""
            s_lshl_b32 {sT0}, {sG}, 3
            s_add_u32 {sT1}, {sT0}, {sWAVE}
            s_lshl_b32 {sT2}, {sT1}, 3
            s_add_u32 {sT2}, {sT2}, {sHKV}
            s_lshl_b32 {sT2}, {sT2}, 12
            s_lshl_b32 {sT1}, {sT1}, 7
            s_add_u32 {sT1}, {sT1}, {FLAG_OFF}
            s_lshl_b32 {sC}, {sHKV}, 2
            s_add_u32 {sT1}, {sT1}, {sC}
            s_add_u32 {sT0}, {sT0}, {sHKV}        ; g*8 + own
            v_mov_b32 v10, 1
            v_mov_b32 v11, 0
            """)
            for pc in range(4):
                for d in range(4):
                    a(f'v_cvt_pk_bf16_f32 v{96+4*pc+d}, v{64+8*pc+2*d}, v{65+8*pc+2*d}')
                a(f'buffer_store_dwordx4 v[{96+4*pc}:{99+4*pc}], v4, {WS_}, {sT2} offen offset:{1024*pc} sc1')
            a(f"""
            v_lshlrev_b32 v12, 2, v0
            s_lshl_b32 {sCHK}, {sT0}, 7
            s_add_u32 {sCHK}, {sCHK}, {FLAG_OFF}
            s_lshl_b32 {sT0}, {sT0}, 15
            s_lshr_b32 {sC}, {sWAVE}, 1
            s_lshl_b32 {sT2}, {sC}, 10
            s_add_u32 {sT0}, {sT0}, {sT2}
            s_and_b32 {sT2}, {sWAVE}, 1
            s_lshl_b32 {sCNT}, {sT2}, 8
            s_add_u32 {sT0}, {sT0}, {sCNT}
            v_bfe_u32 v14, v0, 4, 1
            v_lshlrev_b32 v15, 4, v2
            v_lshl_add_u32 v15, v14, 9, v15
            v_lshl_add_u32 v15, v3, 12, v15
            v_lshlrev_b32 v20, 11, v2
            v_lshl_add_u32 v20, v14, 4, v20
            v_lshl_add_u32 v20, v3, 3, v20
            s_lshl_b32 {sC}, {sC}, 5
            s_lshl_b32 {sT2}, {sT2}, 15
            s_add_u32 {sC}, {sC}, {sT2}
            s_waitcnt vmcnt(0)
            s_mov_b64 exec, 1
            buffer_store_dword v10, v11, {WS_}, {sT1} offen sc1
            s_mov_b64 exec, 0xff
            s_mov_b32 {sSPIN}, 0
            """)
            stamp(56)
            if cfg.poll2:
                a(f"""
                buffer_load_dword v13, v12, {WS_}, {sCHK} offen sc1
                L_poll{tg}:
                buffer_load_dword v16, v12, {WS_}, {sCHK} offen sc1
                s_waitcnt vmcnt(1)
                v_cmp_ne_u32 vcc, 1, v13
                s_cbranch_vccz L_polled{tg}
                buffer_load_dword v13, v12, {WS_}, {sCHK} offen sc1
                s_add_u32 {sSPIN}, {sSPIN}, 1
                s_cmp_gt_u32 {sSPIN}, 0x40000
                s_cbranch_scc1 L_polled{tg}
                s_waitcnt vmcnt(1)
                v_cmp_ne_u32 vcc, 1, v16
                s_cbranch_vccnz L_poll{tg}
                L_polled{tg}:
                s_mov_b64 exec, -1
                """)
            else:
                if cfg.poll1 >= 0: a(f's_cmp_eq_u32 {sWAVE}, {cfg.poll1}\ns_cbranch_scc0 L_polled{tg}')
                a(f"""
                L_poll{tg}:
                buffer_load_dword v13, v12, {WS_}, {sCHK} offen sc1
                s_add_u32 {sSPIN}, {sSPIN}, 1
                s_cmp_gt_u32 {sSPIN}, 0x40000
                s_cbranch_scc1 L_polled{tg}
                s_waitcnt vmcnt(0)
                v_cmp_ne_u32 vcc, 1, v13
                """)
                if cfg.psleep:
                    a(f's_cbranch_vccz L_polled{tg}\ns_sleep {cfg.psleep}\ns_branch L_poll{tg}')
                else:
                    a(f's_cbranch_vccnz L_poll{tg}')
                a(f'L_polled{tg}:\ns_mov_b64 exec, -1')
                if cfg.poll1 >= 0: a('s_barrier')
            stamp(57)
            for p in range(4):
                a(f'buffer_load_dwordx4 v[{96+4*p}:{99+4*p}], v15, {WS_}, {sT0} offen sc1')
                if p < 3: a(f's_add_u32 {sT0}, {sT0}, 8192')
            a(f's_mov_b32 {sT1}, 0xffff0000')
            for p in range(4):
                a(f's_waitcnt vmcnt({3-p})')
                for d in range(4):
                    lo, hi = (64 + 2 * d, 65 + 2 * d) if p == 0 else (72 + 2 * d, 73 + 2 * d)
                    a(f'v_lshlrev_b32 v{lo}, 16, v{96+4*p+d}')
                    a(f'v_and_b32 v{hi}, {sT1}, v{96+4*p+d}')
                if p:
                    for e in range(8):
                        a(f'v_add_f32 v{64+e}, v{64+e}, v{72+e}')
            a('s_nop 0')
            for e in range(4):
                a(f'v_permlane32_swap_b32 v{64+e}, v{68+e}')
            for e in range(4):
                a(f'v_add_f32 v{64+e}, v{64+e}, v{68+e}')
            a(f"""
            v_cvt_pk_bf16_f32 v96, v64, v65
            v_cvt_pk_bf16_f32 v97, v66, v67
            buffer_store_dwordx2 v[96:97], v20, {OUT_}, {sC} offen{cfg.out_pol}
            """)
        else:
            a(f'''
            s_lshl_b32 {sT0}, {sG}, 3
            s_add_u32 {sT1}, {sT0}, {sWAVE}
            s_lshl_b32 {sT2}, {sT1}, 3
            s_add_u32 {sT2}, {sT2}, {sHKV}
            s_lshl_b32 {sT2}, {sT2}, 13
            s_add_u32 {sCNT}, {sT2}, 4096
            s_lshl_b32 {sT1}, {sT1}, 7
            s_add_u32 {sT1}, {sT1}, {FLAG_OFF}
            s_lshl_b32 {sC}, {sHKV}, 2
            s_add_u32 {sT1}, {sT1}, {sC}
            s_add_u32 {sT0}, {sT0}, {sHKV}        ; g*8 + own
            v_mov_b32 v10, 1
            v_mov_b32 v11, 0
            v_lshlrev_b32 v12, 2, v0
            ''')
            for pc in range(8):
                so = sT2 if pc < 4 else sCNT
                a(f'buffer_store_dwordx4 v[{64+4*pc}:{67+4*pc}], v4, {WS_}, {so} offen offset:{1024*(pc % 4)} sc1')
            a(f'''
            s_lshl_b32 {sCHK}, {sT0}, 7
            s_add_u32 {sCHK}, {sCHK}, {FLAG_OFF}
            s_lshl_b32 {sT0}, {sT0}, 16
            s_lshl_b32 {sC}, {sWAVE}, 10
            s_add_u32 {sT0}, {sT0}, {sC}
            s_waitcnt vmcnt(0)
            s_mov_b64 exec, 1
            buffer_store_dword v10, v11, {WS_}, {sT1} offen sc1
            s_mov_b64 exec, 0xff
            s_mov_b32 {sSPIN}, 0
            ''')
            stamp(56)
            a(f'''
            L_poll{tg}:
            buffer_load_dword v13, v12, {WS_}, {sCHK} offen sc1
            s_add_u32 {sSPIN}, {sSPIN}, 1
            s_cmp_gt_u32 {sSPIN}, 0x40000
            s_cbranch_scc1 L_polled{tg}
            s_waitcnt vmcnt(0)
            v_cmp_ne_u32 vcc, 1, v13
            s_cbranch_vccnz L_poll{tg}
            L_polled{tg}:
            s_mov_b64 exec, -1
            ''')
            stamp(57)
            for p in range(8):
                a(f'buffer_load_dwordx4 v[{96+4*p}:{99+4*p}], v4, {WS_}, {sT0} offen sc1')
                if p < 7: a(f's_add_u32 {sT0}, {sT0}, 8192')
            a(f'''
            v_and_b32 v20, 31, v0
            v_lshlrev_b32 v20, 11, v20
            v_lshl_add_u32 v20, v3, 4, v20
            s_lshr_b32 {sT1}, {sWAVE}, 1
            s_lshl_b32 {sT1}, {sT1}, 5
            s_and_b32 {sT2}, {sWAVE}, 1
            s_lshl_b32 {sT2}, {sT2}, 3
            s_add_u32 {sT1}, {sT1}, {sT2}
            ''')
            for p in range(1, 8):
                a(f's_waitcnt vmcnt({7-p})')
                for d in range(4):
                    a(f'v_add_f32 v{96+d}, v{96+d}, v{96+4*p+d}')
            a(f'''
            v_cvt_pk_bf16_f32 v96, v96, v97
            v_cvt_pk_bf16_f32 v97, v98, v99
            buffer_store_dwordx2 v[96:97], v20, {OUT_}, {sT1} offen
            ''')
        if cfg.stamps:
            stamp(58)
            a('s_waitcnt vmcnt(0)')
            stamp(59); cstamp(61)
            a(f'''
            s_add_u32 s28, s28, {STAMP_OFF}
            s_addc_u32 s29, s29, 0
            s_lshl_b32 {sT0}, s2, 3
            s_add_u32 {sT0}, {sT0}, {sWAVE}
            s_lshl_b32 {sT0}, {sT0}, 8
            v_lshl_add_u32 v13, v0, 2, {sT0}
            global_store_dword v13, {vSTAMP}, s[28:29]
            ''')
    if 'd' in cfg.lay:
        handoff('C')
        a('s_endpgm')
    else:
        a('s_branch L_pub')

    a('L_helper:')
    if cfg.defer == 1: a(late_srd)
    issued = []
    R0 = 4 if cfg.wq6 else 6
    RB = lambda j, jj: 128 + 16 * (j - R0) + 4 * jj
    def kv_issue(j, inreg=False):
        if not inreg: a(f's_add_u32 m0, {sBASE}, {slot_of(j)*SLOT}')
        if cfg.kvrot:
            a(f's_add_u32 {sT0}, s86, {(j//2)*SLOT}')
            a(f's_and_b32 {sT0}, {sT0}, 0x3ffff')
        else:
            a(f's_add_u32 {sT0}, {sBASE}, {(j//2)*SLOT}')
        for jj in range(4):
            va, srd = (vKD[jj], K_) if j % 2 == 0 else (vVD[jj & 1], V_)
            if inreg:
                a(f'buffer_load_dwordx4 v[{RB(j,jj)}:{RB(j,jj)+3}], {va}, {srd}, {sT0} offen offset:{1024*jj}{cfg.kv_pol}')
            else:
                a(f'buffer_load_dwordx4 {va}, {srd}, {sT0} offen offset:{1024*jj}{cfg.kv_pol} lds')
        issued.append((('kv', j), 4))
    def rb_write(j):
        for jj in range(4):
            a(f'ds_write_b128 {("v13", "v11", "v10")[slot_of(j) // 4]}, v[{RB(j,jj)}:{RB(j,jj)+3}] offset:{(slot_of(j) % 4)*SLOT + 1024*jj}')
    def warm(lab0, lab1, tagn):
        if not cfg.warm: return
        lab = a.label('L_pc')
        a(f'''
        s_getpc_b64 s[80:81]
        {lab}:
        s_lshl_b32 {sT0}, {sB}, 2
        s_add_u32 {sT0}, {sT0}, {sHW}
        s_mul_i32 {sT0}, {sT0}, ((({lab1} - {lab0}) / 64 + 63) / 64) * 64
        v_lshl_add_u32 v32, v0, 6, {sT0}
        v_min_u32 v32, {lab1} - {lab0} - 4, v32
        s_add_u32 s80, s80, {lab0} - {lab}
        s_addc_u32 s81, s81, -1
        v_mov_b32 v33, s81
        v_add_co_u32 v32, vcc, s80, v32
        s_nop 1
        v_addc_co_u32 v33, vcc, 0, v33, vcc
        v_cmp_gt_u32 vcc, (({lab1} - {lab0}) / 64 + 63) / 64, v0
        s_and_saveexec_b64 s[82:83], vcc
        global_load_dword v34, v[32:33], off
        s_mov_b64 exec, s[82:83]
        ''')
        issued.append((('warm', tagn), 1))
    def w_resident(i):
        for own in range(2):
            a(f's_xor_b32 {sT0}, {sWX}, {woff(i + NP * own)}')
            a(f's_add_u32 m0, {sWL}, {WSLOT[i]*SLOT - (0 if own else 4 * 2048)}')
            a(f's_sub_u32 {sT0}, {sT0}, {0 if own else 512}')
            emit([w_dma(0), w_dma(1)])
        issued.append((('w', i), 4))
    def pw_issue(g):
        for j in range(2):
            a(f's_add_u32 m0, {sBASE}, {(8 + (g & 1))*SLOT + 2048*j}')
            a(f's_xor_b32 {sT0}, {sWX}, {woff(2*g + j)}')
            emit([w_dma(0), w_dma(1)])
        issued.append((('pw', g), 4))
    def pw_read(g):
        for j in range(2):
            for nb in range(2):
                for u in range(2):
                    r = PK(2 * g + j, nb) + 2 * u
                    a(f'ds_read_b64_tr_b16 v[{r}:{r+1}], v{122 + nb} offset:{(g & 1)*SLOT + 2048*j + 1024*u}')
    def smem_pref(lo, hi):
        if lo >= hi: return
        if lo == 0:
            a(f's_lshl_b32 {sT0}, {sROT}, 14\ns_lshl_b32 {sT1}, {sHW}, 13\ns_add_u32 {sT0}, {sT0}, {sT1}')
            a(f's_add_u32 s88, s52, {sT0}\ns_addc_u32 s89, s53, 0')
        for i in range(lo, hi):
            a(f's_load_dword s{90 + i % 8}, s[88:89], {(i >> 3) * 1024 + 512 + (i & 7) * 64}')
    def wait_for(*items):
        names = [x[0] for x in issued]
        k = max(names.index(it) for it in items)
        a(f's_waitcnt vmcnt({sum(x[1] for x in issued[k+1:])})')
    warm('L_start', 'L_end', 0)
    if not cfg.hs0:
        a(f'''
        s_mov_b32 {sC}, 99
        s_mov_b32 {sCHK}, 99
        s_lshl_b32 {sT0}, {sG}, 3
        v_mov_b32 v30, {sT0}
        v_mov_b32 v29, 8
        s_cmp_eq_u32 {sWAVE}, 4
        s_cbranch_scc0 L_noclear
        s_add_u32 {sT0}, {sT0}, {sHKV}
        s_lshl_b32 {sT0}, {sT0}, 7
        s_add_u32 {sT0}, {sT0}, {FLAG_OFF}
        s_and_b32 {sC}, {sB}, 3
        s_add_u32 {sC}, {sC}, 1
        s_add_u32 {sCHK}, {sC}, 9
        v_mov_b32 v27, 0
        v_mov_b32 v28, 1
        v_lshlrev_b32 v26, 2, v0
        s_mov_b64 exec, 0xff
        buffer_store_dword v27, v26, {WS_}, {sT0} offen sc1
        s_mov_b64 exec, -1
        L_noclear:
        ''')
    if cfg.hprio != 1: a(f's_setprio {cfg.hprio}')
    need = lambda k: 0 if k == 0 else min(31, 2 * k)
    free_at = lambda it: it // 2 + 1 if it % 2 == 0 else it // 2 + 2
    slot_free = lambda j: 0 if j < 10 else free_at(j - 10 if j < 18 else j - 8)
    MERGE = 17
    base_issued = list(issued)
    late_addr = oproj_addr + [f'v_add_u32 v13, {sBASE}, v4', f'v_add_u32 v11, {sBASE}, v4', f'v_add_u32 v10, {8*SLOT}, v11', f'v_add_u32 v11, {4*SLOT}, v11',
                              f'v_add_u32 v122, {sBASE}, v121', f'v_add_u32 v122, {8*SLOT}, v122', 'v_xor_b32 v123, 64, v122']
    if 'b' not in cfg.lay: a(f's_cmp_eq_u32 {sGRP}, 0\ns_cbranch_scc0 L_hkv')
    else: assert cfg.near_kv and cfg.hs0 and cfg.hprio == 1 and not cfg.warm
    EP_ = [(16, 20), (104, 108), (24, 124), (8, 12)]
    def fly(grp, k):
        l = cfg.g1_list if grp else cfg.g0_list
        if l: return int(l[min(k, len(l) - 1)])
        return cfg.g1_fly if grp else cfg.g0_fly if k < cfg.g0_sw else cfg.g0_fly2 if k < cfg.g0_sw2 else 4
    def barrier_step(k, grp, st):
        gp = k - 2 - cfg.park0
        if 0 <= gp < cfg.park:
            wait_for(('kv', need(k)), ('pw', gp))
            pw_read(gp)
            a('s_waitcnt lgkmcnt(0)')
        else:
            wait_for(('kv', need(k)))
        if grp == 1 and 1 <= k <= 5: a('s_waitcnt lgkmcnt(0)')
        if cfg.stamps == 4 and k in (14, 15, 16): stamp(33 + k - 14)
        if k == 16 and 'c' in cfg.lay:
            names = [x[0] for x in issued]
            w3 = sum(x[1] for x in issued[names.index(('w', 3)) + 1:])
            st['w3'] = w3
            assert max(cfg.w_at[:4]) < 16 and not cfg.w_at0
            if grp == 0:
                a('s_branch L_hmerge'); return
            a('L_hmerge:')
        a(f's_barrier   ; k{k}')
        stamp(8 + k)
        if 2 <= k <= 15: cstamp(23 + k)
        if grp == 1 and k == 0:
            a('s_setprio 0')
            for j in range(R0 + cfg.rb_pre, min(10, cfg.g1_pre)): rb_write(j)
            a(f's_setprio {cfg.hprio}')
        late_w = [j for j in range(10, cfg.g1_pre) if grp == 1 and max(slot_free(j), j - 9) == k]
        if 0 <= k - cfg.park0 < cfg.park: pw_issue(k - cfg.park0)
        if k and k == cfg.wtouch[grp]:
            for i in range(2):
                a(f's_xor_b32 {sT0}, {sWX}, {woff(i)}')
                a(f's_sub_u32 {sT0}, {sT0}, 512')
                for hf in range(2):
                    r = 32 + 8 * i + 4 * hf
                    a(f'buffer_load_dwordx4 v[{r}:{r+3}], {vWD[hf]}, {WO_}, {sT0} offen offset:{1024*hf}{cfg.wo_pol}')
            issued.append((('wt', 0), 4))
        while st['nxt'] < 32:
            j = st['nxt']
            if slot_free(j) > k or j > need(k + 1) + fly(grp, k): break
            kv_issue(j); st['nxt'] += 1
        if k == 16:
            if 'c' in cfg.lay: a(f's_waitcnt vmcnt({min(st["w3"], w3g0[0])})')
            else: wait_for(('w', 3))
            for i in range(4):
                emit([f'ds_read_b64_tr_b16 v[{EP_[i][nb]+2*u}:{EP_[i][nb]+2*u+1}], {vWA(WSLOT[i] // 4, nb)} offset:{(WSLOT[i] % 4)*SLOT + 1024*u}'
                      for nb in range(2) for u in range(2)])
                if i == 2: a('s_waitcnt lgkmcnt(8)')
        if late_w:
            a('s_setprio 0')
            for j in late_w: rb_write(j)
            a(f's_setprio {cfg.hprio}')
        for wi, at in enumerate(cfg.w_at if grp or not cfg.w_at0 else cfg.w_at0):
            if at == k: w_resident(wi)
        if cfg.stamps == 4 and k in (13, 14, 15): stamp(30 + k - 13)
        if k == 16:
            a('s_waitcnt lgkmcnt(0)')
        if grp == 0 and k < 4: smem_pref(min(cfg.smem[0], 32 + 8 * k), min(cfg.smem[0], 40 + 8 * k))
        if k == 11: warm('L_last', 'L_end', 1)
        if 1 <= k <= 4 and not cfg.hs0:
            lab = a.label('L_na')
            a(f's_cmp_eq_u32 {sC}, {k}\ns_cbranch_scc0 {lab}\ns_mov_b64 exec, 1')
            a(f'buffer_atomic_add v28, v30, {DBG_}, 0 offen sc1\ns_mov_b64 exec, -1\n{lab}:')
        if 10 <= k <= 13 and not cfg.hs0:
            lab = a.label('L_nc')
            a(f's_cmp_eq_u32 {sCHK}, {k}\ns_cbranch_scc0 {lab}')
            a(f'buffer_load_dword v29, v30, {DBG_}, 0 offen sc1\n{lab}:')
    states = []; w3g0 = []
    for grp in (0, 1):
        issued[:] = base_issued
        st = {}
        if grp == 0:
            for j in range(cfg.g0_pre): kv_issue(j)
            emit(late_addr)
            a(f's_waitcnt vmcnt({sum(x[1] for x in issued)})')
            a('s_barrier   ; Bx')
            stamp(1)
            a('s_barrier   ; Bx2')
            a('s_barrier   ; Bw')
            smem_pref(0, min(32, cfg.smem[0]))
            a('s_barrier   ; Bk')
            top = min(6, max(5, cfg.g0_pre + 4))
            for j in range(cfg.g0_pre, min(top, cfg.g0_pre + 3)): kv_issue(j)
            a('s_barrier   ; Bq')
            for j in range(cfg.g0_pre + 3, top): kv_issue(j)
            st['nxt'] = top
            stamp(2)
        else:
            a('L_hkv:')
            if 'b' in cfg.lay and cfg.defer == 1: a(late_srd)
            if cfg.near_kv:
                issued[:] = [(('kv', j), 4) for j in range(cfg.g1_first)] + base_issued
            else:
                for j in range(cfg.g1_first): kv_issue(j)
            emit(late_addr)
            a(f's_waitcnt vmcnt({sum(x[1] for x in issued)})')
            a('s_barrier   ; Bx')
            stamp(1)
            for j in range(cfg.g1_first, 4): kv_issue(j)
            a('s_barrier   ; Bx2')
            for j in range(4, cfg.g1_pre): kv_issue(j, j >= R0)
            stamp(2)
            a('s_barrier   ; Bw')
            smem_pref(0, cfg.smem[1])
            a('s_barrier   ; Bk')
            a('s_waitcnt vmcnt(0)')
            a('s_barrier   ; Bq')
            for j in range(R0, min(R0 + cfg.rb_pre, cfg.g1_pre)): rb_write(j)
            st['nxt'] = cfg.g1_pre
        for k in range(MERGE):
            barrier_step(k, grp, st)
        assert st['nxt'] == 32
        if 'c' in cfg.lay:
            if grp == 0: w3g0.append(st['w3'])
        elif grp == 0: a('s_branch L_hmerge')
    if 'c' not in cfg.lay: a('L_hmerge:')
    for k in range(MERGE, 17):
        barrier_step(k, 1, st)
    EP = [(16, 20), (104, 108), (24, 124), (8, 12)]
    def wread(dst, slot):
        return [f'ds_read_b64_tr_b16 v[{dst[nb]+2*u}:{dst[nb]+2*u+1}], {vWA(slot // 4, nb)} offset:{(slot % 4)*SLOT + 1024*u}'
                for nb in range(2) for u in range(2)]
    def own_refill(slot, idx):
        return [f's_add_u32 m0, {sWL}, {slot*SLOT}', f's_xor_b32 {sWO}, {sWX}, {woff(idx)}', w_dma(0, sWO), w_dma(1, sWO)]
    assert NP == 16 and cfg.early
    for i in range(4 - cfg.rlate): emit(own_refill(WSLOT[i], 23 + i))
    def hs_check(cnt):
        a(f"""
        s_mov_b32 {sSPIN}, 0
        s_waitcnt vmcnt({cnt})
        L_chk:
        v_cmp_gt_u32 vcc, 8, v29
        s_cbranch_vccz L_chkd
        s_add_u32 {sSPIN}, {sSPIN}, 1
        s_cmp_gt_u32 {sSPIN}, 0x40000
        s_cbranch_scc1 L_chkd
        buffer_load_dword v29, v30, {DBG_}, 0 offen sc1
        s_waitcnt vmcnt(0)
        s_branch L_chk
        L_chkd:
        """)
    if cfg.hs0: a(f's_waitcnt vmcnt({2 * (4 - cfg.rlate)})')
    else: hs_check(8)
    a('s_barrier   ; Bo')
    stamp(6)
    W = WSLOT
    seq = [(20, W[4]), (21, W[5]), (22, W[6]), (23, W[0])] + [(i, None) for i in range(20)] + \
          [(24, W[1]), (25, W[2]), (26, W[3]), (27, W[7]), (28, W[4]), (29, W[5]), (30, W[6]), (31, W[0])]
    HE = cfg.hearly
    he = max(HE, 0)
    seq = seq[:he] + seq[4:24] + seq[he:4] + seq[24:]
    refills = [(27, W[7]), (28, W[4]), (29, W[5]), (30, W[6]), (31, W[0])]
    vm_order = [23, 24, 25, 26]
    BFs = lambda n: 48 + 4 * (n & 3)
    AFs = lambda n: ((32, 36), (40, 44), (96, 100))[n % 3]
    def reads(n):
        idx, slot = seq[n]
        l = []
        if idx >= 23:
            l.append(f's_waitcnt vmcnt({2*(len(vm_order) - 1 - vm_order.index(idx))})')
        l.append(f'ds_read_b128 v[{BFs(n)}:{BFs(n)+3}], {vOA} offset:{1024*idx}')
        if slot is not None: l += wread(AFs(n), slot)
        return l
    def refill1():
        i2, sl = refills.pop(0)
        emit(own_refill(sl, i2)); vm_order.append(i2)
    cnt = lambda n: 0 if n >= 32 else (5 if seq[n][1] is not None else 1)
    if HE < 0: a('s_setprio 0')
    emit(reads(0)); emit(reads(1))
    assert HE == 0 or not cfg.rlate
    for i in range(4 - cfg.rlate, 4): emit(own_refill(WSLOT[i], 23 + i))
    if HE >= 0: refill1()
    if HE == 0: a('s_setprio 0')
    for n in range(32):
        idx, slot = seq[n]
        if n in (4, 8, 12, 16, 20, 24, 28): stamp(47 + n // 4)
        if n + 2 < 32: emit(reads(n + 2))
        a(f's_waitcnt lgkmcnt({cnt(n + 1) + cnt(n + 2)})')
        for nb in range(2):
            areg = AFs(n)[nb] if slot is not None else (PK(idx, nb) if idx < 16 else EP[idx - 16][nb])
            c = '0' if n == 0 else f'v[{PA(nb)}:{PA(nb)+15}]'
            a(f'v_mfma_f32_32x32x16_bf16 v[{PA(nb)}:{PA(nb)+15}], v[{areg}:{areg+3}], v[{BFs(n)}:{BFs(n)+3}], {c}')
        if n < he: refill1()
        if n == he - 1: a('s_setprio 0')
        if n == cfg.hup: a('s_setprio 1')
        if n == cfg.hburst:
            assert 23 <= n <= 24
            while refills: refill1()

    handoff('')
    a('L_end:')
    a('s_endpgm')
    for tag, sb in (('A', 1), ('B', 0), ('C', 1)) if cfg.fin2 else (('A', 1), ('B', 0), ('D', 1), ('E', 0), ('C', 1)):
        a(f'L_slow{tag}:')
        emit(rowmax(sb, True))
        a('v_exp_f32 v15, -v14')
        a('v_exp_f32 v7, -v6')
        for u, (d, al) in enumerate((('v14', 'v15'), ('v6', 'v7'))):
            emit([f'v_sub_f32 v{S(sb)+8*u+r}, v{S(sb)+8*u+r}, {d}' for r in range(8)])
            if tag != 'C': emit([f'v_sub_f32 v{CB(u)+r}, v{CB(u)+r}, {d}' for r in range(4)])
            a(f'v_mul_f32 v{LA(u)}, v{LA(u)}, {al}')
            if tag == 'C' and not cfg.fin2:
                emit([f'v_mul_f32 v{S(0)+8*u+r}, v{S(0)+8*u+r}, {al}' for r in range(8)])
            for t in range(8):
                emit([f'v_mul_f32 v{OT(t,u)+r}, v{OT(t,u)+r}, {al}' for r in range(4)])
        a('s_nop 0')
        a(f's_branch L_back{tag}')

    return header([f'; @launch grid=(256,1,1) block=(512,1,1) lds={10*SLOT}']) + kernel_open(kn) + a.text() + descriptor(kn, 256, 102)

if __name__ == '__main__':
    out = sys.argv[1]
    cfg = Cfg()
    for kv in sys.argv[2:]:
        k, v = kv.split('=', 1)
        assert hasattr(cfg, k), k
        setattr(cfg, k, eval(v))
    t = gen(cfg)
    if cfg.nomfma:
        i0 = t.index('L_loop:'); i1 = t.index('L_tail:')
        t = t[:i0] + '\n'.join(('    s_nop 7' if 'v_mfma_f32_32' in l else l) for l in t[i0:i1].split('\n')) + t[i1:]
    n = hazard.check(t)
    open(out, 'w').write(t)
    print(out, 'hazards:', n, 'lines:', t.count('\n'))
```

```python
import sys, struct
from asmlib import *
import hazard

def f32(x):
    return struct.unpack('<I', struct.pack('<f', x))[0]

SLOT = 16384
FLAG_OFF = 16 * 1024 * 1024
STAMP_OFF = 128 * 1024 * 1024
OBASE = 3 * SLOT
WSLOT = [8, 9, 6, 7, 0, 1, 2, 5]

def slot_of(j):
    return j if j < 10 else (j - 10) % 8

class Cfg:
    stamps = 0
    wq_pol = ''
    wo_pol = ''
    x_pol = ''
    kv_pol = ' nt'
    w_at = (13, 14, 15, 15, 16, 16, 16)
    warm = False
    wq_first = 3
    stagger = 1
    g0_fly = 4
    g0_fly2 = 1
    g0_sw = 5
    g0_list = '3333311'
    g1_list = ''
    g0_sw2 = 99
    w_at0 = None
    g0_pre = 0
    g1_pre = 11
    hprio = 1
    park = 8
    poll2 = False
    hearly = 0
    wq_nt = 0
    wo_nt = 0
    xov = False
    rlate = 4
    fin2 = True
    lay = 'abcd'
    hup = 99
    defer = 2
    wtouch = (0, 0)
    hs0 = True
    hburst = 24
    hbp = 0
    poll1 = 0
    psleep = 0
    align = ''
    oprio = 3
    cprio = 0
    nrm = 4
    smem = (0, 0)
    wq6 = False
    rb_pre = 2
    out_pol = ''
    near_kv = True
    early = True
    park0 = 5
    T = 8.0
    kvrot = ''
    nomfma = False
    h_ahead = 4
    h_start = 5
    wq_both = False
    g1_first = 2
    g1_fly = 5
    bf16p = True

woff = lambda idx: ((idx >> 1) << 15) | ((idx & 1) << 13)

def gen(cfg):
    a = Asm()
    kn = NAME + '_kernel'
    def emit(l):
        for x in l: a(x)
    sWAVE, sHKV, sBR, sB, sG, sROT = 's30', 's31', 's32', 's33', 's34', 's35'
    K_, V_, X_, WQ_, WO_, WS_, OUT_, DBG_ = ['s[%d:%d]' % (36 + 4 * i, 39 + 4 * i) for i in range(8)]
    sT0, sT1, sT2, sCNT, sBASE, sLIM, sC, sCHK, sHW = 's68', 's69', 's70', 's71', 's72', 's73', 's74', 's75', 's76'
    sSPIN, sVB, sGRP, sWL, sWG, sWX = 's77', 's78', 's79', 's84', 's85', 's87'
    vSTAMP = 'v31'
    NP = 2 * cfg.park
    def stamp(i):
        if not cfg.stamps or (cfg.stamps == 2 and i not in (0, 59)) or (cfg.stamps == 3 and i not in (0, 8, 24, 6, 7, 56, 57, 58, 59)) or (cfg.stamps == 4 and i not in (0, 21, 22, 23, 24, 6, 59, 30, 31, 32, 33, 34, 35, 38)): return
        a('s_memrealtime s[100:101]')
        a('s_waitcnt lgkmcnt(0)')
        a(f'v_writelane_b32 {vSTAMP}, s100, {i}')
    def cstamp(i):
        if cfg.stamps != 1: return
        a('s_memtime s[100:101]')
        a('s_waitcnt lgkmcnt(0)')
        a(f'v_writelane_b32 {vSTAMP}, s100, {i}')

    LATE1 = f'''s_mov_b32 s54, 524288
    s_mov_b32 s55, 0x20000
    s_mov_b32 s58, {FLAG_OFF + 32768}
    s_mov_b32 s59, 0x20000
    s_mov_b32 s63, 0x20000
    s_mov_b32 s66, 256
    s_mov_b32 s67, 0x20000'''
    a(f'''
    L_start:
    {'s_memrealtime s[98:99]' if cfg.stamps else ''}
    s_cmp_ge_u32 s2, 256
    s_cbranch_scc1 L_end
    s_load_dwordx16 s[4:19], s[0:1], 0
    s_load_dwordx8 s[20:27], s[0:1], 64
    s_load_dwordx2 s[28:29], s[0:1], 96
    v_lshrrev_b32 v1, 6, v0
    v_and_b32 v0, 63, v0
    v_readfirstlane_b32 {sWAVE}, v1
    s_and_b32 {sHKV}, s2, 3
    s_lshl_b32 {sHKV}, {sHKV}, 1
    s_bfe_u32 {sBR}, s2, 0x10003
    s_add_u32 {sHKV}, {sHKV}, {sBR}
    s_bfe_u32 {sBR}, s2, 0x10002
    s_lshr_b32 {sB}, s2, 4
    s_lshl_b32 {sG}, {sBR}, 4
    s_add_u32 {sG}, {sG}, {sB}
    s_lshl_b32 {sROT}, {sB}, 1
    ''')
    a({0: f's_mov_b32 {sGRP}, 0', 1: f's_and_b32 {sGRP}, {sHKV}, 1', 2: f's_mov_b32 {sGRP}, 1'}[cfg.stagger])
    if cfg.stamps:
        a(f'v_mov_b32 {vSTAMP}, 0')
    a(f'''
    v_lshrrev_b32 v1, 4, v0          ; lane>>4
    v_and_b32 v2, 15, v0             ; lane&15
    v_lshrrev_b32 v3, 5, v0          ; h2
    v_lshlrev_b32 v4, 4, v0          ; lane*16
    s_lshl_b32 {sT0}, {sB}, 3
    s_add_u32 {sT0}, {sT0}, {sHKV}
    s_lshl_b32 {sT0}, {sT0}, 18
    s_lshl_b32 {sT1}, {sB}, 15
    s_lshl_b32 {sT2}, {sHKV}, 10
    s_mov_b32 s38, 262144
    s_mov_b32 s39, 0x20000
    s_mov_b32 s42, 262144
    s_mov_b32 s43, 0x20000
    s_mov_b32 s46, 32768
    s_mov_b32 s47, 0x20000
    s_sub_u32 s50, 0x400000, {sT2}
    s_mov_b32 s51, 0x20000
    {LATE1 if cfg.defer == 2 else ''}
    s_lshl_b32 {sWL}, {sWAVE}, 11
    s_lshl_b32 {sWG}, {sWAVE}, 7
    s_lshl_b32 {sWX}, {sROT}, 14
    s_add_u32 {sWX}, {sWX}, {sWG}
    s_waitcnt lgkmcnt(0)
    ''')
    if cfg.stamps: a(f'v_writelane_b32 {vSTAMP}, s98, 0')
    cstamp(60)
    a(f'''
    s_cmp_eq_u32 {sBR}, 0
    s_cselect_b32 s36, s6, s16
    s_cselect_b32 s37, s7, s17
    s_cselect_b32 s40, s8, s18
    s_cselect_b32 s41, s9, s19
    s_cselect_b32 s44, s4, s14
    s_cselect_b32 s45, s5, s15
    s_cselect_b32 s48, s10, s20
    s_cselect_b32 s49, s11, s21
    s_cselect_b32 s52, s12, s22
    s_cselect_b32 s53, s13, s23
    s_add_u32 s36, s36, {sT0}
    s_addc_u32 s37, s37, 0
    s_add_u32 s40, s40, {sT0}
    s_addc_u32 s41, s41, 0
    s_add_u32 s44, s44, {sT1}
    s_addc_u32 s45, s45, 0
    s_add_u32 s48, s48, {sT2}
    s_addc_u32 s49, s49, 0
    ''')
    late_srd = f'''
    s_mov_b32 s54, 524288
    s_mov_b32 s55, 0x20000
    s_mov_b32 s58, {FLAG_OFF + 32768}
    s_mov_b32 s59, 0x20000
    s_mov_b32 s63, 0x20000
    s_mov_b32 s66, 256
    s_mov_b32 s67, 0x20000
    s_lshl_b32 {sT0}, {sHKV}, 19
    s_add_u32 s52, s52, {sT0}
    s_addc_u32 s53, s53, 0
    s_mov_b32 s56, s28
    s_mov_b32 s57, s29
    s_lshl_b32 {sT0}, {sBR}, 10
    s_lshl_b32 {sT1}, {sHKV}, 7
    s_add_u32 {sT0}, {sT0}, {sT1}
    s_sub_u32 s62, 65536, {sT0}
    s_lshl_b32 {sT1}, {sB}, 16
    s_add_u32 {sT0}, {sT0}, {sT1}
    s_add_u32 s60, s24, {sT0}
    s_addc_u32 s61, s25, 0
    s_mov_b32 s64, s26
    s_mov_b32 s65, s27
    '''
    if cfg.defer == 2: late_srd = late_srd.split('s_mov_b32 s67, 0x20000')[1]
    if cfg.defer in (0, 2): a(late_srd)
    a(f'''
    s_cmp_lt_u32 {sWAVE}, 4
    s_cbranch_scc1 L_compute
    ''')
    a('s_setprio 1')
    vKD = ['v5', 'v6', 'v7', 'v8']; vVD = ['v9', 'v12']
    if 'a' in cfg.lay:
        a(f'''
        s_sub_u32 {sHW}, {sWAVE}, 4
        s_and_b32 {sT0}, {sHW}, 1
        s_lshl_b32 {sT0}, {sT0}, 2
        s_xor_b32 {sT0}, {sT0}, {sROT}
        s_lshl_b32 {sT0}, {sT0}, 5
        v_xor_b32 v16, {sT0}, v4
        s_lshl_b32 {sT1}, {sHW}, 13
        s_add_u32 m0, {sT1}, {4*SLOT}
        ''')
        for jq in range(8):
            if jq == 4: a(f's_add_u32 m0, {sT1}, {4*SLOT + 4096}\ns_add_u32 {sT1}, {sT1}, 4096')
            if jq < 7: a(f'v_xor_b32 v{17+jq}, {16*(jq+1)}, v16')
            a(f'buffer_load_dwordx4 v{16+jq}, {X_}, {sT1} offen offset:{1024*(jq % 4)}{cfg.x_pol} lds')
    else:
        a(f'''
        s_sub_u32 {sHW}, {sWAVE}, 4
        s_lshl_b32 {sT1}, {sROT}, 1
        s_lshl_b32 {sT2}, {sHW}, 3
        ''')
        for jq in range(8):
            a(f'''
            s_add_u32 {sT0}, {sT2}, {jq}
            s_and_b32 {sCNT}, {sT0}, 15
            v_xor_b32 v{16+jq}, {sCNT}, v0
            v_add_u32 v{16+jq}, {sT1}, v{16+jq}
            s_lshl_b32 {sT0}, {sT0}, 10
            v_and_b32 v{16+jq}, 63, v{16+jq}
            s_add_u32 m0, {sT0}, {4*SLOT}
            v_lshlrev_b32 v{16+jq}, 4, v{16+jq}
            buffer_load_dwordx4 v{16+jq}, {X_}, {sT0} offen{cfg.x_pol} lds
            ''')
    a(f'''
    v_xor_b32 v10, v2, v1
    v_lshlrev_b32 v10, 4, v10
    v_lshl_add_u32 v5, v1, 8, v10
    v_xor_b32 v6, 64, v5
    v_xor_b32 v7, 128, v5
    v_xor_b32 v8, 192, v5
    v_lshlrev_b32 v10, 1, v1
    v_xor_b32 v10, v10, v2
    v_lshlrev_b32 v10, 4, v10
    v_lshl_add_u32 v9, v1, 8, v10
    v_xor_b32 v12, 128, v9
    s_lshl_b32 {sBASE}, {sHW}, 12
    ''')
    if cfg.kvrot:
        a(cfg.kvrot.replace('B', sB).replace('H', sHKV).replace('R', sBR).replace(';', '\n'))
        a(f's_and_b32 s86, s86, 15\ns_lshl_b32 s86, s86, 14\ns_add_u32 s86, s86, {sBASE}')
    if cfg.near_kv:
        a(f's_cmp_eq_u32 {sGRP}, 0\ns_cbranch_scc1 L_helper')
        for j in range(cfg.g1_first):
            a(f's_add_u32 m0, {sBASE}, {j*SLOT}')
            a(f's_add_u32 {sT0}, {sBASE}, {(j//2)*SLOT}')
            for jj in range(4):
                va, srd = (vKD[jj], K_) if j % 2 == 0 else (vVD[jj & 1], V_)
                a(f'buffer_load_dwordx4 {va}, {srd}, {sT0} offen offset:{1024*jj}{cfg.kv_pol} lds')
    a('s_branch L_hkv' if 'b' in cfg.lay else 's_branch L_helper')
    a('L_compute:')

    vWD = ['v112', 'v113']
    vWA = lambda region, nb: f'v{114 + 2 * region + nb}'
    vOA, vPA0 = 'v120', 121
    oproj_addr = f'''
    v_lshrrev_b32 v112, 3, v0
    v_and_b32 v113, 7, v0
    v_bfe_u32 v114, v0, 4, 1
    v_lshlrev_b32 v114, 2, v114
    v_xor_b32 v113, v113, v114
    v_lshlrev_b32 v113, 4, v113
    v_lshl_add_u32 v112, v112, 10, v113
    v_add_u32 v113, 15360, v112
    v_and_b32 v114, 1, v0
    v_bfe_u32 v115, v0, 1, 1
    v_lshlrev_b32 v114, 4, v114
    v_lshl_add_u32 v114, v115, 3, v114  ; pi*8
    v_and_b32 v115, 1, v1
    v_lshl_add_u32 v114, v115, 5, v114  ; + g*32
    v_lshl_add_u32 v114, v3, 9, v114    ; + h2*512
    v_bfe_u32 v115, v0, 2, 2
    v_lshl_add_u32 v114, v115, 7, v114  ; + r*128
    v_bfe_u32 v115, v0, 3, 1
    v_lshl_add_u32 v121, v115, 6, v114  ; + (r>>1)*64
    v_add_u32 v114, {sWL}, v121
    v_xor_b32 v115, 64, v114
    v_add_u32 v116, {4*SLOT}, v114
    v_add_u32 v117, {4*SLOT}, v115
    v_add_u32 v118, {8*SLOT}, v114
    v_add_u32 v119, {8*SLOT}, v115
    v_add_u32 v120, {OBASE}, v4
    '''.strip().split('\n')

    vWQ = ['v5', 'v6', 'v7', 'v8']
    a(f'''
    v_lshlrev_b32 v9, 2, v1
    v_xor_b32 v9, v9, v2
    v_lshlrev_b32 v9, 4, v9
    v_lshl_add_u32 v9, v1, 13, v9
    s_lshl_b32 {sT0}, {sWAVE}, 8
    v_add_u32 v5, {sT0}, v9
    v_add_u32 v6, {31744}, v5
    v_add_u32 v7, {2*31744}, v5
    v_add_u32 v8, {3*31744}, v5
    s_add_u32 {sBASE}, {sWAVE}, 6
    s_lshl_b32 {sBASE}, {sBASE}, 14
    ''')
    NQ = 6 if cfg.wq6 else 4
    if 'a' in cfg.lay: a(f's_lshl_b32 {sLIM}, {sROT}, 17')
    a(f's_lshl_b32 {sVB}, {sWAVE}, 13\ns_add_u32 {sVB}, {sVB}, {4*SLOT}')
    def wq_pre(i):
        if 'a' in cfg.lay:
            return [(f's_add_u32 m0, {sBASE}, {(i % NQ) * 4096}' if i % NQ < 4 else f's_add_u32 m0, {sVB}, {(i % NQ - 4) * 4096}'),
                    f's_xor_b32 {sT0}, {sLIM}, {i << 17}']
        return [f's_add_u32 {sT0}, {sROT}, {i}', f's_and_b32 {sT0}, {sT0}, 31',
                (f's_add_u32 m0, {sBASE}, {(i % NQ) * 4096}' if i % NQ < 4 else f's_add_u32 m0, {sVB}, {(i % NQ - 4) * 4096}'),
                f's_lshl_b32 {sT0}, {sT0}, 17']
    def wq_dma(j, i=99):
        return f'buffer_load_dwordx4 {vWQ[j]}, {WQ_}, {sT0} offen offset:{1024*j}{" nt" if i < cfg.wq_nt else cfg.wq_pol} lds'
    def wq_issue(i):
        emit(wq_pre(i)); emit([wq_dma(j, i) for j in range(4)])
    if not cfg.wq_both: a(f's_cmp_eq_u32 {sGRP}, 0\ns_cbranch_scc0 L_nowq0')
    for i in range(cfg.wq_first): wq_issue(i)
    a('L_nowq0:')
    if cfg.defer == 1: a(late_srd)
    if cfg.hs0:
        a(f'''
        s_cmp_eq_u32 {sWAVE}, 0
        s_cbranch_scc0 L_noclear
        s_lshl_b32 {sT0}, {sG}, 3
        s_add_u32 {sT0}, {sT0}, {sHKV}
        s_lshl_b32 {sT0}, {sT0}, 7
        s_add_u32 {sT0}, {sT0}, {FLAG_OFF}
        v_mov_b32 v10, 0
        v_lshlrev_b32 v11, 2, v0
        s_mov_b64 exec, 0xff
        buffer_store_dword v10, v11, {WS_}, {sT0} offen sc1
        s_mov_b64 exec, -1
        L_noclear:
        ''')
    a(f'''
    v_bfe_u32 v13, v0, 2, 2          ; r
    v_and_b32 v14, 1, v0
    v_bfe_u32 v15, v0, 1, 1
    v_lshlrev_b32 v14, 4, v14
    v_lshl_add_u32 v14, v15, 3, v14  ; pi*8
    v_and_b32 v15, 1, v1             ; g
    v_lshl_add_u32 v14, v15, 5, v14  ; g*32 + pi*8
    v_lshlrev_b32 v12, 11, v3        ; 8*h2*256
    v_mul_u32_u24 v15, 320, v13      ; r*256 + r*64
    v_add3_u32 v12, v12, v15, v14
    v_add_u32 v16, {sBASE}, v12
    v_xor_b32 v17, 64, v16
    v_xor_b32 v18, 128, v16
    v_xor_b32 v19, 192, v16
    v_and_b32 v20, 31, v0            ; q
    v_xor_b32 v21, v3, v2            ; h2 ^ (q&15)
    v_lshlrev_b32 v21, 4, v21
    v_lshl_add_u32 v21, v20, 10, v21
    v_add_u32 v21, {4*SLOT}, v21
    ''')
    vTQ = ['v16', 'v17', 'v18', 'v19']
    vTQ2 = ['v21', 'v22', 'v23', 'v24']
    XF = lambda i: 128 + 4 * i
    QA = lambda blk: 64 + 16 * blk
    BUF = lambda i, blk: 32 + 16 * (i & 1) + 4 * blk
    OA = lambda blk: 128 + 16 * blk
    for m in range(1, 8):
        a(f'v_xor_b32 v{21+m}, {32*m}, v21')
    vKL, vVL, vOL = 'v29', 'v13', 'v9'
    a(f"""
    v_xor_b32 v14, v1, v2
    v_lshlrev_b32 v14, 4, v14
    v_lshl_add_u32 {vKL}, v2, 8, v14
    v_bfe_u32 v14, v0, 2, 4             ; 4g + r
    v_and_b32 v15, 7, v14
    v_lshlrev_b32 v14, 8, v14
    v_lshl_add_u32 v14, v15, 5, v14
    v_and_b32 v15, 3, v0
    v_lshl_add_u32 {vVL}, v15, 3, v14
    v_lshlrev_b32 v14, 4, v2
    v_lshl_add_u32 v14, v3, 10, v14
    v_and_b32 v15, 1, v1
    v_lshl_add_u32 {vOL}, v15, 9, v14
    v_mov_b32 v30, {hex(f32(1.4426950408889634 / 128 ** 0.5))}
    s_mov_b32 {sC}, {hex(f32(cfg.T))}
    s_barrier   ; Bx
    """)
    stamp(1)
    xread = lambda i: f'ds_read_b128 v[{XF(i)}:{XF(i)+3}], v{21 + (i & 7)} offset:{256*(i >> 3)}'
    if cfg.xov:
        assert not cfg.wq_both and not cfg.wq6
        emit([xread(0), xread(1)])
        a(f's_cmp_eq_u32 {sGRP}, 0\ns_cbranch_scc1 L_wq1')
    for i in range(2 if cfg.xov else 0, 32):
        a(xread(i))
        if i in (14, 22, 30): a('s_waitcnt lgkmcnt(7)')
    a('s_waitcnt lgkmcnt(0)')
    a('s_barrier   ; Bx2')
    a('s_barrier   ; Bw')
    stamp(2)
    if not cfg.wq_both:
        if not cfg.xov: a(f's_cmp_eq_u32 {sGRP}, 0\ns_cbranch_scc1 L_wq1')
        for i in range(cfg.wq_first): wq_issue(i)
        a('L_wq1:')
    for i in range(cfg.wq_first, NQ - 1): wq_issue(i)
    if cfg.wq6:
        a(f'v_add_u32 v21, {sVB}, v12\nv_xor_b32 v22, 64, v21\nv_xor_b32 v23, 128, v21\nv_xor_b32 v24, 192, v21')
    pre = [x.replace('v112', 'v28').replace('v113', 'v14').replace('v114', 'v12').replace('v115', 'v15').replace('v121', 'v12')
           for x in oproj_addr[:7] + oproj_addr[8:20]]
    pre += [f's_lshl_b32 {sT1}, {sWAVE}, 3', f's_xor_b32 {sT1}, {sT1}, {sROT}', f's_lshl_b32 {sT1}, {sT1}, 10', f'v_add_u32 v11, {sT1}, {vOL}']
    if not cfg.xov: emit(pre)
    def q_mfma(i, blk):
        c = '0' if i == 0 else f'v[{QA(blk)}:{QA(blk)+15}]'
        return f'v_mfma_f32_32x32x16_bf16 v[{QA(blk)}:{QA(blk)+15}], v[{BUF(i,blk)}:{BUF(i,blk)+3}], v[{XF(i)}:{XF(i)+3}], {c}'
    for i in range(32):
        a(f's_waitcnt vmcnt({4*(min(31, i + NQ - 2) - i)})')
        if i == 0: stamp(3)
        if i in (4, 8, 16, 24): stamp(40 + i // 4)
        for blk in range(4):
            for u in range(2):
                r = BUF(i, blk) + 2 * u
                a(f'ds_read_b64_tr_b16 v[{r}:{r+1}], {(vTQ if i % NQ < 4 else vTQ2)[blk]} offset:{(i % NQ % 4)*4096 + 1024*u}')
        if cfg.xov and i < 6:
            lab = a.label('L_nx')
            a(f's_cmp_eq_u32 {sGRP}, 0\ns_cbranch_scc0 {lab}')
            emit([xread(j) for j in range(2 + 5 * i, 7 + 5 * i)])
            a(f'{lab}:')
        if cfg.xov and 8 <= i < 14: emit(pre[4 * (i - 8):4 * (i - 7)])
        dma = i + NQ - 1 < 32
        if dma: emit(wq_pre(i + NQ - 1))
        for blk in range(4):
            if 0 < i < 31 or (i == 31 and blk == 0): a(q_mfma(i - 1, blk))
            if dma: a(wq_dma(blk, i + NQ - 1))
            if 18 <= i < 26:
                for z in range(2):
                    a(f'v_mov_b32 v{128 + 8*(i-18) + 2*blk + z}, 0')
        if i + NQ - 1 == 31: a('s_barrier   ; Bk')
        a('s_waitcnt lgkmcnt(0)')
    a('s_barrier   ; Bq')
    a(f"""
    s_mov_b32 {sCNT}, {14 if cfg.fin2 else 13}
    s_mov_b32 {sBASE}, 0
    s_mov_b32 {sLIM}, {10*SLOT}
    """)
    QF = lambda ks: 32 + 4 * ks
    S = lambda kb: 64 + 16 * kb
    P = lambda i: 96 + 4 * i if i < 2 else 192 + 4 * (i - 2)
    CB = lambda u: 112 + 4 * u
    LA = lambda u: 104 + 4 * u
    ON = 124
    KF = lambda i: 192 + 4 * i
    VF = lambda t: 224 + 4 * t
    OT = lambda t, u: 128 + 8 * t + 4 * u
    vKA = ['v16', 'v17', 'v18', 'v19']
    vVA = ['v%d' % (20 + t) for t in range(8)]
    M16 = lambda d, x, y, c: f'v_mfma_f32_16x16x32_bf16 v[{d}:{d+3}], v[{x}:{x+3}], v[{y}:{y+3}], ' + (f'v[{c}:{c+3}]' if c is not None else '0')
    def qk(sb, j, first=False):
        s_, kt, u = j >> 2, (j >> 1) & 1, j & 1
        d = S(sb) + 8 * u + 4 * kt
        return M16(d, KF(2 * s_ + kt), QF(2 * s_ + u), d if s_ else (None if first else CB(u)))
    pv = lambda t, u, p: M16(OT(t, u), VF(t), P(p), OT(t, u))
    rsum = lambda u, p: M16(LA(u), ON, P(p), LA(u))
    kread = lambda i, kb: f'ds_read_b128 v[{KF(i)}:{KF(i)+3}], {vKA[i >> 1]} offset:{8192*kb + 4096*(i & 1)}'
    vread = lambda j, kb: f'ds_read_b64_tr_b16 v[{VF(j >> 1)+2*(j & 1)}:{VF(j >> 1)+2*(j & 1)+1}], {vVA[j >> 1]} offset:{8192*kb + 4096*(j & 1)}'
    exp = lambda r: f'v_exp_f32 v{r}, v{r}'
    cvt = lambda p, d, r: f'v_cvt_pk_bf16_f32 v{P(p)+d}, v{r}, v{r+1}'
    def maxchain(sb):
        b = S(sb)
        l = [f'v_max3_f32 v14, v{b}, v{b+1}, v{b+2}', f'v_max3_f32 v15, v{b+3}, v{b+8}, v{b+9}',
             f'v_max3_f32 v14, v14, v{b+10}, v{b+11}', f'v_max3_f32 v15, v15, v{b+4}, v{b+5}',
             f'v_max3_f32 v14, v14, v{b+6}, v{b+7}', f'v_max3_f32 v15, v15, v{b+12}, v{b+13}',
             f'v_max3_f32 v14, v14, v{b+14}, v{b+15}', f'v_max_f32 v14, v14, v15']
        return l
    def rowmax(sb, floor):
        l = []
        for u, (x, y) in enumerate((('v14', 'v15'), ('v6', 'v7'))):
            b = S(sb) + 8 * u
            l += [f'v_max3_f32 {x}, v{b}, v{b+1}, v{b+2}', f'v_max3_f32 {y}, v{b+3}, v{b+4}, v{b+5}',
                  f'v_max3_f32 {x}, {x}, v{b+6}, v{b+7}']
        l += ['v_max_f32 v14, v14, v15', 'v_max_f32 v6, v6, v7', 'v_mov_b32 v15, v14', 'v_mov_b32 v7, v6', 's_nop 0',
              'v_permlane32_swap_b32 v14, v15', 'v_permlane32_swap_b32 v6, v7',
              'v_max_f32 v14, v14, v15', 'v_max_f32 v6, v6, v7', 'v_mov_b32 v15, v14', 'v_mov_b32 v7, v6', 's_nop 0',
              'v_permlane16_swap_b32 v14, v15', 'v_permlane16_swap_b32 v6, v7']
        l += ['v_max3_f32 v14, v14, v15, 0', 'v_max3_f32 v6, v6, v7, 0'] if floor else ['v_max_f32 v14, v14, v15', 'v_max_f32 v6, v6, v7']
        return l
    KA = [f'v_add_u32 {vKA[0]}, {sBASE}, {vKL}'] + [f'v_xor_b32 {vKA[i]}, {64*i}, {vKA[0]}' for i in range(1, 4)]
    VA = [f'v_add_u32 {vVA[0]}, {sVB}, {vVL}'] + [f'v_xor_b32 {vVA[t]}, {32*t}, {vVA[0]}' for t in range(1, 8)]
    cmp_ = f'v_cmp_lt_f32 vcc, {sC}, v14'
    def branch(tag):
        a(f's_cbranch_vccnz L_slow{tag}')
        a(f'L_back{tag}:')
    def mini(cur, x, barrier=False, vnext=True, kreads=True):
        nx = cur ^ 1; b = S(cur)
        Rc = {j: vread(j, cur) for j in range(9, 16)}
        Rn = [vread(j, nx) if vnext else None for j in range(9)]
        D = [kread(i, cur) if kreads else None for i in range(8)]
        E = [exp(b + e) for e in range(16)]
        C = [cvt(d >> 2, d & 3, b + 2 * d) for d in range(8)]
        X = maxchain(nx)
        W = lambda n: f's_waitcnt lgkmcnt({n})'
        g = {0: [Rc[9], E[0]], 1: [E[1]], 2: [Rc[10], E[2]], 3: [D[0], E[3]], 4: [Rc[11], E[4]], 5: [D[1], E[5]],
             6: [Rc[12], E[6]], 7: [W(6 if kreads else 4), E[7]], 8: [D[2], Rc[13], C[0]], 9: [D[3], C[1]], 10: [Rc[14], C[2]], 11: [D[4], C[3]],
             12: [Rc[15], E[8]], 13: [D[5], E[9]], 14: [E[10]], 15: [D[6], E[11]],
             16: [E[12]], 17: [D[7], E[13]], 18: [E[14]], 19: [E[15], W(3 if kreads else 0)], 20: [C[4], C[5]], 21: [C[6], C[7]],
             22: [X[0]], 23: [X[1]], 's0': ([W(0)] if kreads else []) + (['s_barrier   ; k(t+2): V(t+1), K(t+2) landed'] if barrier else []),
             24: [Rn[0], X[2]], 25: [Rn[1], X[3]], 26: [Rn[2], X[4]], 27: [Rn[3], X[5]], 28: [Rn[4], X[6]], 29: [Rn[5], X[7]],
             30: [Rn[6], cmp_], 31: [Rn[7]], 's1': [Rn[8]]}
        def G(k): emit([y for y in g[k] if y] + x.get(k, []))
        for j in range(16):
            a(qk(nx, j)); G(j)
        for t in range(8):
            a(pv(t, 0, 0)); G(16 + t)
        a(rsum(0, 0)); G('s0')
        for t in range(8):
            a(pv(t, 1, 1)); G(24 + t)
        a(rsum(1, 1)); G('s1')
    vx = {1: [VA[0]], 9: [VA[1]], 10: [VA[2]], 11: [VA[3]], 14: [VA[4]], 16: [VA[5]], 22: [VA[6]], 23: [VA[7]]}
    def step(tags, last):
        if last:
            mini(0, {1: [f's_add_u32 {sVB}, {sBASE}, {SLOT}']})
        else:
            mini(0, {1: [f's_add_u32 {sVB}, {sBASE}, {SLOT}'], 9: [f's_add_u32 {sBASE}, {sBASE}, {2*SLOT}'],
                     10: [f's_cmp_eq_u32 {sBASE}, {sLIM}'], 11: [f's_cselect_b32 {sBASE}, 0, {sBASE}'],
                     14: [f's_cselect_b32 {sLIM}, {8*SLOT}, {sLIM}'],
                     16: [f's_cmp_eq_u32 {sCNT}, {sCHK}', 's_cbranch_scc0 L_nock', f'buffer_load_dword v5, v30, {DBG_}, 0 offen sc1', 'L_nock:'] if cfg.fin2 else [], 22: [f's_sub_u32 {sCNT}, {sCNT}, 1']})
        branch(tags[0])
        if last:
            mini(1, vx, False, False)
        else:
            mini(1, {**vx, 18: [KA[0]], 31: [KA[1]], 's1': [KA[2]], 's0': [], 20: [], 27: [], 26: [], 29: [KA[3]]}, True)
        branch(tags[1])
    class Lds:
        def __init__(s): s.ops = []; s.done = 0
        def rd(s, ins, tag=None): a(ins); s.ops.append(tag)
        def need(s, tag):
            k = s.ops.index(tag) + 1
            if k > s.done:
                a(f's_waitcnt lgkmcnt({len(s.ops) - k})'); s.done = k
    def qscale(ks):
        src = QA(ks >> 1) + 8 * (ks & 1)
        return [f'v_pk_mul_f32 v[{src+2*d}:{src+2*d+1}], v[{src+2*d}:{src+2*d+1}], v[30:31] op_sel_hi:[1,0]' for d in range(4)]
    def qpack(ks):
        src = QA(ks >> 1) + 8 * (ks & 1)
        return [f'v_cvt_pk_bf16_f32 v{QF(ks)+d}, v{src+2*d}, v{src+2*d+1}' for d in range(4)]
    def qswap(s_):
        x, y = QF(2 * s_), QF(2 * s_ + 1)
        return [f'v_permlane32_swap_b32 v{x+d}, v{y+d}' for d in range(4)] + [f'v_permlane16_swap_b32 v{x+d}, v{y+d}' for d in range(4)]
    a(q_mfma(31, 0)); emit(KA)
    a(q_mfma(30, 1)); a(f's_mov_b32 {sVB}, {SLOT}'); emit(VA[:3])
    a(q_mfma(31, 1)); emit(VA[3:6])
    a(q_mfma(30, 2)); emit(qscale(0))
    a(q_mfma(31, 2)); emit(qscale(1))
    a(q_mfma(30, 3)); emit(qscale(2))
    a(q_mfma(31, 3)); emit(qscale(3))
    stamp(4)
    for ks in range(4): emit(qpack(ks))
    a('s_barrier   ; k0')
    stamp(8)
    L = Lds()
    for i in range(8): L.rd(kread(i, 0), ('a', i))
    a(f's_mov_b32 {sBASE}, {2*SLOT}')
    emit(qscale(4) + qscale(5)); emit(qswap(0)); emit(qpack(4) + qpack(5))
    emit(qscale(6) + qscale(7)); emit(qswap(1)); emit(qpack(6) + qpack(7))
    late = VA[6:] + qswap(2) + qswap(3) + [f'v_mov_b32 v{LA(0)+i}, 0' for i in range(8)] + [f'v_mov_b32 v{ON+i}, 0x3f803f80' for i in range(4)]
    for j in range(16):
        L.need(('a', j >> 1))
        a(qk(0, j, True))
        if j & 1: L.rd(kread(j >> 1, 1), ('b', j >> 1))
        emit(late[:2]); del late[:2]
    assert not late
    emit(KA)
    a('s_nop 2')
    rm = rowmax(0, False)
    emit(rm[:10])
    a('s_waitcnt lgkmcnt(0)')
    a('s_barrier   ; k1')
    for j in range(9): a(vread(j, 0))
    emit(rm[11:])
    for u, m in enumerate(('v14', 'v6')):
        emit([f'v_sub_f32 v{CB(u)+i}, 0, {m}' for i in range(4)])
        emit([f'v_sub_f32 v{S(0)+8*u+i}, v{S(0)+8*u+i}, {m}' for i in range(8)])
    if 'l' in cfg.align: a('.p2align 6')
    if 'L' in cfg.align: a('.p2align 6\ns_nop 0')
    if cfg.hs0:
        a(f'''
        s_lshl_b32 {sT0}, {sG}, 3
        v_mov_b32 v30, {sT0}
        v_mov_b32 v5, 8
        s_mov_b32 {sCHK}, 99
        s_cmp_eq_u32 {sWAVE}, 0
        s_cbranch_scc0 L_noann
        s_mov_b32 {sCHK}, 1
        v_mov_b32 v10, 1
        s_mov_b64 exec, 1
        buffer_atomic_add v10, v30, {DBG_}, 0 offen sc1
        s_mov_b64 exec, -1
        L_noann:
        ''')
    a('L_loop:')
    step('AB', False)
    a('s_cbranch_scc0 L_loop')
    def norm(tp, u):
        inv = ('v[14:15]', 'v[6:7]')[u]; dst = 64 + 8 * tp + 4 * u
        l = []
        for k in range(2):
            src = OT(2 * tp + k, u)
            l += [f'v_pk_mul_f32 v[{src+e}:{src+e+1}], v[{src+e}:{src+e+1}], {inv} op_sel_hi:[1,0]' for e in (0, 2)]
        for k in range(2):
            src = OT(2 * tp + k, u)
            l += [f'v_cvt_pk_bf16_f32 v{dst+2*k+d}, v{src+2*d}, v{src+2*d+1}' for d in range(2)]
        return l + [f'ds_write_b128 {vOW[tp]}, v[{dst}:{dst+3}] offset:{OBASE + 256*u}']
    vOW = ['v11', 'v16', 'v17', 'v18']
    if cfg.fin2:
        a('L_last:')
        a('L_tail:')
        assert cfg.hs0
        fill = [f'v_xor_b32 {vOW[h]}, {h << 11}, v11' for h in range(1, 4)] + \
               ['v_mov_b32 v112, v28', 'v_add_u32 v113, 7168 + 8192, v28', 'v_mov_b32 v114, v12'] + oproj_addr[20:]
        slots = [3, 5, 8, 9, 11, 13, 14, 15, 16, 17, 18, 22]
        assert len(fill) == len(slots)
        mini(0, {g_: [f_] for g_, f_ in zip(slots, fill)}, False, True, False)
        branch('C')
        stamp(39)
        b1 = S(1)
        E1 = [exp(b1 + e) for e in range(16)]
        C1 = [cvt(d >> 2, d & 3, b1 + 2 * d) for d in range(8)]
        for e in range(8):
            a(E1[e])
            if e < 7: a(vread(9 + e, 1))
            if e == 5: a('s_waitcnt lgkmcnt(6)')
        emit(C1[:4])
        emit([E1[8], E1[9]])
        a(rsum(0, 0))
        for t in range(8):
            if t == 4: a('s_waitcnt lgkmcnt(0)')
            a(pv(t, 0, 0))
            if t < 6: a(E1[10 + t])
            if t == 6: emit(C1[4:6])
            if t == 7: emit(C1[6:])
        a(f'v_rcp_f32 v14, v{LA(0)}')
        a('s_nop 0')
        a(rsum(1, 1))
        pend = sum([norm(tp, 0) for tp in range(4)], [])
        for t in range(8):
            a(pv(t, 1, 1))
            if t == 4: a(f'v_rcp_f32 v6, v{LA(1)}')
            emit(pend[:cfg.nrm]); del pend[:cfg.nrm]
        stamp(5)
        emit(pend)
        for tp in range(4): emit(norm(tp, 1))
    else:
        a('L_last:')
        if cfg.hs0:
            a(f's_cmp_eq_u32 {sWAVE}, 0\ns_cbranch_scc0 L_nock\nbuffer_load_dword v5, v30, {DBG_}, 0 offen sc1\nL_nock:')
        step('DE', True)
        a('L_tail:')
        b0, b1 = S(0), S(1)
        vOW = ['v11', 'v16', 'v17', 'v18']
        fill = [f'v_xor_b32 {vOW[h]}, {h << 11}, v11' for h in range(1, 4)] + \
               ['v_mov_b32 v112, v28', 'v_add_u32 v113, 15360, v28', 'v_mov_b32 v114, v12'] + oproj_addr[20:]
        for j in range(16):
            a(qk(1, j)); emit([exp(b0 + j)])
        emit(fill[:7]); del fill[:7]
        def take(n):
            l = fill[:n]; del fill[:n]; return l
        emit(maxchain(1))
        a(cmp_)
        branch('C')
        emit([cvt(0, d, b0 + 2 * d) for d in range(4)])
        stamp(38)
        a('s_barrier   ; k16: V15 landed')
        stamp(39)
        L = Lds()
        for j in range(14): L.rd(vread(j, 0), ('a', j))
        emit([cvt(1, d, b0 + 8 + 2 * d) for d in range(4)])
        E1 = [exp(b1 + e) for e in range(16)]
        emit(E1[:2])
        for t in range(8):
            if t % 2 == 0: L.need(('a', 2 * t + 3))
            a(pv(t, 0, 0))
            if t < 2: L.rd(vread(14 + t, 0), ('a', 14 + t))
            a(E1[2 + t])
        a(rsum(0, 0)); a(E1[10])
        C2 = [cvt(2, d, b1 + 2 * d) for d in range(4)]; C3 = [cvt(3, d, b1 + 8 + 2 * d) for d in range(4)]
        fl = [[E1[11]], [E1[12]], [E1[13]], [E1[14]], [E1[15]], C2[:2], C2[2:], C3[:2]]
        for t in range(8):
            a(pv(t, 1, 1))
            if t == 7: L.need(('b', 1))
            L.rd(vread(2 * t, 1), ('b', 2 * t)); L.rd(vread(2 * t + 1, 1), ('b', 2 * t + 1))
            emit(fl[t])
        a(rsum(1, 1)); emit(C3[2:])
        a(rsum(0, 2)); emit(take(2))
        a(rsum(1, 3)); emit(take(2))
        def norm(tp, u):
            inv = ('v[14:15]', 'v[6:7]')[u]; dst = 64 + 8 * tp + 4 * u
            l = []
            for k in range(2):
                src = OT(2 * tp + k, u)
                l += [f'v_pk_mul_f32 v[{src+e}:{src+e+1}], v[{src+e}:{src+e+1}], {inv} op_sel_hi:[1,0]' for e in (0, 2)]
            for k in range(2):
                src = OT(2 * tp + k, u)
                l += [f'v_cvt_pk_bf16_f32 v{dst+2*k+d}, v{src+2*d}, v{src+2*d+1}' for d in range(2)]
            return l + [f'ds_write_b128 {vOW[tp]}, v[{dst}:{dst+3}] offset:{OBASE + 256*u}']
        pend = []
        for t in range(8):
            if t % 2 == 0: L.need(('b', 2 * t + 3))
            if t == 2: emit([f'v_rcp_f32 v14, v{LA(0)}', f'v_rcp_f32 v6, v{LA(1)}'])
            if t == 3: pend += norm(0, 0)[:2]
            if t == 4: pend += norm(0, 0)[2:] + norm(0, 1)
            if t == 6: pend += norm(1, 0) + norm(1, 1)
            for u in range(2):
                a(pv(t, u, 2 + u))
                if t < 2: emit(take(1) or ['s_nop 0'])
                emit(pend[:cfg.nrm]); del pend[:cfg.nrm]
        assert not fill
        stamp(5)
        emit(pend)
        for tp in (2, 3):
            emit(norm(tp, 0) + norm(tp, 1))
    if cfg.hs0:
        a(f'''
        s_mov_b32 {sSPIN}, 0
        s_waitcnt vmcnt(0)
        L_chk:
        v_cmp_gt_u32 vcc, 8, v5
        s_cbranch_vccz L_chkd
        s_add_u32 {sSPIN}, {sSPIN}, 1
        s_cmp_gt_u32 {sSPIN}, 0x40000
        s_cbranch_scc1 L_chkd
        buffer_load_dword v5, v30, {DBG_}, 0 offen sc1
        s_waitcnt vmcnt(0)
        s_branch L_chk
        L_chkd:
        ''')
    if 'c' in cfg.align: a('.p2align 6')
    if 'C' in cfg.align: a('.p2align 6\ns_nop 0')
    a('s_waitcnt lgkmcnt(0)')
    a('s_barrier   ; Bo')
    stamp(6)
    AF = lambda i, nb: (32, 40, 96)[i % 3] + 4 * nb
    BF = lambda i: 48 + 4 * (i & 3)
    PA = lambda nb: 64 + 16 * nb
    PK = lambda idx, nb: 128 + 8 * idx + 4 * nb
    sWO = sCNT
    def w_pre(m):
        return [f's_add_u32 m0, {sWL}, {WSLOT[m % 8]*SLOT}', f's_xor_b32 {sWO}, {sWX}, {woff(m)}']
    def w_dma(hf, so=sT0, idx=99):
        return f'buffer_load_dwordx4 {vWD[hf]}, {WO_}, {so} offen offset:{1024*hf}{" nt" if idx < cfg.wo_nt else cfg.wo_pol} lds'
    def o_mfma(idx, nb, areg, first=False):
        c = '0' if first else f'v[{PA(nb)}:{PA(nb)+15}]'
        return f'v_mfma_f32_32x32x16_bf16 v[{PA(nb)}:{PA(nb)+15}], v[{areg}:{areg+3}], v[{BF(idx)}:{BF(idx)+3}], {c}'
    bread = lambda idx: f'ds_read_b128 v[{BF(idx)}:{BF(idx)+3}], {vOA} offset:{1024*idx}'
    def areads(idx, m):
        sl = WSLOT[m % 8]
        return [f'ds_read_b64_tr_b16 v[{AF(idx,nb)+2*u}:{AF(idx,nb)+2*u+1}], {vWA(sl // 4, nb)} offset:{(sl % 4)*SLOT + 1024*u}'
                for nb in range(2) for u in range(2)]
    if cfg.cprio: a(f's_setprio {cfg.cprio}')
    emit(w_pre(7))
    emit([bread(0)] + areads(0, 0))
    emit([w_dma(0, sWO), w_dma(1, sWO)])
    emit([bread(1)] + areads(1, 1))
    for m in range(32):
        if m in (4, 8, 12, 16, 20, 24, 28): stamp(47 + m // 4)
        if m + 2 < 32:
            if m + 2 >= 7: a(f's_waitcnt vmcnt({2*(min(31, m + 7) - (m + 2))})')
            emit([bread(m + 2)] + areads(m + 2, m + 2))
        dma = m + 8 < 32
        if dma: emit(w_pre(m + 8))
        a(f's_waitcnt lgkmcnt({5 * min(2, 31 - m)})')
        a(o_mfma(m, 0, AF(m, 0), m == 0))
        if dma: a(w_dma(0, sWO))
        a(o_mfma(m, 1, AF(m, 1), m == 0))
        if dma: a(w_dma(1, sWO))
    def handoff(tg):
        a(f'L_pub{tg}:')
        stamp(7)
        if cfg.bf16p:
            a(f"""
            s_lshl_b32 {sT0}, {sG}, 3
            s_add_u32 {sT1}, {sT0}, {sWAVE}
            s_lshl_b32 {sT2}, {sT1}, 3
            s_add_u32 {sT2}, {sT2}, {sHKV}
            s_lshl_b32 {sT2}, {sT2}, 12
            s_lshl_b32 {sT1}, {sT1}, 7
            s_add_u32 {sT1}, {sT1}, {FLAG_OFF}
            s_lshl_b32 {sC}, {sHKV}, 2
            s_add_u32 {sT1}, {sT1}, {sC}
            s_add_u32 {sT0}, {sT0}, {sHKV}        ; g*8 + own
            v_mov_b32 v10, 1
            v_mov_b32 v11, 0
            """)
            for pc in range(4):
                for d in range(4):
                    a(f'v_cvt_pk_bf16_f32 v{96+4*pc+d}, v{64+8*pc+2*d}, v{65+8*pc+2*d}')
                a(f'buffer_store_dwordx4 v[{96+4*pc}:{99+4*pc}], v4, {WS_}, {sT2} offen offset:{1024*pc} sc1')
            a(f"""
            v_lshlrev_b32 v12, 2, v0
            s_lshl_b32 {sCHK}, {sT0}, 7
            s_add_u32 {sCHK}, {sCHK}, {FLAG_OFF}
            s_lshl_b32 {sT0}, {sT0}, 15
            s_lshr_b32 {sC}, {sWAVE}, 1
            s_lshl_b32 {sT2}, {sC}, 10
            s_add_u32 {sT0}, {sT0}, {sT2}
            s_and_b32 {sT2}, {sWAVE}, 1
            s_lshl_b32 {sCNT}, {sT2}, 8
            s_add_u32 {sT0}, {sT0}, {sCNT}
            v_bfe_u32 v14, v0, 4, 1
            v_lshlrev_b32 v15, 4, v2
            v_lshl_add_u32 v15, v14, 9, v15
            v_lshl_add_u32 v15, v3, 12, v15
            v_lshlrev_b32 v20, 11, v2
            v_lshl_add_u32 v20, v14, 4, v20
            v_lshl_add_u32 v20, v3, 3, v20
            s_lshl_b32 {sC}, {sC}, 5
            s_lshl_b32 {sT2}, {sT2}, 15
            s_add_u32 {sC}, {sC}, {sT2}
            s_waitcnt vmcnt(0)
            s_mov_b64 exec, 1
            buffer_store_dword v10, v11, {WS_}, {sT1} offen sc1
            s_mov_b64 exec, 0xff
            s_mov_b32 {sSPIN}, 0
            """)
            stamp(56)
            if cfg.poll2:
                a(f"""
                buffer_load_dword v13, v12, {WS_}, {sCHK} offen sc1
                L_poll{tg}:
                buffer_load_dword v16, v12, {WS_}, {sCHK} offen sc1
                s_waitcnt vmcnt(1)
                v_cmp_ne_u32 vcc, 1, v13
                s_cbranch_vccz L_polled{tg}
                buffer_load_dword v13, v12, {WS_}, {sCHK} offen sc1
                s_add_u32 {sSPIN}, {sSPIN}, 1
                s_cmp_gt_u32 {sSPIN}, 0x40000
                s_cbranch_scc1 L_polled{tg}
                s_waitcnt vmcnt(1)
                v_cmp_ne_u32 vcc, 1, v16
                s_cbranch_vccnz L_poll{tg}
                L_polled{tg}:
                s_mov_b64 exec, -1
                """)
            else:
                if cfg.poll1 >= 0: a(f's_cmp_eq_u32 {sWAVE}, {cfg.poll1}\ns_cbranch_scc0 L_polled{tg}')
                a(f"""
                L_poll{tg}:
                buffer_load_dword v13, v12, {WS_}, {sCHK} offen sc1
                s_add_u32 {sSPIN}, {sSPIN}, 1
                s_cmp_gt_u32 {sSPIN}, 0x40000
                s_cbranch_scc1 L_polled{tg}
                s_waitcnt vmcnt(0)
                v_cmp_ne_u32 vcc, 1, v13
                """)
                if cfg.psleep:
                    a(f's_cbranch_vccz L_polled{tg}\ns_sleep {cfg.psleep}\ns_branch L_poll{tg}')
                else:
                    a(f's_cbranch_vccnz L_poll{tg}')
                a(f'L_polled{tg}:\ns_mov_b64 exec, -1')
                if cfg.poll1 >= 0: a('s_barrier')
            stamp(57)
            for p in range(4):
                a(f'buffer_load_dwordx4 v[{96+4*p}:{99+4*p}], v15, {WS_}, {sT0} offen sc1')
                if p < 3: a(f's_add_u32 {sT0}, {sT0}, 8192')
            a(f's_mov_b32 {sT1}, 0xffff0000')
            for p in range(4):
                a(f's_waitcnt vmcnt({3-p})')
                for d in range(4):
                    lo, hi = (64 + 2 * d, 65 + 2 * d) if p == 0 else (72 + 2 * d, 73 + 2 * d)
                    a(f'v_lshlrev_b32 v{lo}, 16, v{96+4*p+d}')
                    a(f'v_and_b32 v{hi}, {sT1}, v{96+4*p+d}')
                if p:
                    for e in range(8):
                        a(f'v_add_f32 v{64+e}, v{64+e}, v{72+e}')
            a('s_nop 0')
            for e in range(4):
                a(f'v_permlane32_swap_b32 v{64+e}, v{68+e}')
            for e in range(4):
                a(f'v_add_f32 v{64+e}, v{64+e}, v{68+e}')
            a(f"""
            v_cvt_pk_bf16_f32 v96, v64, v65
            v_cvt_pk_bf16_f32 v97, v66, v67
            buffer_store_dwordx2 v[96:97], v20, {OUT_}, {sC} offen{cfg.out_pol}
            """)
        else:
            a(f'''
            s_lshl_b32 {sT0}, {sG}, 3
            s_add_u32 {sT1}, {sT0}, {sWAVE}
            s_lshl_b32 {sT2}, {sT1}, 3
            s_add_u32 {sT2}, {sT2}, {sHKV}
            s_lshl_b32 {sT2}, {sT2}, 13
            s_add_u32 {sCNT}, {sT2}, 4096
            s_lshl_b32 {sT1}, {sT1}, 7
            s_add_u32 {sT1}, {sT1}, {FLAG_OFF}
            s_lshl_b32 {sC}, {sHKV}, 2
            s_add_u32 {sT1}, {sT1}, {sC}
            s_add_u32 {sT0}, {sT0}, {sHKV}        ; g*8 + own
            v_mov_b32 v10, 1
            v_mov_b32 v11, 0
            v_lshlrev_b32 v12, 2, v0
            ''')
            for pc in range(8):
                so = sT2 if pc < 4 else sCNT
                a(f'buffer_store_dwordx4 v[{64+4*pc}:{67+4*pc}], v4, {WS_}, {so} offen offset:{1024*(pc % 4)} sc1')
            a(f'''
            s_lshl_b32 {sCHK}, {sT0}, 7
            s_add_u32 {sCHK}, {sCHK}, {FLAG_OFF}
            s_lshl_b32 {sT0}, {sT0}, 16
            s_lshl_b32 {sC}, {sWAVE}, 10
            s_add_u32 {sT0}, {sT0}, {sC}
            s_waitcnt vmcnt(0)
            s_mov_b64 exec, 1
            buffer_store_dword v10, v11, {WS_}, {sT1} offen sc1
            s_mov_b64 exec, 0xff
            s_mov_b32 {sSPIN}, 0
            ''')
            stamp(56)
            a(f'''
            L_poll{tg}:
            buffer_load_dword v13, v12, {WS_}, {sCHK} offen sc1
            s_add_u32 {sSPIN}, {sSPIN}, 1
            s_cmp_gt_u32 {sSPIN}, 0x40000
            s_cbranch_scc1 L_polled{tg}
            s_waitcnt vmcnt(0)
            v_cmp_ne_u32 vcc, 1, v13
            s_cbranch_vccnz L_poll{tg}
            L_polled{tg}:
            s_mov_b64 exec, -1
            ''')
            stamp(57)
            for p in range(8):
                a(f'buffer_load_dwordx4 v[{96+4*p}:{99+4*p}], v4, {WS_}, {sT0} offen sc1')
                if p < 7: a(f's_add_u32 {sT0}, {sT0}, 8192')
            a(f'''
            v_and_b32 v20, 31, v0
            v_lshlrev_b32 v20, 11, v20
            v_lshl_add_u32 v20, v3, 4, v20
            s_lshr_b32 {sT1}, {sWAVE}, 1
            s_lshl_b32 {sT1}, {sT1}, 5
            s_and_b32 {sT2}, {sWAVE}, 1
            s_lshl_b32 {sT2}, {sT2}, 3
            s_add_u32 {sT1}, {sT1}, {sT2}
            ''')
            for p in range(1, 8):
                a(f's_waitcnt vmcnt({7-p})')
                for d in range(4):
                    a(f'v_add_f32 v{96+d}, v{96+d}, v{96+4*p+d}')
            a(f'''
            v_cvt_pk_bf16_f32 v96, v96, v97
            v_cvt_pk_bf16_f32 v97, v98, v99
            buffer_store_dwordx2 v[96:97], v20, {OUT_}, {sT1} offen
            ''')
        if cfg.stamps:
            stamp(58)
            a('s_waitcnt vmcnt(0)')
            stamp(59); cstamp(61)
            a(f'''
            s_add_u32 s28, s28, {STAMP_OFF}
            s_addc_u32 s29, s29, 0
            s_lshl_b32 {sT0}, s2, 3
            s_add_u32 {sT0}, {sT0}, {sWAVE}
            s_lshl_b32 {sT0}, {sT0}, 8
            v_lshl_add_u32 v13, v0, 2, {sT0}
            global_store_dword v13, {vSTAMP}, s[28:29]
            ''')
    if 'd' in cfg.lay:
        handoff('C')
        a('s_endpgm')
    else:
        a('s_branch L_pub')

    a('L_helper:')
    if cfg.defer == 1: a(late_srd)
    issued = []
    R0 = 4 if cfg.wq6 else 6
    RB = lambda j, jj: 128 + 16 * (j - R0) + 4 * jj
    def kv_issue(j, inreg=False):
        if not inreg: a(f's_add_u32 m0, {sBASE}, {slot_of(j)*SLOT}')
        if cfg.kvrot:
            a(f's_add_u32 {sT0}, s86, {(j//2)*SLOT}')
            a(f's_and_b32 {sT0}, {sT0}, 0x3ffff')
        else:
            a(f's_add_u32 {sT0}, {sBASE}, {(j//2)*SLOT}')
        for jj in range(4):
            va, srd = (vKD[jj], K_) if j % 2 == 0 else (vVD[jj & 1], V_)
            if inreg:
                a(f'buffer_load_dwordx4 v[{RB(j,jj)}:{RB(j,jj)+3}], {va}, {srd}, {sT0} offen offset:{1024*jj}{cfg.kv_pol}')
            else:
                a(f'buffer_load_dwordx4 {va}, {srd}, {sT0} offen offset:{1024*jj}{cfg.kv_pol} lds')
        issued.append((('kv', j), 4))
    def rb_write(j):
        for jj in range(4):
            a(f'ds_write_b128 {("v13", "v11", "v10")[slot_of(j) // 4]}, v[{RB(j,jj)}:{RB(j,jj)+3}] offset:{(slot_of(j) % 4)*SLOT + 1024*jj}')
    def warm(lab0, lab1, tagn):
        if not cfg.warm: return
        lab = a.label('L_pc')
        a(f'''
        s_getpc_b64 s[80:81]
        {lab}:
        s_lshl_b32 {sT0}, {sB}, 2
        s_add_u32 {sT0}, {sT0}, {sHW}
        s_mul_i32 {sT0}, {sT0}, ((({lab1} - {lab0}) / 64 + 63) / 64) * 64
        v_lshl_add_u32 v32, v0, 6, {sT0}
        v_min_u32 v32, {lab1} - {lab0} - 4, v32
        s_add_u32 s80, s80, {lab0} - {lab}
        s_addc_u32 s81, s81, -1
        v_mov_b32 v33, s81
        v_add_co_u32 v32, vcc, s80, v32
        s_nop 1
        v_addc_co_u32 v33, vcc, 0, v33, vcc
        v_cmp_gt_u32 vcc, (({lab1} - {lab0}) / 64 + 63) / 64, v0
        s_and_saveexec_b64 s[82:83], vcc
        global_load_dword v34, v[32:33], off
        s_mov_b64 exec, s[82:83]
        ''')
        issued.append((('warm', tagn), 1))
    def w_resident(i):
        for own in range(2):
            a(f's_xor_b32 {sT0}, {sWX}, {woff(i + NP * own)}')
            a(f's_add_u32 m0, {sWL}, {WSLOT[i]*SLOT - (0 if own else 4 * 2048)}')
            a(f's_sub_u32 {sT0}, {sT0}, {0 if own else 512}')
            emit([w_dma(0, sT0, i + NP * own), w_dma(1, sT0, i + NP * own)])
        issued.append((('w', i), 4))
    def pw_issue(g):
        for j in range(2):
            a(f's_add_u32 m0, {sBASE}, {(8 + (g & 1))*SLOT + 2048*j}')
            a(f's_xor_b32 {sT0}, {sWX}, {woff(2*g + j)}')
            emit([w_dma(0, sT0, 2*g + j), w_dma(1, sT0, 2*g + j)])
        issued.append((('pw', g), 4))
    def pw_read(g):
        for j in range(2):
            for nb in range(2):
                for u in range(2):
                    r = PK(2 * g + j, nb) + 2 * u
                    a(f'ds_read_b64_tr_b16 v[{r}:{r+1}], v{122 + nb} offset:{(g & 1)*SLOT + 2048*j + 1024*u}')
    def smem_pref(lo, hi):
        if lo >= hi: return
        if lo == 0:
            a(f's_lshl_b32 {sT0}, {sROT}, 14\ns_lshl_b32 {sT1}, {sHW}, 13\ns_add_u32 {sT0}, {sT0}, {sT1}')
            a(f's_add_u32 s88, s52, {sT0}\ns_addc_u32 s89, s53, 0')
        for i in range(lo, hi):
            a(f's_load_dword s{90 + i % 8}, s[88:89], {(i >> 3) * 1024 + 512 + (i & 7) * 64}')
    def wait_for(*items):
        names = [x[0] for x in issued]
        k = max(names.index(it) for it in items)
        a(f's_waitcnt vmcnt({sum(x[1] for x in issued[k+1:])})')
    warm('L_start', 'L_end', 0)
    if not cfg.hs0:
        a(f'''
        s_mov_b32 {sC}, 99
        s_mov_b32 {sCHK}, 99
        s_lshl_b32 {sT0}, {sG}, 3
        v_mov_b32 v30, {sT0}
        v_mov_b32 v29, 8
        s_cmp_eq_u32 {sWAVE}, 4
        s_cbranch_scc0 L_noclear
        s_add_u32 {sT0}, {sT0}, {sHKV}
        s_lshl_b32 {sT0}, {sT0}, 7
        s_add_u32 {sT0}, {sT0}, {FLAG_OFF}
        s_and_b32 {sC}, {sB}, 3
        s_add_u32 {sC}, {sC}, 1
        s_add_u32 {sCHK}, {sC}, 9
        v_mov_b32 v27, 0
        v_mov_b32 v28, 1
        v_lshlrev_b32 v26, 2, v0
        s_mov_b64 exec, 0xff
        buffer_store_dword v27, v26, {WS_}, {sT0} offen sc1
        s_mov_b64 exec, -1
        L_noclear:
        ''')
    if cfg.hprio != 1: a(f's_setprio {cfg.hprio}')
    need = lambda k: 0 if k == 0 else min(31, 2 * k)
    free_at = lambda it: it // 2 + 1 if it % 2 == 0 else it // 2 + 2
    slot_free = lambda j: 0 if j < 10 else free_at(j - 10 if j < 18 else j - 8)
    MERGE = 17
    base_issued = list(issued)
    late_addr = oproj_addr + [f'v_add_u32 v13, {sBASE}, v4', f'v_add_u32 v11, {sBASE}, v4', f'v_add_u32 v10, {8*SLOT}, v11', f'v_add_u32 v11, {4*SLOT}, v11',
                              f'v_add_u32 v122, {sBASE}, v121', f'v_add_u32 v122, {8*SLOT}, v122', 'v_xor_b32 v123, 64, v122']
    if 'b' not in cfg.lay: a(f's_cmp_eq_u32 {sGRP}, 0\ns_cbranch_scc0 L_hkv')
    else: assert cfg.near_kv and cfg.hs0 and cfg.hprio == 1 and not cfg.warm
    EP_ = [(16, 20), (104, 108), (24, 124), (8, 12)]
    def fly(grp, k):
        l = cfg.g1_list if grp else cfg.g0_list
        if l: return int(l[min(k, len(l) - 1)])
        return cfg.g1_fly if grp else cfg.g0_fly if k < cfg.g0_sw else cfg.g0_fly2 if k < cfg.g0_sw2 else 4
    def barrier_step(k, grp, st):
        gp = k - 2 - cfg.park0
        if 0 <= gp < cfg.park:
            wait_for(('kv', need(k)), ('pw', gp))
            pw_read(gp)
            a('s_waitcnt lgkmcnt(0)')
        else:
            wait_for(('kv', need(k)))
        if grp == 1 and 1 <= k <= 5: a('s_waitcnt lgkmcnt(0)')
        if cfg.stamps == 4 and k in (14, 15, 16): stamp(33 + k - 14)
        if k == 16 and 'c' in cfg.lay:
            names = [x[0] for x in issued]
            w3 = sum(x[1] for x in issued[names.index(('w', 3)) + 1:])
            st['w3'] = w3
            assert max(cfg.w_at[:4]) < 16 and not cfg.w_at0
            if grp == 0:
                a('s_branch L_hmerge'); return
            a('L_hmerge:')
        a(f's_barrier   ; k{k}')
        stamp(8 + k)
        if 2 <= k <= 15: cstamp(23 + k)
        if grp == 1 and k == 0:
            a('s_setprio 0')
            for j in range(R0 + cfg.rb_pre, min(10, cfg.g1_pre)): rb_write(j)
            a(f's_setprio {cfg.hprio}')
        late_w = [j for j in range(10, cfg.g1_pre) if grp == 1 and max(slot_free(j), j - 9) == k]
        if 0 <= k - cfg.park0 < cfg.park: pw_issue(k - cfg.park0)
        if k and k == cfg.wtouch[grp]:
            for i in range(2):
                a(f's_xor_b32 {sT0}, {sWX}, {woff(i)}')
                a(f's_sub_u32 {sT0}, {sT0}, 512')
                for hf in range(2):
                    r = 32 + 8 * i + 4 * hf
                    a(f'buffer_load_dwordx4 v[{r}:{r+3}], {vWD[hf]}, {WO_}, {sT0} offen offset:{1024*hf}{cfg.wo_pol}')
            issued.append((('wt', 0), 4))
        while st['nxt'] < 32:
            j = st['nxt']
            if slot_free(j) > k or j > need(k + 1) + fly(grp, k): break
            kv_issue(j); st['nxt'] += 1
        if k == 16:
            if 'c' in cfg.lay: a(f's_waitcnt vmcnt({min(st["w3"], w3g0[0])})')
            else: wait_for(('w', 3))
            for i in range(4):
                emit([f'ds_read_b64_tr_b16 v[{EP_[i][nb]+2*u}:{EP_[i][nb]+2*u+1}], {vWA(WSLOT[i] // 4, nb)} offset:{(WSLOT[i] % 4)*SLOT + 1024*u}'
                      for nb in range(2) for u in range(2)])
                if i == 2: a('s_waitcnt lgkmcnt(8)')
        if late_w:
            a('s_setprio 0')
            for j in late_w: rb_write(j)
            a(f's_setprio {cfg.hprio}')
        for wi, at in enumerate(cfg.w_at if grp or not cfg.w_at0 else cfg.w_at0):
            if at == k: w_resident(wi)
        if cfg.stamps == 4 and k in (13, 14, 15): stamp(30 + k - 13)
        if k == 16:
            a('s_waitcnt lgkmcnt(0)')
        if grp == 0 and k < 4: smem_pref(min(cfg.smem[0], 32 + 8 * k), min(cfg.smem[0], 40 + 8 * k))
        if k == 11: warm('L_last', 'L_end', 1)
        if 1 <= k <= 4 and not cfg.hs0:
            lab = a.label('L_na')
            a(f's_cmp_eq_u32 {sC}, {k}\ns_cbranch_scc0 {lab}\ns_mov_b64 exec, 1')
            a(f'buffer_atomic_add v28, v30, {DBG_}, 0 offen sc1\ns_mov_b64 exec, -1\n{lab}:')
        if 10 <= k <= 13 and not cfg.hs0:
            lab = a.label('L_nc')
            a(f's_cmp_eq_u32 {sCHK}, {k}\ns_cbranch_scc0 {lab}')
            a(f'buffer_load_dword v29, v30, {DBG_}, 0 offen sc1\n{lab}:')
    states = []; w3g0 = []
    for grp in (0, 1):
        issued[:] = base_issued
        st = {}
        if grp == 0:
            for j in range(cfg.g0_pre): kv_issue(j)
            emit(late_addr)
            a(f's_waitcnt vmcnt({sum(x[1] for x in issued)})')
            a('s_barrier   ; Bx')
            stamp(1)
            if not cfg.xov:
                a('s_barrier   ; Bx2')
                a('s_barrier   ; Bw')
            smem_pref(0, min(32, cfg.smem[0]))
            a('s_barrier   ; Bk')
            top = min(6, max(5, cfg.g0_pre + 4))
            for j in range(cfg.g0_pre, min(top, cfg.g0_pre + 3)): kv_issue(j)
            a('s_barrier   ; Bq')
            for j in range(cfg.g0_pre + 3, top): kv_issue(j)
            st['nxt'] = top
            stamp(2)
        else:
            a('L_hkv:')
            if 'b' in cfg.lay and cfg.defer == 1: a(late_srd)
            if cfg.near_kv:
                issued[:] = [(('kv', j), 4) for j in range(cfg.g1_first)] + base_issued
            else:
                for j in range(cfg.g1_first): kv_issue(j)
            emit(late_addr)
            a(f's_waitcnt vmcnt({sum(x[1] for x in issued)})')
            a('s_barrier   ; Bx')
            stamp(1)
            for j in range(cfg.g1_first, 4): kv_issue(j)
            a('s_barrier   ; Bx2')
            for j in range(4, cfg.g1_pre): kv_issue(j, j >= R0)
            stamp(2)
            a('s_barrier   ; Bw')
            smem_pref(0, cfg.smem[1])
            a('s_barrier   ; Bk')
            a('s_waitcnt vmcnt(0)')
            a('s_barrier   ; Bq')
            for j in range(R0, min(R0 + cfg.rb_pre, cfg.g1_pre)): rb_write(j)
            st['nxt'] = cfg.g1_pre
        for k in range(MERGE):
            barrier_step(k, grp, st)
        assert st['nxt'] == 32
        if 'c' in cfg.lay:
            if grp == 0: w3g0.append(st['w3'])
        elif grp == 0: a('s_branch L_hmerge')
    if 'c' not in cfg.lay: a('L_hmerge:')
    for k in range(MERGE, 17):
        barrier_step(k, 1, st)
    EP = [(16, 20), (104, 108), (24, 124), (8, 12)]
    def wread(dst, slot):
        return [f'ds_read_b64_tr_b16 v[{dst[nb]+2*u}:{dst[nb]+2*u+1}], {vWA(slot // 4, nb)} offset:{(slot % 4)*SLOT + 1024*u}'
                for nb in range(2) for u in range(2)]
    def own_refill(slot, idx):
        return [f's_add_u32 m0, {sWL}, {slot*SLOT}', f's_xor_b32 {sWO}, {sWX}, {woff(idx)}', w_dma(0, sWO), w_dma(1, sWO)]
    assert NP == 16 and cfg.early
    for i in range(4 - cfg.rlate): emit(own_refill(WSLOT[i], 23 + i))
    def hs_check(cnt):
        a(f"""
        s_mov_b32 {sSPIN}, 0
        s_waitcnt vmcnt({cnt})
        L_chk:
        v_cmp_gt_u32 vcc, 8, v29
        s_cbranch_vccz L_chkd
        s_add_u32 {sSPIN}, {sSPIN}, 1
        s_cmp_gt_u32 {sSPIN}, 0x40000
        s_cbranch_scc1 L_chkd
        buffer_load_dword v29, v30, {DBG_}, 0 offen sc1
        s_waitcnt vmcnt(0)
        s_branch L_chk
        L_chkd:
        """)
    if cfg.hs0: a(f's_waitcnt vmcnt({2 * (4 - cfg.rlate)})')
    else: hs_check(8)
    a('s_barrier   ; Bo')
    stamp(6)
    W = WSLOT
    seq = [(20, W[4]), (21, W[5]), (22, W[6]), (23, W[0])] + [(i, None) for i in range(20)] + \
          [(24, W[1]), (25, W[2]), (26, W[3]), (27, W[7]), (28, W[4]), (29, W[5]), (30, W[6]), (31, W[0])]
    HE = cfg.hearly
    he = max(HE, 0)
    seq = seq[:he] + seq[4:24] + seq[he:4] + seq[24:]
    refills = [(27, W[7]), (28, W[4]), (29, W[5]), (30, W[6]), (31, W[0])]
    vm_order = [23, 24, 25, 26]
    BFs = lambda n: 48 + 4 * (n & 3)
    AFs = lambda n: ((32, 36), (40, 44), (96, 100))[n % 3]
    def reads(n):
        idx, slot = seq[n]
        l = []
        if idx >= 23:
            l.append(f's_waitcnt vmcnt({2*(len(vm_order) - 1 - vm_order.index(idx))})')
        l.append(f'ds_read_b128 v[{BFs(n)}:{BFs(n)+3}], {vOA} offset:{1024*idx}')
        if slot is not None: l += wread(AFs(n), slot)
        return l
    def refill1():
        i2, sl = refills.pop(0)
        emit(own_refill(sl, i2)); vm_order.append(i2)
    cnt = lambda n: 0 if n >= 32 else (5 if seq[n][1] is not None else 1)
    if HE < 0: a('s_setprio 0')
    emit(reads(0)); emit(reads(1))
    assert HE == 0 or not cfg.rlate
    for i in range(4 - cfg.rlate, 4): emit(own_refill(WSLOT[i], 23 + i))
    if HE >= 0: refill1()
    if HE == 0: a('s_setprio 0')
    for n in range(32):
        idx, slot = seq[n]
        if n in (4, 8, 12, 16, 20, 24, 28): stamp(47 + n // 4)
        if n + 2 < 32: emit(reads(n + 2))
        a(f's_waitcnt lgkmcnt({cnt(n + 1) + cnt(n + 2)})')
        for nb in range(2):
            areg = AFs(n)[nb] if slot is not None else (PK(idx, nb) if idx < 16 else EP[idx - 16][nb])
            c = '0' if n == 0 else f'v[{PA(nb)}:{PA(nb)+15}]'
            a(f'v_mfma_f32_32x32x16_bf16 v[{PA(nb)}:{PA(nb)+15}], v[{areg}:{areg+3}], v[{BFs(n)}:{BFs(n)+3}], {c}')
        if n < he: refill1()
        if n == he - 1: a('s_setprio 0')
        if n == cfg.hup: a('s_setprio 1')
        if n == cfg.hburst:
            assert 23 <= n <= 24
            while refills: refill1()

    handoff('')
    a('L_end:')
    a('s_endpgm')
    for tag, sb in (('A', 1), ('B', 0), ('C', 1)) if cfg.fin2 else (('A', 1), ('B', 0), ('D', 1), ('E', 0), ('C', 1)):
        a(f'L_slow{tag}:')
        emit(rowmax(sb, True))
        a('v_exp_f32 v15, -v14')
        a('v_exp_f32 v7, -v6')
        for u, (d, al) in enumerate((('v14', 'v15'), ('v6', 'v7'))):
            emit([f'v_sub_f32 v{S(sb)+8*u+r}, v{S(sb)+8*u+r}, {d}' for r in range(8)])
            if tag != 'C': emit([f'v_sub_f32 v{CB(u)+r}, v{CB(u)+r}, {d}' for r in range(4)])
            a(f'v_mul_f32 v{LA(u)}, v{LA(u)}, {al}')
            if tag == 'C' and not cfg.fin2:
                emit([f'v_mul_f32 v{S(0)+8*u+r}, v{S(0)+8*u+r}, {al}' for r in range(8)])
            for t in range(8):
                emit([f'v_mul_f32 v{OT(t,u)+r}, v{OT(t,u)+r}, {al}' for r in range(4)])
        a('s_nop 0')
        a(f's_branch L_back{tag}')

    return header([f'; @launch grid=(256,1,1) block=(512,1,1) lds={10*SLOT}']) + kernel_open(kn) + a.text() + descriptor(kn, 256, 102)

if __name__ == '__main__':
    out = sys.argv[1]
    cfg = Cfg()
    for kv in sys.argv[2:]:
        k, v = kv.split('=', 1)
        assert hasattr(cfg, k), k
        setattr(cfg, k, eval(v))
    t = gen(cfg)
    if cfg.nomfma:
        i0 = t.index('L_loop:'); i1 = t.index('L_tail:')
        t = t[:i0] + '\n'.join(('    s_nop 7' if 'v_mfma_f32_32' in l else l) for l in t[i0:i1].split('\n')) + t[i1:]
    n = hazard.check(t)
    open(out, 'w').write(t)
    print(out, 'hazards:', n, 'lines:', t.count('\n'))
```

```python
import sys, struct
from asmlib import *
import hazard

def f32(x):
    return struct.unpack('<I', struct.pack('<f', x))[0]

SLOT = 16384
FLAG_OFF = 16 * 1024 * 1024
STAMP_OFF = 128 * 1024 * 1024
OBASE = 3 * SLOT
WSLOT = [8, 9, 6, 7, 0, 1, 2, 5]

def slot_of(j):
    return j if j < 10 else (j - 10) % 8

class Cfg:
    stamps = 0
    wq_pol = ''
    wo_pol = ''
    x_pol = ''
    kv_pol = ' nt'
    w_at = (13, 14, 15, 15, 16, 16, 16)
    warm = False
    wq_first = 3
    stagger = 1
    g0_fly = 4
    g0_fly2 = 1
    g0_sw = 5
    g0_list = '3333311'
    g1_list = ''
    g0_sw2 = 99
    w_at0 = None
    g0_pre = 0
    g1_pre = 11
    hprio = 1
    park = 8
    poll2 = False
    hearly = 0
    touch = False
    wq_nt = 0
    wo_nt = 0
    xov = False
    rlate = 4
    fin2 = True
    lay = 'abcd'
    hup = 99
    defer = 2
    wtouch = (0, 0)
    hs0 = True
    hburst = 24
    hbp = 0
    poll1 = 0
    psleep = 0
    align = ''
    oprio = 3
    cprio = 0
    nrm = 4
    smem = (0, 0)
    wq6 = False
    rb_pre = 2
    out_pol = ''
    near_kv = True
    early = True
    park0 = 5
    T = 8.0
    kvrot = ''
    nomfma = False
    h_ahead = 4
    h_start = 5
    wq_both = False
    g1_first = 2
    g1_fly = 5
    bf16p = True

woff = lambda idx: ((idx >> 1) << 15) | ((idx & 1) << 13)

def gen(cfg):
    a = Asm()
    kn = NAME + '_kernel'
    def emit(l):
        for x in l: a(x)
    sWAVE, sHKV, sBR, sB, sG, sROT = 's30', 's31', 's32', 's33', 's34', 's35'
    K_, V_, X_, WQ_, WO_, WS_, OUT_, DBG_ = ['s[%d:%d]' % (36 + 4 * i, 39 + 4 * i) for i in range(8)]
    sT0, sT1, sT2, sCNT, sBASE, sLIM, sC, sCHK, sHW = 's68', 's69', 's70', 's71', 's72', 's73', 's74', 's75', 's76'
    sSPIN, sVB, sGRP, sWL, sWG, sWX = 's77', 's78', 's79', 's84', 's85', 's87'
    vSTAMP = 'v31'
    NP = 2 * cfg.park
    def stamp(i):
        if not cfg.stamps or (cfg.stamps == 2 and i not in (0, 59)) or (cfg.stamps == 3 and i not in (0, 8, 24, 6, 7, 56, 57, 58, 59)) or (cfg.stamps == 4 and i not in (0, 21, 22, 23, 24, 6, 59, 30, 31, 32, 33, 34, 35, 38)): return
        a('s_memrealtime s[100:101]')
        a('s_waitcnt lgkmcnt(0)')
        a(f'v_writelane_b32 {vSTAMP}, s100, {i}')
    def cstamp(i):
        if cfg.stamps != 1: return
        a('s_memtime s[100:101]')
        a('s_waitcnt lgkmcnt(0)')
        a(f'v_writelane_b32 {vSTAMP}, s100, {i}')

    LATE1 = f'''s_mov_b32 s54, 524288
    s_mov_b32 s55, 0x20000
    s_mov_b32 s58, {FLAG_OFF + 32768}
    s_mov_b32 s59, 0x20000
    s_mov_b32 s63, 0x20000
    s_mov_b32 s66, 256
    s_mov_b32 s67, 0x20000'''
    a(f'''
    L_start:
    {'s_memrealtime s[98:99]' if cfg.stamps else ''}
    s_cmp_ge_u32 s2, 256
    s_cbranch_scc1 L_end
    s_load_dwordx16 s[4:19], s[0:1], 0
    s_load_dwordx8 s[20:27], s[0:1], 64
    s_load_dwordx2 s[28:29], s[0:1], 96
    v_lshrrev_b32 v1, 6, v0
    v_and_b32 v0, 63, v0
    v_readfirstlane_b32 {sWAVE}, v1
    s_and_b32 {sHKV}, s2, 3
    s_lshl_b32 {sHKV}, {sHKV}, 1
    s_bfe_u32 {sBR}, s2, 0x10003
    s_add_u32 {sHKV}, {sHKV}, {sBR}
    s_bfe_u32 {sBR}, s2, 0x10002
    s_lshr_b32 {sB}, s2, 4
    s_lshl_b32 {sG}, {sBR}, 4
    s_add_u32 {sG}, {sG}, {sB}
    s_lshl_b32 {sROT}, {sB}, 1
    ''')
    a({0: f's_mov_b32 {sGRP}, 0', 1: f's_and_b32 {sGRP}, {sHKV}, 1', 2: f's_mov_b32 {sGRP}, 1'}[cfg.stagger])
    if cfg.stamps:
        a(f'v_mov_b32 {vSTAMP}, 0')
    a(f'''
    v_lshrrev_b32 v1, 4, v0          ; lane>>4
    v_and_b32 v2, 15, v0             ; lane&15
    v_lshrrev_b32 v3, 5, v0          ; h2
    v_lshlrev_b32 v4, 4, v0          ; lane*16
    s_lshl_b32 {sT0}, {sB}, 3
    s_add_u32 {sT0}, {sT0}, {sHKV}
    s_lshl_b32 {sT0}, {sT0}, 18
    s_lshl_b32 {sT1}, {sB}, 15
    s_lshl_b32 {sT2}, {sHKV}, 10
    s_mov_b32 s38, 262144
    s_mov_b32 s39, 0x20000
    s_mov_b32 s42, 262144
    s_mov_b32 s43, 0x20000
    s_mov_b32 s46, 32768
    s_mov_b32 s47, 0x20000
    s_sub_u32 s50, 0x400000, {sT2}
    s_mov_b32 s51, 0x20000
    {LATE1 if cfg.defer == 2 else ''}
    s_lshl_b32 {sWL}, {sWAVE}, 11
    s_lshl_b32 {sWG}, {sWAVE}, 7
    s_lshl_b32 {sWX}, {sROT}, 14
    s_add_u32 {sWX}, {sWX}, {sWG}
    s_waitcnt lgkmcnt(0)
    ''')
    if cfg.stamps: a(f'v_writelane_b32 {vSTAMP}, s98, 0')
    cstamp(60)
    a(f'''
    s_cmp_eq_u32 {sBR}, 0
    s_cselect_b32 s36, s6, s16
    s_cselect_b32 s37, s7, s17
    s_cselect_b32 s40, s8, s18
    s_cselect_b32 s41, s9, s19
    s_cselect_b32 s44, s4, s14
    s_cselect_b32 s45, s5, s15
    s_cselect_b32 s48, s10, s20
    s_cselect_b32 s49, s11, s21
    s_cselect_b32 s52, s12, s22
    s_cselect_b32 s53, s13, s23
    s_add_u32 s36, s36, {sT0}
    s_addc_u32 s37, s37, 0
    s_add_u32 s40, s40, {sT0}
    s_addc_u32 s41, s41, 0
    s_add_u32 s44, s44, {sT1}
    s_addc_u32 s45, s45, 0
    s_add_u32 s48, s48, {sT2}
    s_addc_u32 s49, s49, 0
    ''')
    late_srd = f'''
    s_mov_b32 s54, 524288
    s_mov_b32 s55, 0x20000
    s_mov_b32 s58, {FLAG_OFF + 32768}
    s_mov_b32 s59, 0x20000
    s_mov_b32 s63, 0x20000
    s_mov_b32 s66, 256
    s_mov_b32 s67, 0x20000
    s_lshl_b32 {sT0}, {sHKV}, 19
    s_add_u32 s52, s52, {sT0}
    s_addc_u32 s53, s53, 0
    s_mov_b32 s56, s28
    s_mov_b32 s57, s29
    s_lshl_b32 {sT0}, {sBR}, 10
    s_lshl_b32 {sT1}, {sHKV}, 7
    s_add_u32 {sT0}, {sT0}, {sT1}
    s_sub_u32 s62, 65536, {sT0}
    s_lshl_b32 {sT1}, {sB}, 16
    s_add_u32 {sT0}, {sT0}, {sT1}
    s_add_u32 s60, s24, {sT0}
    s_addc_u32 s61, s25, 0
    s_mov_b32 s64, s26
    s_mov_b32 s65, s27
    '''
    if cfg.defer == 2: late_srd = late_srd.split('s_mov_b32 s67, 0x20000')[1]
    if cfg.defer in (0, 2): a(late_srd)
    a(f'''
    s_cmp_lt_u32 {sWAVE}, 4
    s_cbranch_scc1 L_compute
    ''')
    a('s_setprio 1')
    vKD = ['v5', 'v6', 'v7', 'v8']; vVD = ['v9', 'v12']
    if 'a' in cfg.lay:
        a(f'''
        s_sub_u32 {sHW}, {sWAVE}, 4
        s_and_b32 {sT0}, {sHW}, 1
        s_lshl_b32 {sT0}, {sT0}, 2
        s_xor_b32 {sT0}, {sT0}, {sROT}
        s_lshl_b32 {sT0}, {sT0}, 5
        v_xor_b32 v16, {sT0}, v4
        s_lshl_b32 {sT1}, {sHW}, 13
        s_add_u32 m0, {sT1}, {4*SLOT}
        ''')
        for jq in range(8):
            if jq == 4: a(f's_add_u32 m0, {sT1}, {4*SLOT + 4096}\ns_add_u32 {sT1}, {sT1}, 4096')
            if jq < 7: a(f'v_xor_b32 v{17+jq}, {16*(jq+1)}, v16')
            a(f'buffer_load_dwordx4 v{16+jq}, {X_}, {sT1} offen offset:{1024*(jq % 4)}{cfg.x_pol} lds')
    else:
        a(f'''
        s_sub_u32 {sHW}, {sWAVE}, 4
        s_lshl_b32 {sT1}, {sROT}, 1
        s_lshl_b32 {sT2}, {sHW}, 3
        ''')
        for jq in range(8):
            a(f'''
            s_add_u32 {sT0}, {sT2}, {jq}
            s_and_b32 {sCNT}, {sT0}, 15
            v_xor_b32 v{16+jq}, {sCNT}, v0
            v_add_u32 v{16+jq}, {sT1}, v{16+jq}
            s_lshl_b32 {sT0}, {sT0}, 10
            v_and_b32 v{16+jq}, 63, v{16+jq}
            s_add_u32 m0, {sT0}, {4*SLOT}
            v_lshlrev_b32 v{16+jq}, 4, v{16+jq}
            buffer_load_dwordx4 v{16+jq}, {X_}, {sT0} offen{cfg.x_pol} lds
            ''')
    a(f'''
    v_xor_b32 v10, v2, v1
    v_lshlrev_b32 v10, 4, v10
    v_lshl_add_u32 v5, v1, 8, v10
    v_xor_b32 v6, 64, v5
    v_xor_b32 v7, 128, v5
    v_xor_b32 v8, 192, v5
    v_lshlrev_b32 v10, 1, v1
    v_xor_b32 v10, v10, v2
    v_lshlrev_b32 v10, 4, v10
    v_lshl_add_u32 v9, v1, 8, v10
    v_xor_b32 v12, 128, v9
    s_lshl_b32 {sBASE}, {sHW}, 12
    ''')
    if cfg.kvrot:
        a(cfg.kvrot.replace('B', sB).replace('H', sHKV).replace('R', sBR).replace(';', '\n'))
        a(f's_and_b32 s86, s86, 15\ns_lshl_b32 s86, s86, 14\ns_add_u32 s86, s86, {sBASE}')
    if cfg.near_kv:
        a(f's_cmp_eq_u32 {sGRP}, 0\ns_cbranch_scc1 L_helper')
        for j in range(cfg.g1_first):
            a(f's_add_u32 m0, {sBASE}, {j*SLOT}')
            a(f's_add_u32 {sT0}, {sBASE}, {(j//2)*SLOT}')
            for jj in range(4):
                va, srd = (vKD[jj], K_) if j % 2 == 0 else (vVD[jj & 1], V_)
                a(f'buffer_load_dwordx4 {va}, {srd}, {sT0} offen offset:{1024*jj}{cfg.kv_pol} lds')
    a('s_branch L_hkv' if 'b' in cfg.lay else 's_branch L_helper')
    a('L_compute:')

    vWD = ['v112', 'v113']
    vWA = lambda region, nb: f'v{114 + 2 * region + nb}'
    vOA, vPA0 = 'v120', 121
    oproj_addr = f'''
    v_lshrrev_b32 v112, 3, v0
    v_and_b32 v113, 7, v0
    v_bfe_u32 v114, v0, 4, 1
    v_lshlrev_b32 v114, 2, v114
    v_xor_b32 v113, v113, v114
    v_lshlrev_b32 v113, 4, v113
    v_lshl_add_u32 v112, v112, 10, v113
    v_add_u32 v113, 15360, v112
    v_and_b32 v114, 1, v0
    v_bfe_u32 v115, v0, 1, 1
    v_lshlrev_b32 v114, 4, v114
    v_lshl_add_u32 v114, v115, 3, v114  ; pi*8
    v_and_b32 v115, 1, v1
    v_lshl_add_u32 v114, v115, 5, v114  ; + g*32
    v_lshl_add_u32 v114, v3, 9, v114    ; + h2*512
    v_bfe_u32 v115, v0, 2, 2
    v_lshl_add_u32 v114, v115, 7, v114  ; + r*128
    v_bfe_u32 v115, v0, 3, 1
    v_lshl_add_u32 v121, v115, 6, v114  ; + (r>>1)*64
    v_add_u32 v114, {sWL}, v121
    v_xor_b32 v115, 64, v114
    v_add_u32 v116, {4*SLOT}, v114
    v_add_u32 v117, {4*SLOT}, v115
    v_add_u32 v118, {8*SLOT}, v114
    v_add_u32 v119, {8*SLOT}, v115
    v_add_u32 v120, {OBASE}, v4
    '''.strip().split('\n')

    vWQ = ['v5', 'v6', 'v7', 'v8']
    a(f'''
    v_lshlrev_b32 v9, 2, v1
    v_xor_b32 v9, v9, v2
    v_lshlrev_b32 v9, 4, v9
    v_lshl_add_u32 v9, v1, 13, v9
    s_lshl_b32 {sT0}, {sWAVE}, 8
    v_add_u32 v5, {sT0}, v9
    v_add_u32 v6, {31744}, v5
    v_add_u32 v7, {2*31744}, v5
    v_add_u32 v8, {3*31744}, v5
    s_add_u32 {sBASE}, {sWAVE}, 6
    s_lshl_b32 {sBASE}, {sBASE}, 14
    ''')
    NQ = 6 if cfg.wq6 else 4
    if 'a' in cfg.lay: a(f's_lshl_b32 {sLIM}, {sROT}, 17')
    a(f's_lshl_b32 {sVB}, {sWAVE}, 13\ns_add_u32 {sVB}, {sVB}, {4*SLOT}')
    def wq_pre(i):
        if 'a' in cfg.lay:
            return [(f's_add_u32 m0, {sBASE}, {(i % NQ) * 4096}' if i % NQ < 4 else f's_add_u32 m0, {sVB}, {(i % NQ - 4) * 4096}'),
                    f's_xor_b32 {sT0}, {sLIM}, {i << 17}']
        return [f's_add_u32 {sT0}, {sROT}, {i}', f's_and_b32 {sT0}, {sT0}, 31',
                (f's_add_u32 m0, {sBASE}, {(i % NQ) * 4096}' if i % NQ < 4 else f's_add_u32 m0, {sVB}, {(i % NQ - 4) * 4096}'),
                f's_lshl_b32 {sT0}, {sT0}, 17']
    def wq_dma(j, i=99):
        return f'buffer_load_dwordx4 {vWQ[j]}, {WQ_}, {sT0} offen offset:{1024*j}{" nt" if i < cfg.wq_nt else cfg.wq_pol} lds'
    def wq_issue(i):
        emit(wq_pre(i)); emit([wq_dma(j, i) for j in range(4)])
    if not cfg.wq_both: a(f's_cmp_eq_u32 {sGRP}, 0\ns_cbranch_scc0 L_nowq0')
    for i in range(cfg.wq_first): wq_issue(i)
    a('L_nowq0:')
    if cfg.defer == 1: a(late_srd)
    if cfg.hs0:
        a(f'''
        s_cmp_eq_u32 {sWAVE}, 0
        s_cbranch_scc0 L_noclear
        s_lshl_b32 {sT0}, {sG}, 3
        s_add_u32 {sT0}, {sT0}, {sHKV}
        s_lshl_b32 {sT0}, {sT0}, 7
        s_add_u32 {sT0}, {sT0}, {FLAG_OFF}
        v_mov_b32 v10, 0
        v_lshlrev_b32 v11, 2, v0
        s_mov_b64 exec, 0xff
        buffer_store_dword v10, v11, {WS_}, {sT0} offen sc1
        s_mov_b64 exec, -1
        L_noclear:
        ''')
    a(f'''
    v_bfe_u32 v13, v0, 2, 2          ; r
    v_and_b32 v14, 1, v0
    v_bfe_u32 v15, v0, 1, 1
    v_lshlrev_b32 v14, 4, v14
    v_lshl_add_u32 v14, v15, 3, v14  ; pi*8
    v_and_b32 v15, 1, v1             ; g
    v_lshl_add_u32 v14, v15, 5, v14  ; g*32 + pi*8
    v_lshlrev_b32 v12, 11, v3        ; 8*h2*256
    v_mul_u32_u24 v15, 320, v13      ; r*256 + r*64
    v_add3_u32 v12, v12, v15, v14
    v_add_u32 v16, {sBASE}, v12
    v_xor_b32 v17, 64, v16
    v_xor_b32 v18, 128, v16
    v_xor_b32 v19, 192, v16
    v_and_b32 v20, 31, v0            ; q
    v_xor_b32 v21, v3, v2            ; h2 ^ (q&15)
    v_lshlrev_b32 v21, 4, v21
    v_lshl_add_u32 v21, v20, 10, v21
    v_add_u32 v21, {4*SLOT}, v21
    ''')
    vTQ = ['v16', 'v17', 'v18', 'v19']
    vTQ2 = ['v21', 'v22', 'v23', 'v24']
    XF = lambda i: 128 + 4 * i
    QA = lambda blk: 64 + 16 * blk
    BUF = lambda i, blk: 32 + 16 * (i & 1) + 4 * blk
    OA = lambda blk: 128 + 16 * blk
    for m in range(1, 8):
        a(f'v_xor_b32 v{21+m}, {32*m}, v21')
    vKL, vVL, vOL = 'v29', 'v13', 'v9'
    a(f"""
    v_xor_b32 v14, v1, v2
    v_lshlrev_b32 v14, 4, v14
    v_lshl_add_u32 {vKL}, v2, 8, v14
    v_bfe_u32 v14, v0, 2, 4             ; 4g + r
    v_and_b32 v15, 7, v14
    v_lshlrev_b32 v14, 8, v14
    v_lshl_add_u32 v14, v15, 5, v14
    v_and_b32 v15, 3, v0
    v_lshl_add_u32 {vVL}, v15, 3, v14
    v_lshlrev_b32 v14, 4, v2
    v_lshl_add_u32 v14, v3, 10, v14
    v_and_b32 v15, 1, v1
    v_lshl_add_u32 {vOL}, v15, 9, v14
    v_mov_b32 v30, {hex(f32(1.4426950408889634 / 128 ** 0.5))}
    s_mov_b32 {sC}, {hex(f32(cfg.T))}
    """)
    if cfg.touch:
        a(f'''
        s_cmp_eq_u32 {sWAVE}, 0
        s_cbranch_scc0 L_notouch
        s_lshl_b32 {sT0}, {sG}, 18
        v_mov_b32 v10, 0
        s_mov_b64 exec, 1
        buffer_load_dword v20, v10, {WS_}, {sT0} offen nt
        buffer_load_dword v20, v10, {OUT_}, 0 offen nt
        buffer_load_dword v20, v10, {WO_}, 0 offen nt
        s_mov_b64 exec, -1
        L_notouch:
        ''')
    a('s_barrier   ; Bx')
    stamp(1)
    xread = lambda i: f'ds_read_b128 v[{XF(i)}:{XF(i)+3}], v{21 + (i & 7)} offset:{256*(i >> 3)}'
    if cfg.xov:
        assert not cfg.wq_both and not cfg.wq6
        emit([xread(0), xread(1)])
        a(f's_cmp_eq_u32 {sGRP}, 0\ns_cbranch_scc1 L_wq1')
    for i in range(2 if cfg.xov else 0, 32):
        a(xread(i))
        if i in (14, 22, 30): a('s_waitcnt lgkmcnt(7)')
    a('s_waitcnt lgkmcnt(0)')
    a('s_barrier   ; Bx2')
    a('s_barrier   ; Bw')
    stamp(2)
    if not cfg.wq_both:
        if not cfg.xov: a(f's_cmp_eq_u32 {sGRP}, 0\ns_cbranch_scc1 L_wq1')
        for i in range(cfg.wq_first): wq_issue(i)
        a('L_wq1:')
    for i in range(cfg.wq_first, NQ - 1): wq_issue(i)
    if cfg.wq6:
        a(f'v_add_u32 v21, {sVB}, v12\nv_xor_b32 v22, 64, v21\nv_xor_b32 v23, 128, v21\nv_xor_b32 v24, 192, v21')
    pre = [x.replace('v112', 'v28').replace('v113', 'v14').replace('v114', 'v12').replace('v115', 'v15').replace('v121', 'v12')
           for x in oproj_addr[:7] + oproj_addr[8:20]]
    pre += [f's_lshl_b32 {sT1}, {sWAVE}, 3', f's_xor_b32 {sT1}, {sT1}, {sROT}', f's_lshl_b32 {sT1}, {sT1}, 10', f'v_add_u32 v11, {sT1}, {vOL}']
    if not cfg.xov: emit(pre)
    def q_mfma(i, blk):
        c = '0' if i == 0 else f'v[{QA(blk)}:{QA(blk)+15}]'
        return f'v_mfma_f32_32x32x16_bf16 v[{QA(blk)}:{QA(blk)+15}], v[{BUF(i,blk)}:{BUF(i,blk)+3}], v[{XF(i)}:{XF(i)+3}], {c}'
    for i in range(32):
        a(f's_waitcnt vmcnt({4*(min(31, i + NQ - 2) - i)})')
        if i == 0: stamp(3)
        if i in (4, 8, 16, 24): stamp(40 + i // 4)
        for blk in range(4):
            for u in range(2):
                r = BUF(i, blk) + 2 * u
                a(f'ds_read_b64_tr_b16 v[{r}:{r+1}], {(vTQ if i % NQ < 4 else vTQ2)[blk]} offset:{(i % NQ % 4)*4096 + 1024*u}')
        if cfg.xov and i < 6:
            lab = a.label('L_nx')
            a(f's_cmp_eq_u32 {sGRP}, 0\ns_cbranch_scc0 {lab}')
            emit([xread(j) for j in range(2 + 5 * i, 7 + 5 * i)])
            a(f'{lab}:')
        if cfg.xov and 8 <= i < 14: emit(pre[4 * (i - 8):4 * (i - 7)])
        dma = i + NQ - 1 < 32
        if dma: emit(wq_pre(i + NQ - 1))
        for blk in range(4):
            if 0 < i < 31 or (i == 31 and blk == 0): a(q_mfma(i - 1, blk))
            if dma: a(wq_dma(blk, i + NQ - 1))
            if 18 <= i < 26:
                for z in range(2):
                    a(f'v_mov_b32 v{128 + 8*(i-18) + 2*blk + z}, 0')
        if i + NQ - 1 == 31: a('s_barrier   ; Bk')
        a('s_waitcnt lgkmcnt(0)')
    a('s_barrier   ; Bq')
    a(f"""
    s_mov_b32 {sCNT}, {14 if cfg.fin2 else 13}
    s_mov_b32 {sBASE}, 0
    s_mov_b32 {sLIM}, {10*SLOT}
    """)
    QF = lambda ks: 32 + 4 * ks
    S = lambda kb: 64 + 16 * kb
    P = lambda i: 96 + 4 * i if i < 2 else 192 + 4 * (i - 2)
    CB = lambda u: 112 + 4 * u
    LA = lambda u: 104 + 4 * u
    ON = 124
    KF = lambda i: 192 + 4 * i
    VF = lambda t: 224 + 4 * t
    OT = lambda t, u: 128 + 8 * t + 4 * u
    vKA = ['v16', 'v17', 'v18', 'v19']
    vVA = ['v%d' % (20 + t) for t in range(8)]
    M16 = lambda d, x, y, c: f'v_mfma_f32_16x16x32_bf16 v[{d}:{d+3}], v[{x}:{x+3}], v[{y}:{y+3}], ' + (f'v[{c}:{c+3}]' if c is not None else '0')
    def qk(sb, j, first=False):
        s_, kt, u = j >> 2, (j >> 1) & 1, j & 1
        d = S(sb) + 8 * u + 4 * kt
        return M16(d, KF(2 * s_ + kt), QF(2 * s_ + u), d if s_ else (None if first else CB(u)))
    pv = lambda t, u, p: M16(OT(t, u), VF(t), P(p), OT(t, u))
    rsum = lambda u, p: M16(LA(u), ON, P(p), LA(u))
    kread = lambda i, kb: f'ds_read_b128 v[{KF(i)}:{KF(i)+3}], {vKA[i >> 1]} offset:{8192*kb + 4096*(i & 1)}'
    vread = lambda j, kb: f'ds_read_b64_tr_b16 v[{VF(j >> 1)+2*(j & 1)}:{VF(j >> 1)+2*(j & 1)+1}], {vVA[j >> 1]} offset:{8192*kb + 4096*(j & 1)}'
    exp = lambda r: f'v_exp_f32 v{r}, v{r}'
    cvt = lambda p, d, r: f'v_cvt_pk_bf16_f32 v{P(p)+d}, v{r}, v{r+1}'
    def maxchain(sb):
        b = S(sb)
        l = [f'v_max3_f32 v14, v{b}, v{b+1}, v{b+2}', f'v_max3_f32 v15, v{b+3}, v{b+8}, v{b+9}',
             f'v_max3_f32 v14, v14, v{b+10}, v{b+11}', f'v_max3_f32 v15, v15, v{b+4}, v{b+5}',
             f'v_max3_f32 v14, v14, v{b+6}, v{b+7}', f'v_max3_f32 v15, v15, v{b+12}, v{b+13}',
             f'v_max3_f32 v14, v14, v{b+14}, v{b+15}', f'v_max_f32 v14, v14, v15']
        return l
    def rowmax(sb, floor):
        l = []
        for u, (x, y) in enumerate((('v14', 'v15'), ('v6', 'v7'))):
            b = S(sb) + 8 * u
            l += [f'v_max3_f32 {x}, v{b}, v{b+1}, v{b+2}', f'v_max3_f32 {y}, v{b+3}, v{b+4}, v{b+5}',
                  f'v_max3_f32 {x}, {x}, v{b+6}, v{b+7}']
        l += ['v_max_f32 v14, v14, v15', 'v_max_f32 v6, v6, v7', 'v_mov_b32 v15, v14', 'v_mov_b32 v7, v6', 's_nop 0',
              'v_permlane32_swap_b32 v14, v15', 'v_permlane32_swap_b32 v6, v7',
              'v_max_f32 v14, v14, v15', 'v_max_f32 v6, v6, v7', 'v_mov_b32 v15, v14', 'v_mov_b32 v7, v6', 's_nop 0',
              'v_permlane16_swap_b32 v14, v15', 'v_permlane16_swap_b32 v6, v7']
        l += ['v_max3_f32 v14, v14, v15, 0', 'v_max3_f32 v6, v6, v7, 0'] if floor else ['v_max_f32 v14, v14, v15', 'v_max_f32 v6, v6, v7']
        return l
    KA = [f'v_add_u32 {vKA[0]}, {sBASE}, {vKL}'] + [f'v_xor_b32 {vKA[i]}, {64*i}, {vKA[0]}' for i in range(1, 4)]
    VA = [f'v_add_u32 {vVA[0]}, {sVB}, {vVL}'] + [f'v_xor_b32 {vVA[t]}, {32*t}, {vVA[0]}' for t in range(1, 8)]
    cmp_ = f'v_cmp_lt_f32 vcc, {sC}, v14'
    def branch(tag):
        a(f's_cbranch_vccnz L_slow{tag}')
        a(f'L_back{tag}:')
    def mini(cur, x, barrier=False, vnext=True, kreads=True):
        nx = cur ^ 1; b = S(cur)
        Rc = {j: vread(j, cur) for j in range(9, 16)}
        Rn = [vread(j, nx) if vnext else None for j in range(9)]
        D = [kread(i, cur) if kreads else None for i in range(8)]
        E = [exp(b + e) for e in range(16)]
        C = [cvt(d >> 2, d & 3, b + 2 * d) for d in range(8)]
        X = maxchain(nx)
        W = lambda n: f's_waitcnt lgkmcnt({n})'
        g = {0: [Rc[9], E[0]], 1: [E[1]], 2: [Rc[10], E[2]], 3: [D[0], E[3]], 4: [Rc[11], E[4]], 5: [D[1], E[5]],
             6: [Rc[12], E[6]], 7: [W(6 if kreads else 4), E[7]], 8: [D[2], Rc[13], C[0]], 9: [D[3], C[1]], 10: [Rc[14], C[2]], 11: [D[4], C[3]],
             12: [Rc[15], E[8]], 13: [D[5], E[9]], 14: [E[10]], 15: [D[6], E[11]],
             16: [E[12]], 17: [D[7], E[13]], 18: [E[14]], 19: [E[15], W(3 if kreads else 0)], 20: [C[4], C[5]], 21: [C[6], C[7]],
             22: [X[0]], 23: [X[1]], 's0': ([W(0)] if kreads else []) + (['s_barrier   ; k(t+2): V(t+1), K(t+2) landed'] if barrier else []),
             24: [Rn[0], X[2]], 25: [Rn[1], X[3]], 26: [Rn[2], X[4]], 27: [Rn[3], X[5]], 28: [Rn[4], X[6]], 29: [Rn[5], X[7]],
             30: [Rn[6], cmp_], 31: [Rn[7]], 's1': [Rn[8]]}
        def G(k): emit([y for y in g[k] if y] + x.get(k, []))
        for j in range(16):
            a(qk(nx, j)); G(j)
        for t in range(8):
            a(pv(t, 0, 0)); G(16 + t)
        a(rsum(0, 0)); G('s0')
        for t in range(8):
            a(pv(t, 1, 1)); G(24 + t)
        a(rsum(1, 1)); G('s1')
    vx = {1: [VA[0]], 9: [VA[1]], 10: [VA[2]], 11: [VA[3]], 14: [VA[4]], 16: [VA[5]], 22: [VA[6]], 23: [VA[7]]}
    def step(tags, last):
        if last:
            mini(0, {1: [f's_add_u32 {sVB}, {sBASE}, {SLOT}']})
        else:
            mini(0, {1: [f's_add_u32 {sVB}, {sBASE}, {SLOT}'], 9: [f's_add_u32 {sBASE}, {sBASE}, {2*SLOT}'],
                     10: [f's_cmp_eq_u32 {sBASE}, {sLIM}'], 11: [f's_cselect_b32 {sBASE}, 0, {sBASE}'],
                     14: [f's_cselect_b32 {sLIM}, {8*SLOT}, {sLIM}'],
                     16: [f's_cmp_eq_u32 {sCNT}, {sCHK}', 's_cbranch_scc0 L_nock', f'buffer_load_dword v5, v30, {DBG_}, 0 offen sc1', 'L_nock:'] if cfg.fin2 else [], 22: [f's_sub_u32 {sCNT}, {sCNT}, 1']})
        branch(tags[0])
        if last:
            mini(1, vx, False, False)
        else:
            mini(1, {**vx, 18: [KA[0]], 31: [KA[1]], 's1': [KA[2]], 's0': [], 20: [], 27: [], 26: [], 29: [KA[3]]}, True)
        branch(tags[1])
    class Lds:
        def __init__(s): s.ops = []; s.done = 0
        def rd(s, ins, tag=None): a(ins); s.ops.append(tag)
        def need(s, tag):
            k = s.ops.index(tag) + 1
            if k > s.done:
                a(f's_waitcnt lgkmcnt({len(s.ops) - k})'); s.done = k
    def qscale(ks):
        src = QA(ks >> 1) + 8 * (ks & 1)
        return [f'v_pk_mul_f32 v[{src+2*d}:{src+2*d+1}], v[{src+2*d}:{src+2*d+1}], v[30:31] op_sel_hi:[1,0]' for d in range(4)]
    def qpack(ks):
        src = QA(ks >> 1) + 8 * (ks & 1)
        return [f'v_cvt_pk_bf16_f32 v{QF(ks)+d}, v{src+2*d}, v{src+2*d+1}' for d in range(4)]
    def qswap(s_):
        x, y = QF(2 * s_), QF(2 * s_ + 1)
        return [f'v_permlane32_swap_b32 v{x+d}, v{y+d}' for d in range(4)] + [f'v_permlane16_swap_b32 v{x+d}, v{y+d}' for d in range(4)]
    a(q_mfma(31, 0)); emit(KA)
    a(q_mfma(30, 1)); a(f's_mov_b32 {sVB}, {SLOT}'); emit(VA[:3])
    a(q_mfma(31, 1)); emit(VA[3:6])
    a(q_mfma(30, 2)); emit(qscale(0))
    a(q_mfma(31, 2)); emit(qscale(1))
    a(q_mfma(30, 3)); emit(qscale(2))
    a(q_mfma(31, 3)); emit(qscale(3))
    stamp(4)
    for ks in range(4): emit(qpack(ks))
    a('s_barrier   ; k0')
    stamp(8)
    L = Lds()
    for i in range(8): L.rd(kread(i, 0), ('a', i))
    a(f's_mov_b32 {sBASE}, {2*SLOT}')
    emit(qscale(4) + qscale(5)); emit(qswap(0)); emit(qpack(4) + qpack(5))
    emit(qscale(6) + qscale(7)); emit(qswap(1)); emit(qpack(6) + qpack(7))
    late = VA[6:] + qswap(2) + qswap(3) + [f'v_mov_b32 v{LA(0)+i}, 0' for i in range(8)] + [f'v_mov_b32 v{ON+i}, 0x3f803f80' for i in range(4)]
    for j in range(16):
        L.need(('a', j >> 1))
        a(qk(0, j, True))
        if j & 1: L.rd(kread(j >> 1, 1), ('b', j >> 1))
        emit(late[:2]); del late[:2]
    assert not late
    emit(KA)
    a('s_nop 2')
    rm = rowmax(0, False)
    emit(rm[:10])
    a('s_waitcnt lgkmcnt(0)')
    a('s_barrier   ; k1')
    for j in range(9): a(vread(j, 0))
    emit(rm[11:])
    for u, m in enumerate(('v14', 'v6')):
        emit([f'v_sub_f32 v{CB(u)+i}, 0, {m}' for i in range(4)])
        emit([f'v_sub_f32 v{S(0)+8*u+i}, v{S(0)+8*u+i}, {m}' for i in range(8)])
    if 'l' in cfg.align: a('.p2align 6')
    if 'L' in cfg.align: a('.p2align 6\ns_nop 0')
    if cfg.hs0:
        a(f'''
        s_lshl_b32 {sT0}, {sG}, 3
        v_mov_b32 v30, {sT0}
        v_mov_b32 v5, 8
        s_mov_b32 {sCHK}, 99
        s_cmp_eq_u32 {sWAVE}, 0
        s_cbranch_scc0 L_noann
        s_mov_b32 {sCHK}, 1
        v_mov_b32 v10, 1
        s_mov_b64 exec, 1
        buffer_atomic_add v10, v30, {DBG_}, 0 offen sc1
        s_mov_b64 exec, -1
        L_noann:
        ''')
    a('L_loop:')
    step('AB', False)
    a('s_cbranch_scc0 L_loop')
    def norm(tp, u):
        inv = ('v[14:15]', 'v[6:7]')[u]; dst = 64 + 8 * tp + 4 * u
        l = []
        for k in range(2):
            src = OT(2 * tp + k, u)
            l += [f'v_pk_mul_f32 v[{src+e}:{src+e+1}], v[{src+e}:{src+e+1}], {inv} op_sel_hi:[1,0]' for e in (0, 2)]
        for k in range(2):
            src = OT(2 * tp + k, u)
            l += [f'v_cvt_pk_bf16_f32 v{dst+2*k+d}, v{src+2*d}, v{src+2*d+1}' for d in range(2)]
        return l + [f'ds_write_b128 {vOW[tp]}, v[{dst}:{dst+3}] offset:{OBASE + 256*u}']
    vOW = ['v11', 'v16', 'v17', 'v18']
    if cfg.fin2:
        a('L_last:')
        a('L_tail:')
        assert cfg.hs0
        fill = [f'v_xor_b32 {vOW[h]}, {h << 11}, v11' for h in range(1, 4)] + \
               ['v_mov_b32 v112, v28', 'v_add_u32 v113, 7168 + 8192, v28', 'v_mov_b32 v114, v12'] + oproj_addr[20:]
        slots = [3, 5, 8, 9, 11, 13, 14, 15, 16, 17, 18, 22]
        assert len(fill) == len(slots)
        mini(0, {g_: [f_] for g_, f_ in zip(slots, fill)}, False, True, False)
        branch('C')
        stamp(39)
        b1 = S(1)
        E1 = [exp(b1 + e) for e in range(16)]
        C1 = [cvt(d >> 2, d & 3, b1 + 2 * d) for d in range(8)]
        for e in range(8):
            a(E1[e])
            if e < 7: a(vread(9 + e, 1))
            if e == 5: a('s_waitcnt lgkmcnt(6)')
        emit(C1[:4])
        emit([E1[8], E1[9]])
        a(rsum(0, 0))
        for t in range(8):
            if t == 4: a('s_waitcnt lgkmcnt(0)')
            a(pv(t, 0, 0))
            if t < 6: a(E1[10 + t])
            if t == 6: emit(C1[4:6])
            if t == 7: emit(C1[6:])
        a(f'v_rcp_f32 v14, v{LA(0)}')
        a('s_nop 0')
        a(rsum(1, 1))
        pend = sum([norm(tp, 0) for tp in range(4)], [])
        for t in range(8):
            a(pv(t, 1, 1))
            if t == 4: a(f'v_rcp_f32 v6, v{LA(1)}')
            emit(pend[:cfg.nrm]); del pend[:cfg.nrm]
        stamp(5)
        emit(pend)
        for tp in range(4): emit(norm(tp, 1))
    else:
        a('L_last:')
        if cfg.hs0:
            a(f's_cmp_eq_u32 {sWAVE}, 0\ns_cbranch_scc0 L_nock\nbuffer_load_dword v5, v30, {DBG_}, 0 offen sc1\nL_nock:')
        step('DE', True)
        a('L_tail:')
        b0, b1 = S(0), S(1)
        vOW = ['v11', 'v16', 'v17', 'v18']
        fill = [f'v_xor_b32 {vOW[h]}, {h << 11}, v11' for h in range(1, 4)] + \
               ['v_mov_b32 v112, v28', 'v_add_u32 v113, 15360, v28', 'v_mov_b32 v114, v12'] + oproj_addr[20:]
        for j in range(16):
            a(qk(1, j)); emit([exp(b0 + j)])
        emit(fill[:7]); del fill[:7]
        def take(n):
            l = fill[:n]; del fill[:n]; return l
        emit(maxchain(1))
        a(cmp_)
        branch('C')
        emit([cvt(0, d, b0 + 2 * d) for d in range(4)])
        stamp(38)
        a('s_barrier   ; k16: V15 landed')
        stamp(39)
        L = Lds()
        for j in range(14): L.rd(vread(j, 0), ('a', j))
        emit([cvt(1, d, b0 + 8 + 2 * d) for d in range(4)])
        E1 = [exp(b1 + e) for e in range(16)]
        emit(E1[:2])
        for t in range(8):
            if t % 2 == 0: L.need(('a', 2 * t + 3))
            a(pv(t, 0, 0))
            if t < 2: L.rd(vread(14 + t, 0), ('a', 14 + t))
            a(E1[2 + t])
        a(rsum(0, 0)); a(E1[10])
        C2 = [cvt(2, d, b1 + 2 * d) for d in range(4)]; C3 = [cvt(3, d, b1 + 8 + 2 * d) for d in range(4)]
        fl = [[E1[11]], [E1[12]], [E1[13]], [E1[14]], [E1[15]], C2[:2], C2[2:], C3[:2]]
        for t in range(8):
            a(pv(t, 1, 1))
            if t == 7: L.need(('b', 1))
            L.rd(vread(2 * t, 1), ('b', 2 * t)); L.rd(vread(2 * t + 1, 1), ('b', 2 * t + 1))
            emit(fl[t])
        a(rsum(1, 1)); emit(C3[2:])
        a(rsum(0, 2)); emit(take(2))
        a(rsum(1, 3)); emit(take(2))
        def norm(tp, u):
            inv = ('v[14:15]', 'v[6:7]')[u]; dst = 64 + 8 * tp + 4 * u
            l = []
            for k in range(2):
                src = OT(2 * tp + k, u)
                l += [f'v_pk_mul_f32 v[{src+e}:{src+e+1}], v[{src+e}:{src+e+1}], {inv} op_sel_hi:[1,0]' for e in (0, 2)]
            for k in range(2):
                src = OT(2 * tp + k, u)
                l += [f'v_cvt_pk_bf16_f32 v{dst+2*k+d}, v{src+2*d}, v{src+2*d+1}' for d in range(2)]
            return l + [f'ds_write_b128 {vOW[tp]}, v[{dst}:{dst+3}] offset:{OBASE + 256*u}']
        pend = []
        for t in range(8):
            if t % 2 == 0: L.need(('b', 2 * t + 3))
            if t == 2: emit([f'v_rcp_f32 v14, v{LA(0)}', f'v_rcp_f32 v6, v{LA(1)}'])
            if t == 3: pend += norm(0, 0)[:2]
            if t == 4: pend += norm(0, 0)[2:] + norm(0, 1)
            if t == 6: pend += norm(1, 0) + norm(1, 1)
            for u in range(2):
                a(pv(t, u, 2 + u))
                if t < 2: emit(take(1) or ['s_nop 0'])
                emit(pend[:cfg.nrm]); del pend[:cfg.nrm]
        assert not fill
        stamp(5)
        emit(pend)
        for tp in (2, 3):
            emit(norm(tp, 0) + norm(tp, 1))
    if cfg.hs0:
        a(f'''
        s_mov_b32 {sSPIN}, 0
        s_waitcnt vmcnt(0)
        L_chk:
        v_cmp_gt_u32 vcc, 8, v5
        s_cbranch_vccz L_chkd
        s_add_u32 {sSPIN}, {sSPIN}, 1
        s_cmp_gt_u32 {sSPIN}, 0x40000
        s_cbranch_scc1 L_chkd
        buffer_load_dword v5, v30, {DBG_}, 0 offen sc1
        s_waitcnt vmcnt(0)
        s_branch L_chk
        L_chkd:
        ''')
    if 'c' in cfg.align: a('.p2align 6')
    if 'C' in cfg.align: a('.p2align 6\ns_nop 0')
    a('s_waitcnt lgkmcnt(0)')
    a('s_barrier   ; Bo')
    stamp(6)
    AF = lambda i, nb: (32, 40, 96)[i % 3] + 4 * nb
    BF = lambda i: 48 + 4 * (i & 3)
    PA = lambda nb: 64 + 16 * nb
    PK = lambda idx, nb: 128 + 8 * idx + 4 * nb
    sWO = sCNT
    def w_pre(m):
        return [f's_add_u32 m0, {sWL}, {WSLOT[m % 8]*SLOT}', f's_xor_b32 {sWO}, {sWX}, {woff(m)}']
    def w_dma(hf, so=sT0, idx=99):
        return f'buffer_load_dwordx4 {vWD[hf]}, {WO_}, {so} offen offset:{1024*hf}{" nt" if idx < cfg.wo_nt else cfg.wo_pol} lds'
    def o_mfma(idx, nb, areg, first=False):
        c = '0' if first else f'v[{PA(nb)}:{PA(nb)+15}]'
        return f'v_mfma_f32_32x32x16_bf16 v[{PA(nb)}:{PA(nb)+15}], v[{areg}:{areg+3}], v[{BF(idx)}:{BF(idx)+3}], {c}'
    bread = lambda idx: f'ds_read_b128 v[{BF(idx)}:{BF(idx)+3}], {vOA} offset:{1024*idx}'
    def areads(idx, m):
        sl = WSLOT[m % 8]
        return [f'ds_read_b64_tr_b16 v[{AF(idx,nb)+2*u}:{AF(idx,nb)+2*u+1}], {vWA(sl // 4, nb)} offset:{(sl % 4)*SLOT + 1024*u}'
                for nb in range(2) for u in range(2)]
    if cfg.cprio: a(f's_setprio {cfg.cprio}')
    emit(w_pre(7))
    emit([bread(0)] + areads(0, 0))
    emit([w_dma(0, sWO), w_dma(1, sWO)])
    emit([bread(1)] + areads(1, 1))
    for m in range(32):
        if m in (4, 8, 12, 16, 20, 24, 28): stamp(47 + m // 4)
        if m + 2 < 32:
            if m + 2 >= 7: a(f's_waitcnt vmcnt({2*(min(31, m + 7) - (m + 2))})')
            emit([bread(m + 2)] + areads(m + 2, m + 2))
        dma = m + 8 < 32
        if dma: emit(w_pre(m + 8))
        a(f's_waitcnt lgkmcnt({5 * min(2, 31 - m)})')
        a(o_mfma(m, 0, AF(m, 0), m == 0))
        if dma: a(w_dma(0, sWO))
        a(o_mfma(m, 1, AF(m, 1), m == 0))
        if dma: a(w_dma(1, sWO))
    def handoff(tg):
        a(f'L_pub{tg}:')
        stamp(7)
        if cfg.bf16p:
            a(f"""
            s_lshl_b32 {sT0}, {sG}, 3
            s_add_u32 {sT1}, {sT0}, {sWAVE}
            s_lshl_b32 {sT2}, {sT1}, 3
            s_add_u32 {sT2}, {sT2}, {sHKV}
            s_lshl_b32 {sT2}, {sT2}, 12
            s_lshl_b32 {sT1}, {sT1}, 7
            s_add_u32 {sT1}, {sT1}, {FLAG_OFF}
            s_lshl_b32 {sC}, {sHKV}, 2
            s_add_u32 {sT1}, {sT1}, {sC}
            s_add_u32 {sT0}, {sT0}, {sHKV}        ; g*8 + own
            v_mov_b32 v10, 1
            v_mov_b32 v11, 0
            """)
            for pc in range(4):
                for d in range(4):
                    a(f'v_cvt_pk_bf16_f32 v{96+4*pc+d}, v{64+8*pc+2*d}, v{65+8*pc+2*d}')
                a(f'buffer_store_dwordx4 v[{96+4*pc}:{99+4*pc}], v4, {WS_}, {sT2} offen offset:{1024*pc} sc1')
            a(f"""
            v_lshlrev_b32 v12, 2, v0
            s_lshl_b32 {sCHK}, {sT0}, 7
            s_add_u32 {sCHK}, {sCHK}, {FLAG_OFF}
            s_lshl_b32 {sT0}, {sT0}, 15
            s_lshr_b32 {sC}, {sWAVE}, 1
            s_lshl_b32 {sT2}, {sC}, 10
            s_add_u32 {sT0}, {sT0}, {sT2}
            s_and_b32 {sT2}, {sWAVE}, 1
            s_lshl_b32 {sCNT}, {sT2}, 8
            s_add_u32 {sT0}, {sT0}, {sCNT}
            v_bfe_u32 v14, v0, 4, 1
            v_lshlrev_b32 v15, 4, v2
            v_lshl_add_u32 v15, v14, 9, v15
            v_lshl_add_u32 v15, v3, 12, v15
            v_lshlrev_b32 v20, 11, v2
            v_lshl_add_u32 v20, v14, 4, v20
            v_lshl_add_u32 v20, v3, 3, v20
            s_lshl_b32 {sC}, {sC}, 5
            s_lshl_b32 {sT2}, {sT2}, 15
            s_add_u32 {sC}, {sC}, {sT2}
            s_waitcnt vmcnt(0)
            s_mov_b64 exec, 1
            buffer_store_dword v10, v11, {WS_}, {sT1} offen sc1
            s_mov_b64 exec, 0xff
            s_mov_b32 {sSPIN}, 0
            """)
            stamp(56)
            if cfg.poll2:
                a(f"""
                buffer_load_dword v13, v12, {WS_}, {sCHK} offen sc1
                L_poll{tg}:
                buffer_load_dword v16, v12, {WS_}, {sCHK} offen sc1
                s_waitcnt vmcnt(1)
                v_cmp_ne_u32 vcc, 1, v13
                s_cbranch_vccz L_polled{tg}
                buffer_load_dword v13, v12, {WS_}, {sCHK} offen sc1
                s_add_u32 {sSPIN}, {sSPIN}, 1
                s_cmp_gt_u32 {sSPIN}, 0x40000
                s_cbranch_scc1 L_polled{tg}
                s_waitcnt vmcnt(1)
                v_cmp_ne_u32 vcc, 1, v16
                s_cbranch_vccnz L_poll{tg}
                L_polled{tg}:
                s_mov_b64 exec, -1
                """)
            else:
                if cfg.poll1 >= 0: a(f's_cmp_eq_u32 {sWAVE}, {cfg.poll1}\ns_cbranch_scc0 L_polled{tg}')
                a(f"""
                L_poll{tg}:
                buffer_load_dword v13, v12, {WS_}, {sCHK} offen sc1
                s_add_u32 {sSPIN}, {sSPIN}, 1
                s_cmp_gt_u32 {sSPIN}, 0x40000
                s_cbranch_scc1 L_polled{tg}
                s_waitcnt vmcnt(0)
                v_cmp_ne_u32 vcc, 1, v13
                """)
                if cfg.psleep:
                    a(f's_cbranch_vccz L_polled{tg}\ns_sleep {cfg.psleep}\ns_branch L_poll{tg}')
                else:
                    a(f's_cbranch_vccnz L_poll{tg}')
                a(f'L_polled{tg}:\ns_mov_b64 exec, -1')
                if cfg.poll1 >= 0: a('s_barrier')
            stamp(57)
            for p in range(4):
                a(f'buffer_load_dwordx4 v[{96+4*p}:{99+4*p}], v15, {WS_}, {sT0} offen sc1')
                if p < 3: a(f's_add_u32 {sT0}, {sT0}, 8192')
            a(f's_mov_b32 {sT1}, 0xffff0000')
            for p in range(4):
                a(f's_waitcnt vmcnt({3-p})')
                for d in range(4):
                    lo, hi = (64 + 2 * d, 65 + 2 * d) if p == 0 else (72 + 2 * d, 73 + 2 * d)
                    a(f'v_lshlrev_b32 v{lo}, 16, v{96+4*p+d}')
                    a(f'v_and_b32 v{hi}, {sT1}, v{96+4*p+d}')
                if p:
                    for e in range(8):
                        a(f'v_add_f32 v{64+e}, v{64+e}, v{72+e}')
            a('s_nop 0')
            for e in range(4):
                a(f'v_permlane32_swap_b32 v{64+e}, v{68+e}')
            for e in range(4):
                a(f'v_add_f32 v{64+e}, v{64+e}, v{68+e}')
            a(f"""
            v_cvt_pk_bf16_f32 v96, v64, v65
            v_cvt_pk_bf16_f32 v97, v66, v67
            buffer_store_dwordx2 v[96:97], v20, {OUT_}, {sC} offen{cfg.out_pol}
            """)
        else:
            a(f'''
            s_lshl_b32 {sT0}, {sG}, 3
            s_add_u32 {sT1}, {sT0}, {sWAVE}
            s_lshl_b32 {sT2}, {sT1}, 3
            s_add_u32 {sT2}, {sT2}, {sHKV}
            s_lshl_b32 {sT2}, {sT2}, 13
            s_add_u32 {sCNT}, {sT2}, 4096
            s_lshl_b32 {sT1}, {sT1}, 7
            s_add_u32 {sT1}, {sT1}, {FLAG_OFF}
            s_lshl_b32 {sC}, {sHKV}, 2
            s_add_u32 {sT1}, {sT1}, {sC}
            s_add_u32 {sT0}, {sT0}, {sHKV}        ; g*8 + own
            v_mov_b32 v10, 1
            v_mov_b32 v11, 0
            v_lshlrev_b32 v12, 2, v0
            ''')
            for pc in range(8):
                so = sT2 if pc < 4 else sCNT
                a(f'buffer_store_dwordx4 v[{64+4*pc}:{67+4*pc}], v4, {WS_}, {so} offen offset:{1024*(pc % 4)} sc1')
            a(f'''
            s_lshl_b32 {sCHK}, {sT0}, 7
            s_add_u32 {sCHK}, {sCHK}, {FLAG_OFF}
            s_lshl_b32 {sT0}, {sT0}, 16
            s_lshl_b32 {sC}, {sWAVE}, 10
            s_add_u32 {sT0}, {sT0}, {sC}
            s_waitcnt vmcnt(0)
            s_mov_b64 exec, 1
            buffer_store_dword v10, v11, {WS_}, {sT1} offen sc1
            s_mov_b64 exec, 0xff
            s_mov_b32 {sSPIN}, 0
            ''')
            stamp(56)
            a(f'''
            L_poll{tg}:
            buffer_load_dword v13, v12, {WS_}, {sCHK} offen sc1
            s_add_u32 {sSPIN}, {sSPIN}, 1
            s_cmp_gt_u32 {sSPIN}, 0x40000
            s_cbranch_scc1 L_polled{tg}
            s_waitcnt vmcnt(0)
            v_cmp_ne_u32 vcc, 1, v13
            s_cbranch_vccnz L_poll{tg}
            L_polled{tg}:
            s_mov_b64 exec, -1
            ''')
            stamp(57)
            for p in range(8):
                a(f'buffer_load_dwordx4 v[{96+4*p}:{99+4*p}], v4, {WS_}, {sT0} offen sc1')
                if p < 7: a(f's_add_u32 {sT0}, {sT0}, 8192')
            a(f'''
            v_and_b32 v20, 31, v0
            v_lshlrev_b32 v20, 11, v20
            v_lshl_add_u32 v20, v3, 4, v20
            s_lshr_b32 {sT1}, {sWAVE}, 1
            s_lshl_b32 {sT1}, {sT1}, 5
            s_and_b32 {sT2}, {sWAVE}, 1
            s_lshl_b32 {sT2}, {sT2}, 3
            s_add_u32 {sT1}, {sT1}, {sT2}
            ''')
            for p in range(1, 8):
                a(f's_waitcnt vmcnt({7-p})')
                for d in range(4):
                    a(f'v_add_f32 v{96+d}, v{96+d}, v{96+4*p+d}')
            a(f'''
            v_cvt_pk_bf16_f32 v96, v96, v97
            v_cvt_pk_bf16_f32 v97, v98, v99
            buffer_store_dwordx2 v[96:97], v20, {OUT_}, {sT1} offen
            ''')
        if cfg.stamps:
            stamp(58)
            a('s_waitcnt vmcnt(0)')
            stamp(59); cstamp(61)
            a(f'''
            s_add_u32 s28, s28, {STAMP_OFF}
            s_addc_u32 s29, s29, 0
            s_lshl_b32 {sT0}, s2, 3
            s_add_u32 {sT0}, {sT0}, {sWAVE}
            s_lshl_b32 {sT0}, {sT0}, 8
            v_lshl_add_u32 v13, v0, 2, {sT0}
            global_store_dword v13, {vSTAMP}, s[28:29]
            ''')
    if 'd' in cfg.lay:
        handoff('C')
        a('s_endpgm')
    else:
        a('s_branch L_pub')

    a('L_helper:')
    if cfg.defer == 1: a(late_srd)
    issued = []
    R0 = 4 if cfg.wq6 else 6
    RB = lambda j, jj: 128 + 16 * (j - R0) + 4 * jj
    def kv_issue(j, inreg=False):
        if not inreg: a(f's_add_u32 m0, {sBASE}, {slot_of(j)*SLOT}')
        if cfg.kvrot:
            a(f's_add_u32 {sT0}, s86, {(j//2)*SLOT}')
            a(f's_and_b32 {sT0}, {sT0}, 0x3ffff')
        else:
            a(f's_add_u32 {sT0}, {sBASE}, {(j//2)*SLOT}')
        for jj in range(4):
            va, srd = (vKD[jj], K_) if j % 2 == 0 else (vVD[jj & 1], V_)
            if inreg:
                a(f'buffer_load_dwordx4 v[{RB(j,jj)}:{RB(j,jj)+3}], {va}, {srd}, {sT0} offen offset:{1024*jj}{cfg.kv_pol}')
            else:
                a(f'buffer_load_dwordx4 {va}, {srd}, {sT0} offen offset:{1024*jj}{cfg.kv_pol} lds')
        issued.append((('kv', j), 4))
    def rb_write(j):
        for jj in range(4):
            a(f'ds_write_b128 {("v13", "v11", "v10")[slot_of(j) // 4]}, v[{RB(j,jj)}:{RB(j,jj)+3}] offset:{(slot_of(j) % 4)*SLOT + 1024*jj}')
    def warm(lab0, lab1, tagn):
        if not cfg.warm: return
        lab = a.label('L_pc')
        a(f'''
        s_getpc_b64 s[80:81]
        {lab}:
        s_lshl_b32 {sT0}, {sB}, 2
        s_add_u32 {sT0}, {sT0}, {sHW}
        s_mul_i32 {sT0}, {sT0}, ((({lab1} - {lab0}) / 64 + 63) / 64) * 64
        v_lshl_add_u32 v32, v0, 6, {sT0}
        v_min_u32 v32, {lab1} - {lab0} - 4, v32
        s_add_u32 s80, s80, {lab0} - {lab}
        s_addc_u32 s81, s81, -1
        v_mov_b32 v33, s81
        v_add_co_u32 v32, vcc, s80, v32
        s_nop 1
        v_addc_co_u32 v33, vcc, 0, v33, vcc
        v_cmp_gt_u32 vcc, (({lab1} - {lab0}) / 64 + 63) / 64, v0
        s_and_saveexec_b64 s[82:83], vcc
        global_load_dword v34, v[32:33], off
        s_mov_b64 exec, s[82:83]
        ''')
        issued.append((('warm', tagn), 1))
    def w_resident(i):
        for own in range(2):
            a(f's_xor_b32 {sT0}, {sWX}, {woff(i + NP * own)}')
            a(f's_add_u32 m0, {sWL}, {WSLOT[i]*SLOT - (0 if own else 4 * 2048)}')
            a(f's_sub_u32 {sT0}, {sT0}, {0 if own else 512}')
            emit([w_dma(0, sT0, i + NP * own), w_dma(1, sT0, i + NP * own)])
        issued.append((('w', i), 4))
    def pw_issue(g):
        for j in range(2):
            a(f's_add_u32 m0, {sBASE}, {(8 + (g & 1))*SLOT + 2048*j}')
            a(f's_xor_b32 {sT0}, {sWX}, {woff(2*g + j)}')
            emit([w_dma(0, sT0, 2*g + j), w_dma(1, sT0, 2*g + j)])
        issued.append((('pw', g), 4))
    def pw_read(g):
        for j in range(2):
            for nb in range(2):
                for u in range(2):
                    r = PK(2 * g + j, nb) + 2 * u
                    a(f'ds_read_b64_tr_b16 v[{r}:{r+1}], v{122 + nb} offset:{(g & 1)*SLOT + 2048*j + 1024*u}')
    def smem_pref(lo, hi):
        if lo >= hi: return
        if lo == 0:
            a(f's_lshl_b32 {sT0}, {sROT}, 14\ns_lshl_b32 {sT1}, {sHW}, 13\ns_add_u32 {sT0}, {sT0}, {sT1}')
            a(f's_add_u32 s88, s52, {sT0}\ns_addc_u32 s89, s53, 0')
        for i in range(lo, hi):
            a(f's_load_dword s{90 + i % 8}, s[88:89], {(i >> 3) * 1024 + 512 + (i & 7) * 64}')
    def wait_for(*items):
        names = [x[0] for x in issued]
        k = max(names.index(it) for it in items)
        a(f's_waitcnt vmcnt({sum(x[1] for x in issued[k+1:])})')
    warm('L_start', 'L_end', 0)
    if not cfg.hs0:
        a(f'''
        s_mov_b32 {sC}, 99
        s_mov_b32 {sCHK}, 99
        s_lshl_b32 {sT0}, {sG}, 3
        v_mov_b32 v30, {sT0}
        v_mov_b32 v29, 8
        s_cmp_eq_u32 {sWAVE}, 4
        s_cbranch_scc0 L_noclear
        s_add_u32 {sT0}, {sT0}, {sHKV}
        s_lshl_b32 {sT0}, {sT0}, 7
        s_add_u32 {sT0}, {sT0}, {FLAG_OFF}
        s_and_b32 {sC}, {sB}, 3
        s_add_u32 {sC}, {sC}, 1
        s_add_u32 {sCHK}, {sC}, 9
        v_mov_b32 v27, 0
        v_mov_b32 v28, 1
        v_lshlrev_b32 v26, 2, v0
        s_mov_b64 exec, 0xff
        buffer_store_dword v27, v26, {WS_}, {sT0} offen sc1
        s_mov_b64 exec, -1
        L_noclear:
        ''')
    if cfg.hprio != 1: a(f's_setprio {cfg.hprio}')
    need = lambda k: 0 if k == 0 else min(31, 2 * k)
    free_at = lambda it: it // 2 + 1 if it % 2 == 0 else it // 2 + 2
    slot_free = lambda j: 0 if j < 10 else free_at(j - 10 if j < 18 else j - 8)
    MERGE = 17
    base_issued = list(issued)
    late_addr = oproj_addr + [f'v_add_u32 v13, {sBASE}, v4', f'v_add_u32 v11, {sBASE}, v4', f'v_add_u32 v10, {8*SLOT}, v11', f'v_add_u32 v11, {4*SLOT}, v11',
                              f'v_add_u32 v122, {sBASE}, v121', f'v_add_u32 v122, {8*SLOT}, v122', 'v_xor_b32 v123, 64, v122']
    if 'b' not in cfg.lay: a(f's_cmp_eq_u32 {sGRP}, 0\ns_cbranch_scc0 L_hkv')
    else: assert cfg.near_kv and cfg.hs0 and cfg.hprio == 1 and not cfg.warm
    EP_ = [(16, 20), (104, 108), (24, 124), (8, 12)]
    def fly(grp, k):
        l = cfg.g1_list if grp else cfg.g0_list
        if l: return int(l[min(k, len(l) - 1)])
        return cfg.g1_fly if grp else cfg.g0_fly if k < cfg.g0_sw else cfg.g0_fly2 if k < cfg.g0_sw2 else 4
    def barrier_step(k, grp, st):
        gp = k - 2 - cfg.park0
        if 0 <= gp < cfg.park:
            wait_for(('kv', need(k)), ('pw', gp))
            pw_read(gp)
            a('s_waitcnt lgkmcnt(0)')
        else:
            wait_for(('kv', need(k)))
        if grp == 1 and 1 <= k <= 5: a('s_waitcnt lgkmcnt(0)')
        if cfg.stamps == 4 and k in (14, 15, 16): stamp(33 + k - 14)
        if k == 16 and 'c' in cfg.lay:
            names = [x[0] for x in issued]
            w3 = sum(x[1] for x in issued[names.index(('w', 3)) + 1:])
            st['w3'] = w3
            assert max(cfg.w_at[:4]) < 16 and not cfg.w_at0
            if grp == 0:
                a('s_branch L_hmerge'); return
            a('L_hmerge:')
        a(f's_barrier   ; k{k}')
        stamp(8 + k)
        if 2 <= k <= 15: cstamp(23 + k)
        if grp == 1 and k == 0:
            a('s_setprio 0')
            for j in range(R0 + cfg.rb_pre, min(10, cfg.g1_pre)): rb_write(j)
            a(f's_setprio {cfg.hprio}')
        late_w = [j for j in range(10, cfg.g1_pre) if grp == 1 and max(slot_free(j), j - 9) == k]
        if 0 <= k - cfg.park0 < cfg.park: pw_issue(k - cfg.park0)
        if k and k == cfg.wtouch[grp]:
            for i in range(2):
                a(f's_xor_b32 {sT0}, {sWX}, {woff(i)}')
                a(f's_sub_u32 {sT0}, {sT0}, 512')
                for hf in range(2):
                    r = 32 + 8 * i + 4 * hf
                    a(f'buffer_load_dwordx4 v[{r}:{r+3}], {vWD[hf]}, {WO_}, {sT0} offen offset:{1024*hf}{cfg.wo_pol}')
            issued.append((('wt', 0), 4))
        while st['nxt'] < 32:
            j = st['nxt']
            if slot_free(j) > k or j > need(k + 1) + fly(grp, k): break
            kv_issue(j); st['nxt'] += 1
        if k == 16:
            if 'c' in cfg.lay: a(f's_waitcnt vmcnt({min(st["w3"], w3g0[0])})')
            else: wait_for(('w', 3))
            for i in range(4):
                emit([f'ds_read_b64_tr_b16 v[{EP_[i][nb]+2*u}:{EP_[i][nb]+2*u+1}], {vWA(WSLOT[i] // 4, nb)} offset:{(WSLOT[i] % 4)*SLOT + 1024*u}'
                      for nb in range(2) for u in range(2)])
                if i == 2: a('s_waitcnt lgkmcnt(8)')
        if late_w:
            a('s_setprio 0')
            for j in late_w: rb_write(j)
            a(f's_setprio {cfg.hprio}')
        for wi, at in enumerate(cfg.w_at if grp or not cfg.w_at0 else cfg.w_at0):
            if at == k: w_resident(wi)
        if cfg.stamps == 4 and k in (13, 14, 15): stamp(30 + k - 13)
        if k == 16:
            a('s_waitcnt lgkmcnt(0)')
        if grp == 0 and k < 4: smem_pref(min(cfg.smem[0], 32 + 8 * k), min(cfg.smem[0], 40 + 8 * k))
        if k == 11: warm('L_last', 'L_end', 1)
        if 1 <= k <= 4 and not cfg.hs0:
            lab = a.label('L_na')
            a(f's_cmp_eq_u32 {sC}, {k}\ns_cbranch_scc0 {lab}\ns_mov_b64 exec, 1')
            a(f'buffer_atomic_add v28, v30, {DBG_}, 0 offen sc1\ns_mov_b64 exec, -1\n{lab}:')
        if 10 <= k <= 13 and not cfg.hs0:
            lab = a.label('L_nc')
            a(f's_cmp_eq_u32 {sCHK}, {k}\ns_cbranch_scc0 {lab}')
            a(f'buffer_load_dword v29, v30, {DBG_}, 0 offen sc1\n{lab}:')
    states = []; w3g0 = []
    for grp in (0, 1):
        issued[:] = base_issued
        st = {}
        if grp == 0:
            for j in range(cfg.g0_pre): kv_issue(j)
            emit(late_addr)
            a(f's_waitcnt vmcnt({sum(x[1] for x in issued)})')
            a('s_barrier   ; Bx')
            stamp(1)
            if not cfg.xov:
                a('s_barrier   ; Bx2')
                a('s_barrier   ; Bw')
            smem_pref(0, min(32, cfg.smem[0]))
            a('s_barrier   ; Bk')
            top = min(6, max(5, cfg.g0_pre + 4))
            for j in range(cfg.g0_pre, min(top, cfg.g0_pre + 3)): kv_issue(j)
            a('s_barrier   ; Bq')
            for j in range(cfg.g0_pre + 3, top): kv_issue(j)
            st['nxt'] = top
            stamp(2)
        else:
            a('L_hkv:')
            if 'b' in cfg.lay and cfg.defer == 1: a(late_srd)
            if cfg.near_kv:
                issued[:] = [(('kv', j), 4) for j in range(cfg.g1_first)] + base_issued
            else:
                for j in range(cfg.g1_first): kv_issue(j)
            emit(late_addr)
            a(f's_waitcnt vmcnt({sum(x[1] for x in issued)})')
            a('s_barrier   ; Bx')
            stamp(1)
            for j in range(cfg.g1_first, 4): kv_issue(j)
            a('s_barrier   ; Bx2')
            for j in range(4, cfg.g1_pre): kv_issue(j, j >= R0)
            stamp(2)
            a('s_barrier   ; Bw')
            smem_pref(0, cfg.smem[1])
            a('s_barrier   ; Bk')
            a('s_waitcnt vmcnt(0)')
            a('s_barrier   ; Bq')
            for j in range(R0, min(R0 + cfg.rb_pre, cfg.g1_pre)): rb_write(j)
            st['nxt'] = cfg.g1_pre
        for k in range(MERGE):
            barrier_step(k, grp, st)
        assert st['nxt'] == 32
        if 'c' in cfg.lay:
            if grp == 0: w3g0.append(st['w3'])
        elif grp == 0: a('s_branch L_hmerge')
    if 'c' not in cfg.lay: a('L_hmerge:')
    for k in range(MERGE, 17):
        barrier_step(k, 1, st)
    EP = [(16, 20), (104, 108), (24, 124), (8, 12)]
    def wread(dst, slot):
        return [f'ds_read_b64_tr_b16 v[{dst[nb]+2*u}:{dst[nb]+2*u+1}], {vWA(slot // 4, nb)} offset:{(slot % 4)*SLOT + 1024*u}'
                for nb in range(2) for u in range(2)]
    def own_refill(slot, idx):
        return [f's_add_u32 m0, {sWL}, {slot*SLOT}', f's_xor_b32 {sWO}, {sWX}, {woff(idx)}', w_dma(0, sWO), w_dma(1, sWO)]
    assert NP == 16 and cfg.early
    for i in range(4 - cfg.rlate): emit(own_refill(WSLOT[i], 23 + i))
    def hs_check(cnt):
        a(f"""
        s_mov_b32 {sSPIN}, 0
        s_waitcnt vmcnt({cnt})
        L_chk:
        v_cmp_gt_u32 vcc, 8, v29
        s_cbranch_vccz L_chkd
        s_add_u32 {sSPIN}, {sSPIN}, 1
        s_cmp_gt_u32 {sSPIN}, 0x40000
        s_cbranch_scc1 L_chkd
        buffer_load_dword v29, v30, {DBG_}, 0 offen sc1
        s_waitcnt vmcnt(0)
        s_branch L_chk
        L_chkd:
        """)
    if cfg.hs0: a(f's_waitcnt vmcnt({2 * (4 - cfg.rlate)})')
    else: hs_check(8)
    a('s_barrier   ; Bo')
    stamp(6)
    W = WSLOT
    seq = [(20, W[4]), (21, W[5]), (22, W[6]), (23, W[0])] + [(i, None) for i in range(20)] + \
          [(24, W[1]), (25, W[2]), (26, W[3]), (27, W[7]), (28, W[4]), (29, W[5]), (30, W[6]), (31, W[0])]
    HE = cfg.hearly
    he = max(HE, 0)
    seq = seq[:he] + seq[4:24] + seq[he:4] + seq[24:]
    refills = [(27, W[7]), (28, W[4]), (29, W[5]), (30, W[6]), (31, W[0])]
    vm_order = [23, 24, 25, 26]
    BFs = lambda n: 48 + 4 * (n & 3)
    AFs = lambda n: ((32, 36), (40, 44), (96, 100))[n % 3]
    def reads(n):
        idx, slot = seq[n]
        l = []
        if idx >= 23:
            l.append(f's_waitcnt vmcnt({2*(len(vm_order) - 1 - vm_order.index(idx))})')
        l.append(f'ds_read_b128 v[{BFs(n)}:{BFs(n)+3}], {vOA} offset:{1024*idx}')
        if slot is not None: l += wread(AFs(n), slot)
        return l
    def refill1():
        i2, sl = refills.pop(0)
        emit(own_refill(sl, i2)); vm_order.append(i2)
    cnt = lambda n: 0 if n >= 32 else (5 if seq[n][1] is not None else 1)
    if HE < 0: a('s_setprio 0')
    emit(reads(0)); emit(reads(1))
    assert HE == 0 or not cfg.rlate
    for i in range(4 - cfg.rlate, 4): emit(own_refill(WSLOT[i], 23 + i))
    if HE >= 0: refill1()
    if HE == 0: a('s_setprio 0')
    for n in range(32):
        idx, slot = seq[n]
        if n in (4, 8, 12, 16, 20, 24, 28): stamp(47 + n // 4)
        if n + 2 < 32: emit(reads(n + 2))
        a(f's_waitcnt lgkmcnt({cnt(n + 1) + cnt(n + 2)})')
        for nb in range(2):
            areg = AFs(n)[nb] if slot is not None else (PK(idx, nb) if idx < 16 else EP[idx - 16][nb])
            c = '0' if n == 0 else f'v[{PA(nb)}:{PA(nb)+15}]'
            a(f'v_mfma_f32_32x32x16_bf16 v[{PA(nb)}:{PA(nb)+15}], v[{areg}:{areg+3}], v[{BFs(n)}:{BFs(n)+3}], {c}')
        if n < he: refill1()
        if n == he - 1: a('s_setprio 0')
        if n == cfg.hup: a('s_setprio 1')
        if n == cfg.hburst:
            assert 23 <= n <= 24
            while refills: refill1()

    handoff('')
    a('L_end:')
    a('s_endpgm')
    for tag, sb in (('A', 1), ('B', 0), ('C', 1)) if cfg.fin2 else (('A', 1), ('B', 0), ('D', 1), ('E', 0), ('C', 1)):
        a(f'L_slow{tag}:')
        emit(rowmax(sb, True))
        a('v_exp_f32 v15, -v14')
        a('v_exp_f32 v7, -v6')
        for u, (d, al) in enumerate((('v14', 'v15'), ('v6', 'v7'))):
            emit([f'v_sub_f32 v{S(sb)+8*u+r}, v{S(sb)+8*u+r}, {d}' for r in range(8)])
            if tag != 'C': emit([f'v_sub_f32 v{CB(u)+r}, v{CB(u)+r}, {d}' for r in range(4)])
            a(f'v_mul_f32 v{LA(u)}, v{LA(u)}, {al}')
            if tag == 'C' and not cfg.fin2:
                emit([f'v_mul_f32 v{S(0)+8*u+r}, v{S(0)+8*u+r}, {al}' for r in range(8)])
            for t in range(8):
                emit([f'v_mul_f32 v{OT(t,u)+r}, v{OT(t,u)+r}, {al}' for r in range(4)])
        a('s_nop 0')
        a(f's_branch L_back{tag}')

    return header([f'; @launch grid=(256,1,1) block=(512,1,1) lds={10*SLOT}']) + kernel_open(kn) + a.text() + descriptor(kn, 256, 102)

if __name__ == '__main__':
    out = sys.argv[1]
    cfg = Cfg()
    for kv in sys.argv[2:]:
        k, v = kv.split('=', 1)
        assert hasattr(cfg, k), k
        setattr(cfg, k, eval(v))
    t = gen(cfg)
    if cfg.nomfma:
        i0 = t.index('L_loop:'); i1 = t.index('L_tail:')
        t = t[:i0] + '\n'.join(('    s_nop 7' if 'v_mfma_f32_32' in l else l) for l in t[i0:i1].split('\n')) + t[i1:]
    n = hazard.check(t)
    open(out, 'w').write(t)
    print(out, 'hazards:', n, 'lines:', t.count('\n'))
```
